```python
import torch

def _softmax(x, axis=-1):
    return torch.softmax(x, dim=axis)
def _gelu(x):
    return torch.nn.functional.gelu(x, approximate="tanh")
def _silu(x):
    return torch.nn.functional.silu(x)
def _sigmoid(x):
    return torch.sigmoid(x)
def _layernorm(x, axis=-1, eps=1e-5):
    m = x.mean(dim=axis, keepdim=True)
    v = x.var(dim=axis, keepdim=True, unbiased=False)
    return (x - m) / torch.sqrt(v + eps)
def _scatter_add(tgt, idx, src, axis=0):
    return tgt.clone().index_add_(axis, idx, src)
def _segment_sum(src, seg, n):
    out = torch.zeros((n,) + src.shape[1:], dtype=src.dtype)
    return out.index_add_(0, seg, src)
def _pad(x, pw):
    flat = tuple(v for pair in reversed(pw) for v in pair)
    return torch.nn.functional.pad(x, flat)

kernel_name = 'concat_heads__mha_block_cached__mha_block_cached__near_ridge'

def setup_inputs():

    _w = (lambda a: (lambda t: t.to(torch.bfloat16) if t.is_floating_point() else t)(torch.as_tensor(a)))
    def _A_setup():
        B, Sq, D = 8, 128, 576
        H, Sk, Dh = 32, 512, 128
        return {
            "x": _w((lambda *s: torch.randn(*s, dtype=torch.bfloat16) * 0.8)(B, Sq, D)),
            "k_cache": _w((lambda *s: torch.randn(*s, dtype=torch.bfloat16) * 0.8)(B, H, Sk, Dh)),
            "v_cache": _w((lambda *s: torch.randn(*s, dtype=torch.bfloat16) * 0.05)(B, H, Sk, Dh)),
            "wq": _w((lambda *s: torch.randn(*s, dtype=torch.bfloat16) * 0.8)(D, H * Dh) * (D ** -0.5)),
            "wo": _w((lambda *s: torch.randn(*s, dtype=torch.bfloat16) * 0.05)(H * Dh, D) * ((H * Dh) ** -0.5)),
        }
    _A_in = _A_setup()

    def _B_setup():
        B, Sq, D = 8, 128, 576
        H, Sk, Dh = 32, 512, 128
        return {
            "x": _w((lambda *s: torch.randn(*s, dtype=torch.bfloat16) * 0.8)(B, Sq, D)),
            "k_cache": _w((lambda *s: torch.randn(*s, dtype=torch.bfloat16) * 0.8)(B, H, Sk, Dh)),
            "v_cache": _w((lambda *s: torch.randn(*s, dtype=torch.bfloat16) * 0.05)(B, H, Sk, Dh)),
            "wq": _w((lambda *s: torch.randn(*s, dtype=torch.bfloat16) * 0.8)(D, H * Dh) * (D ** -0.5)),
            "wo": _w((lambda *s: torch.randn(*s, dtype=torch.bfloat16) * 0.05)(H * Dh, D) * ((H * Dh) ** -0.5)),
        }
    _B_in = _B_setup()

    return {
        "A_x": _A_in["x"],
        "A_k_cache": _A_in["k_cache"],
        "A_v_cache": _A_in["v_cache"],
        "A_wq": _A_in["wq"],
        "A_wo": _A_in["wo"],
        "B_x": _B_in["x"],
        "B_k_cache": _B_in["k_cache"],
        "B_v_cache": _B_in["v_cache"],
        "B_wq": _B_in["wq"],
        "B_wo": _B_in["wo"],
    }

def reference(A_x, A_k_cache, A_v_cache, A_wq, A_wo, B_x, B_k_cache, B_v_cache, B_wq, B_wo):
    def _A_ref(x, k_cache, v_cache, wq, wo):
        B, Sq, D = x.shape
        H, Dh = 32, 128
        q = (lambda x, *d: x.permute(*d))((x @ wq).reshape(B, Sq, H, Dh), 0, 2, 1, 3)
        scores = torch.einsum("bhqd,bhkd->bhqk", q, k_cache) * (Dh ** -0.5)
        p = _softmax(scores, axis=-1)
        o = torch.einsum("bhqk,bhkd->bhqd", p, v_cache)
        return (lambda x, *d: x.permute(*d))(o, 0, 2, 1, 3).reshape(B, Sq, H * Dh) @ wo

    def _B_ref(x, k_cache, v_cache, wq, wo):
        B, Sq, D = x.shape
        H, Dh = 32, 128
        q = (lambda x, *d: x.permute(*d))((x @ wq).reshape(B, Sq, H, Dh), 0, 2, 1, 3)
        scores = torch.einsum("bhqd,bhkd->bhqk", q, k_cache) * (Dh ** -0.5)
        p = _softmax(scores, axis=-1)
        o = torch.einsum("bhqk,bhkd->bhqd", p, v_cache)
        return (lambda x, *d: x.permute(*d))(o, 0, 2, 1, 3).reshape(B, Sq, H * Dh) @ wo

    a = _A_ref(A_x, A_k_cache, A_v_cache, A_wq, A_wo)
    b = _B_ref(B_x, B_k_cache, B_v_cache, B_wq, B_wo)
    return torch.concatenate([a, b], axis=-1)
```

```python
NAME = "concat_heads__mha_block_cached__mha_block_cached__near_ridge_kernel"

class Asm:
    def __init__(self):
        self.lines = []
    def __call__(self, s):
        for l in s.strip("\n").split("\n"):
            self.lines.append("    " + l.strip() if not l.strip().endswith(":") else l.strip())
    def label(self, n):
        self.lines.append(n + ":")
    def c(self, s):
        self.lines.append("    ; " + s)
    def text(self):
        return "\n".join(self.lines) + "\n"

def kd(name, vgpr, sgpr=102, accum=None):
    if accum is None:
        accum = (vgpr + 3) // 4 * 4
    return f""".amdhsa_kernel {name}
  .amdhsa_next_free_vgpr {vgpr}
  .amdhsa_next_free_sgpr {sgpr}
  .amdhsa_accum_offset {accum}
  .amdhsa_group_segment_fixed_size 0
  .amdhsa_kernarg_size 104
  .amdhsa_user_sgpr_count 2
  .amdhsa_user_sgpr_kernarg_segment_ptr 1
  .amdhsa_system_sgpr_workgroup_id_x 1
.end_amdhsa_kernel
"""

def wrap_single(body, grid, block, lds, vgpr, sgpr=102, accum=None, header=""):
    return (header + f"; @launch grid=({grid},1,1) block=({block},1,1) lds={lds}\n"
        + '.amdgcn_target "amdgcn-amd-amdhsa--gfx950"\n.text\n'
        + f".globl {NAME}\n.p2align 8\n.type {NAME},@function\n{NAME}:\n" + body
        + '.section .rodata,"a"\n.p2align 6\n' + kd(NAME, vgpr, sgpr, accum))

def wrap_list(kernels, header=""):
    s = header
    for k in kernels:
        s += f"; @launch kernel={k['name']} grid=({k['grid']},1,1) block=({k['block']},1,1) lds={k['lds']}\n"
    s += '.amdgcn_target "amdgcn-amd-amdhsa--gfx950"\n.text\n'
    seen = []
    for k in kernels:
        if k['name'] in seen: continue
        seen.append(k['name'])
        s += f".globl {k['name']}\n.p2align 8\n.type {k['name']},@function\n{k['name']}:\n" + k['body']
    s += '.section .rodata,"a"\n'
    seen = []
    for k in kernels:
        if k['name'] in seen: continue
        seen.append(k['name'])
        s += ".p2align 6\n" + kd(k['name'], k['vgpr'], k.get('sgpr', 102), k.get('accum'))
    return s
```

```python
import re

REG_RE = re.compile(r'^(-|abs\()?\s*([vas])(\d+)\)?$')
RNG_RE = re.compile(r'^(-)?([vas])\[(\d+):(\d+)\]$')

def parse_reg(tok):
    tok = tok.strip()
    m = RNG_RE.match(tok)
    if m:
        return [(m.group(2), i) for i in range(int(m.group(3)), int(m.group(4)) + 1)]
    m = REG_RE.match(tok)
    if m:
        return [(m.group(2), int(m.group(3)))]
    if tok == 'vcc':
        return [('s', 106), ('s', 107)]
    if tok == 'vcc_lo': return [('s', 106)]
    if tok == 'vcc_hi': return [('s', 107)]
    if tok == 'exec':
        return [('s', 126), ('s', 127)]
    if tok == 'm0':
        return [('s', 124)]
    return []

TRANS = ('v_exp_f32', 'v_log_f32', 'v_rcp_f32', 'v_rsq_f32', 'v_sqrt_f32', 'v_sin_f32', 'v_cos_f32')

def R(kind, lo, n=1):
    return f"{kind}{lo}" if n == 1 else f"{kind}[{lo}:{lo+n-1}]"

class Ins:
    __slots__ = ('text', 'op', 'kind', 'dst', 'src', 'srcC', 'srcAB', 'passes', 'pos', 'lds_dma', 'wide_store')

def decode(text):
    t = text.split(';')[0].strip()
    parts = t.split(None, 1)
    op = parts[0]
    rest = parts[1] if len(parts) > 1 else ''
    ops = [x.strip() for x in rest.split(',')] if rest else []
    mods = ''
    if ops:
        lp = ops[-1].split()
        if len(lp) > 1:
            ops[-1] = lp[0]; mods = ' '.join(lp[1:])
    I = Ins(); I.text = text; I.op = op; I.dst = []; I.src = []; I.srcC = []; I.srcAB = []
    I.passes = 0; I.lds_dma = False; I.wide_store = False
    pr = [parse_reg(o) for o in ops]
    flat = lambda l: [r for x in l for r in x]
    if op.startswith('v_mfma'):
        I.kind = 'mfma'; I.dst = pr[0]; I.srcAB = pr[1] + pr[2]; I.srcC = pr[3]; I.src = I.srcAB + I.srcC
        I.passes = 8 if '32x32x16' in op else 4 if '16x16x32' in op else None
        assert I.passes
    elif op.startswith('v_'):
        I.kind = 'valu'
        if op.startswith('v_permlane'):
            I.dst = pr[0] + pr[1]; I.src = pr[0] + pr[1]
        elif op.startswith(('v_add_co', 'v_sub_co', 'v_addc_co', 'v_subb_co')):
            I.dst = pr[0] + pr[1]; I.src = flat(pr[2:])
        elif op.startswith(('v_fmac', 'v_pk_fmac', 'v_dot2c')):
            I.dst = pr[0]; I.src = flat(pr)
        elif op == 'v_nop':
            pass
        else:
            I.dst = pr[0]; I.src = flat(pr[1:])
            if op.startswith('v_cmpx'): I.dst = I.dst + parse_reg('exec')
    elif op.startswith('ds_'):
        I.kind = 'ds'
        if op.startswith(('ds_read', 'ds_bpermute', 'ds_permute', 'ds_swizzle')):
            I.dst = pr[0]; I.src = flat(pr[1:])
        else:
            I.src = flat(pr)
    elif op.startswith(('buffer_', 'global_')):
        I.kind = 'vmem'
        if op.startswith(('buffer_inv', 'buffer_wbl2')):
            pass
        elif ' lds' in (' ' + mods) and 'load' in op:
            I.lds_dma = True; I.src = flat(pr) + parse_reg('m0')
        elif 'load' in op:
            I.dst = pr[0]; I.src = flat(pr[1:])
        elif 'atomic' in op and 'sc0' in mods:
            I.dst = pr[0]; I.src = flat(pr)
        else:
            I.src = flat(pr)
            if op.endswith(('x4', 'x3')):
                I.wide_store = True
                I.srcAB = pr[0] if op.startswith('buffer_') else pr[1]
    elif op.startswith('s_'):
        I.kind = 'salu'
        if op.startswith(('s_load', 's_memtime', 's_memrealtime', 's_buffer_load')):
            I.kind = 'smem'; I.dst = pr[0]; I.src = flat(pr[1:])
        elif op.startswith(('s_cmp', 's_waitcnt', 's_barrier', 's_nop', 's_branch', 's_cbranch', 's_endpgm', 's_setprio', 's_setpc', 's_sleep', 's_bitcmp')):
            I.src = flat(pr)
        else:
            I.dst = pr[0] if pr else []; I.src = flat(pr[1:])
    else:
        raise ValueError(text)
    return I

class Emit:
    def __init__(self):
        self.lines = []
        self.hist = []
        self.pos = 0
        self.lgkm = []
        self.vm = []
        self.nops = 0
        self.nwait = 0
        self.count = 0
    def raw(self, s):
        self.lines.append(s)
    def c(self, s):
        self.lines.append("    ; " + s)
    def label(self, n):
        self.lines.append(n + ":")
    def _put(self, I, states=1):
        self.lines.append("    " + I.text)
        I.pos = self.pos
        self.pos += states
        self.hist.append(I)
        if len(self.hist) > 40: self.hist.pop(0)
        self.count += 1
    def nop(self, n):
        while n > 0:
            k = min(n, 16)
            I = decode(f"s_nop {k-1}")
            self._put(I, k); n -= k; self.nops += 1
    def wait_lgkm(self, n):
        if len(self.lgkm) > n:
            I = decode(f"s_waitcnt lgkmcnt({min(n,14)})")
            self._put(I); self.nwait += 1
            n = min(n, 14)
            self.lgkm = self.lgkm[len(self.lgkm) - n:] if n else []
    def wait_vm(self, n, force=False):
        if len(self.vm) > n or force:
            assert n <= 62
            I = decode(f"s_waitcnt vmcnt({n})")
            self._put(I); self.nwait += 1
            self.vm = self.vm[len(self.vm) - n:] if n else []
    def wait_tag(self, *tags):
        idx = -1
        for i, (t, d) in enumerate(self.vm):
            if t in tags: idx = i
        if idx >= 0:
            self.wait_vm(min(len(self.vm) - idx - 1, 62))
    def fence(self, states=16):
        self.nop(states)
    def __call__(self, text, tag=None):
        for l in text.strip().split('\n'):
            l = l.strip()
            if not l: continue
            if l.startswith(';'):
                self.lines.append("    " + l); continue
            if l.endswith(':'):
                self.lines.append(l); continue
            self.ins(l, tag)
    def ins(self, text, tag=None):
        I = decode(text)
        touch = set(I.src) | set(I.dst)
        idx = -1
        for i, d in enumerate(self.lgkm):
            if touch & d: idx = i
        if idx >= 0:
            self.wait_lgkm(len(self.lgkm) - idx - 1)
        idx = -1
        for i, (t, d) in enumerate(self.vm):
            if touch & d: idx = i
        if idx >= 0:
            self.wait_vm(len(self.vm) - idx - 1)
        need = 0
        src = set(I.src); dst = set(I.dst)
        for P in self.hist:
            dist = self.pos - P.pos - 1
            req = 0
            pd = set(P.dst)
            if P.kind == 'mfma':
                big = 12 if P.passes == 8 else 8
                if I.kind == 'mfma':
                    if pd & set(I.srcAB): req = max(req, big)
                    if pd & set(I.srcC):
                        if not (I.srcC == P.dst and I.passes == P.passes): req = max(req, big - 2)
                    if (pd & dst) and I.srcC != P.dst: req = max(req, big - 2)
                elif I.kind in ('valu', 'ds', 'vmem'):
                    if pd & (src | dst): req = max(req, big)
                    if I.kind == 'valu' and (set(P.srcC) & dst): req = max(req, 7 if P.passes == 8 else 3)
                    if I.kind != 'valu' and (set(P.srcC) & dst): req = max(req, 7 if P.passes == 8 else 3)
            elif P.kind == 'valu':
                pv = {r for r in pd if r[0] != 's'}
                ps = {r for r in pd if r[0] == 's'}
                if I.kind == 'mfma':
                    if pv & src: req = max(req, 2)
                    if ('s', 126) in ps: req = max(req, 4)
                elif I.kind == 'valu':
                    if P.op.startswith(TRANS) and (pv & src) and not I.op.startswith(TRANS): req = max(req, 1)
                    if P.op.startswith(TRANS) and (pv & src): req = max(req, 1)
                    if I.op.startswith('v_permlane') and (pv & src): req = max(req, 2)
                    if I.op.startswith(('v_readlane', 'v_readfirstlane')) and (pv & src): req = max(req, 1)
                    if 'dpp' in I.text and (pv & src): req = max(req, 2)
                    if ps & src: req = max(req, 4 if I.op.startswith(('v_readlane', 'v_writelane')) else 2)
                    if I.op.startswith('v_cndmask') and (('s', 106) in ps): req = max(req, 2)
                    if ('s', 126) in ps and I.op.startswith(('v_readlane', 'v_readfirstlane', 'v_writelane', 'v_permlane')): req = max(req, 4)
                elif I.kind == 'vmem':
                    if ps & src: req = max(req, 5)
                elif I.kind in ('salu', 'smem'):
                    if ps & src: req = max(req, 1)
            elif P.kind == 'salu':
                if ('s', 124) in pd and I.lds_dma: req = max(req, 1)
            elif P.kind == 'vmem' and P.wide_store:
                if set(P.srcAB) & dst: req = max(req, 2)
            if req - dist > need: need = req - dist
        if need > 0:
            self.nop(need)
        st = 1
        if I.op == 's_nop': st = int(I.text.split()[1]) + 1
        self._put(I, st)
        if I.kind == 'ds':
            self.lgkm.append(set(I.dst))
        elif I.kind == 'vmem' and not I.op.startswith(('buffer_inv', 'buffer_wbl2')):
            self.vm.append((tag, set(I.dst)))
            assert len(self.vm) <= 62, "too many vmem outstanding for tracking"
        elif I.op == 's_waitcnt':
            m = re.search(r'lgkmcnt\((\d+)\)', I.text)
            if m:
                n = int(m.group(1)); self.lgkm = self.lgkm[len(self.lgkm) - n:] if n else []
            m = re.search(r'vmcnt\((\d+)\)', I.text)
            if m:
                n = int(m.group(1)); self.vm = self.vm[max(0, len(self.vm) - n):] if n else []
    def text(self):
        return "\n".join(self.lines) + "\n"

def interleave(E, mfmas, fillers, lead=0):
    n = len(mfmas)
    total = sum(f[1] for f in fillers if f[0] != '@after')
    per = total / max(n, 1)
    fi = 0; acc = 0.0
    def put(f):
        if callable(f[0]): f[0]()
        else: E(f[0], f[2] if len(f) > 2 else None)
    for k, m in enumerate(mfmas):
        if callable(m): m()
        else: E(m)
        budget = per * (k + 1)
        while fi < len(fillers):
            f = fillers[fi]
            if f[0] == '@after':
                if f[1] <= k: fi += 1; continue
                else: break
            if acc + f[1] * 0.5 > budget and k < n - 1: break
            put(f); acc += f[1]; fi += 1
    while fi < len(fillers):
        f = fillers[fi]
        if f[0] != '@after': put(f)
        fi += 1
```

```python
from emit import *
import math, struct

def f32bits(x):
    return struct.unpack('<I', struct.pack('<f', x))[0]

O_BASE = 1 << 20
KR, VR, XR, WR = 0, 49152, 98304, 114688

class Alloc:
    def __init__(self, start): self.n = start
    def get(self, k=1, al=1):
        self.n = (self.n + al - 1) // al * al
        r = self.n; self.n += k; return r

def gen_k1(opt):
    stamps = opt.get('stamps', False)
    kvpol = opt.get('kvpol', 'nt')
    qpol = opt.get('qpol', '')
    opol = opt.get('opol', '')
    thresh = opt.get('thresh', 4096.0)
    E = Emit()
    va = Alloc(1)
    KA = va.get(8); VA = va.get(4); WA = va.get(4); KD = va.get(4); VD = va.get(1); WD = va.get(4); OD = 0
    RL = va.get(2, 2)
    L1 = va.get(1); L2 = va.get(1); LA = va.get(1); LB = va.get(1)
    XA = va.get(4, 4); XD = va.get(4, 4)
    S = [va.get(16, 4), va.get(16, 4)]
    NEG = va.get(16, 4)
    P = [va.get(8, 4), va.get(8, 4)]
    T = va.get(8, 4)
    WFV = va.get(8, 4)
    EP = va.get(8, 4)
    QACC = va.get(64, 4)
    Q = va.get(32, 4)
    KF = va.get(32, 4)
    assert va.n <= 256, va.n
    X = 0; O1 = 144; VF = 208; WFA = 240
    WF = [('a', WFA + 4 * i) for i in range(4)] + [('v', WFV), ('v', WFV + 4), ('v', EP), ('v', EP + 4)]
    NWF = len(WF)
    SX, SW, SK, SV, SO = 4, 8, 12, 16, 20
    sW4K, sXC, sWC, sOFF, sTH, sRET, sSC, sTMP = 24, 25, 26, 27, 28, 30, 32, 34
    sST = 40
    nst = [0]
    def stamp():
        if stamps:
            E(f"s_memrealtime s[{sST+2*nst[0]}:{sST+2*nst[0]+1}]")
            E.raw("    s_waitcnt lgkmcnt(0)"); E.lgkm = []
            nst[0] += 1
            assert sST + 2 * nst[0] <= 64
    c = math.log2(math.e) / math.sqrt(128.0)

    E(f"""
    s_cmp_ge_u32 s2, 256
    s_cbranch_scc1 K1_END
    s_load_dwordx8 s[64:71], s[0:1], 0
    s_load_dwordx8 s[72:79], s[0:1], 40
    s_load_dwordx2 s[80:81], s[0:1], 96
    """)
    stamp()
    E(f"""
    v_lshrrev_b32 v{T}, 6, v0
    v_and_b32 v0, 63, v0
    v_readfirstlane_b32 s35, v{T}
    s_and_b32 s36, s2, 7
    s_lshr_b32 s37, s2, 3
    s_lshr_b32 s38, s36, 2
    s_and_b32 s36, s36, 3
    s_lshl_b32 s36, s36, 2
    s_and_b32 s39, s37, 3
    s_add_u32 s36, s36, s39
    s_lshr_b32 s37, s37, 2
    s_lshl_b32 s{sW4K}, s35, 12
    """)
    E(f"""
    s_lshl_b32 s39, s39, 1
    s_add_u32 s39, s39, s37
    s_cmp_ge_u32 s39, 9
    s_cselect_b32 s{sTMP}, 9, 0
    s_sub_u32 s39, s39, s{sTMP}
    s_mul_i32 s39, s39, {opt.get('rot', 1)}
    s_lshl_b32 s{sXC}, s39, 7
    s_lshl_b32 s{sWC}, s39, 19
    s_mov_b32 s{sTH}, {hex(f32bits(thresh))}
    s_mov_b32 s{sSC}, {hex(f32bits(c))}
    s_mov_b32 s{sSC+1}, {hex(f32bits(c))}
    """)
    t0, t1, t2, t3, t4, t5 = T, T + 1, T + 2, T + 3, T + 4, T + 5
    E(f"""
    v_lshrrev_b32 v{t0}, 3, v0
    s_lshl_b32 s{sTMP}, s35, 5
    v_add_u32 v{t0}, s{sTMP}, v{t0}
    v_mul_u32_u24 v{t0}, 1152, v{t0}
    v_and_b32 v{t1}, 7, v0
    v_lshrrev_b32 v{t2}, 4, v0
    v_xor_b32 v{t3}, v{t1}, v{t2}
    v_xor_b32 v{t4}, 4, v{t3}
    v_lshlrev_b32 v{t3}, 4, v{t3}
    v_lshlrev_b32 v{t4}, 4, v{t4}
    v_add_u32 v{XD}, v{t0}, v{t3}
    v_add_u32 v{XD+1}, v{t0}, v{t4}
    v_add_u32 v{XD+2}, {16*1152-2048}, v{XD}
    v_add_u32 v{XD+3}, {24*1152-3072}, v{XD+1}
    v_add_u32 v{XD+1}, {8*1152-1024}, v{XD+1}
    """)
    E(f"""
    v_and_b32 v{t1}, 15, v0
    v_lshlrev_b32 v{t3}, 2, v{t2}
    v_xor_b32 v{t3}, v{t1}, v{t3}
    v_lshlrev_b32 v{t3}, 4, v{t3}
    s_lshl_b32 s{sTMP}, s35, 4
    v_add_u32 v{t0}, s{sTMP}, v{t2}
    v_lshlrev_b32 v{t4}, 13, v{t0}
    v_add_u32 v{WD}, v{t4}, v{t3}
    v_add_u32 v{WD+1}, {4*8192-1024}, v{WD}
    v_add_u32 v{WD+2}, {8*8192-2048}, v{WD}
    v_add_u32 v{WD+3}, {12*8192-3072}, v{WD}
    v_lshlrev_b32 v{t4}, 8, v{t0}
    v_add_u32 v{VD}, v{t4}, v{t3}
    """)
    for n in range(4):
        E(f"""
        v_add_u32 v{t3}, {4*n}, v{t2}
        v_xor_b32 v{t3}, v{t1}, v{t3}
        v_lshlrev_b32 v{t3}, 4, v{t3}
        v_add_u32 v{KD+n}, v{t4}, v{t3}
        """)
    E.raw("    s_waitcnt lgkmcnt(0)")
    E(f"""
    s_cmp_eq_u32 s38, 0
    s_cselect_b32 s{SX}, s64, s72
    s_cselect_b32 s{SX+1}, s65, s73
    s_cselect_b32 s{SK}, s66, s74
    s_cselect_b32 s{SK+1}, s67, s75
    s_cselect_b32 s{SV}, s68, s76
    s_cselect_b32 s{SV+1}, s69, s77
    s_cselect_b32 s{SW}, s70, s78
    s_cselect_b32 s{SW+1}, s71, s79
    s_mul_i32 s{sTMP}, s37, 147456
    s_add_u32 s{SX}, s{SX}, s{sTMP}
    s_addc_u32 s{SX+1}, s{SX+1}, 0
    s_mov_b32 s{SX+2}, 147456
    s_mov_b32 s{SX+3}, 0x20000
    s_lshl_b32 s{sTMP}, s36, 8
    s_add_u32 s{SW}, s{SW}, s{sTMP}
    s_addc_u32 s{SW+1}, s{SW+1}, 0
    s_sub_u32 s{SW+2}, {576*8192}, s{sTMP}
    s_mov_b32 s{SW+3}, 0x20000
    """)
    def adv(s, step, lim):
        E(f"""
        s_add_u32 s{s}, s{s}, {step}
        s_cmp_eq_u32 s{s}, {lim}
        s_cselect_b32 s{s}, 0, s{s}
        """)
    def dma_x(q):
        slot = (q + 3) % 4
        f = [(f"s_add_u32 m0, s{sW4K}, {VR + slot*16384}", 1)]
        f.append((f"s_nop 0", 1))
        for n in range(4):
            f.append((f"buffer_load_dwordx4 v{XD+n}, s[{SX}:{SX+3}], s{sXC} offen offset:{1024*n} {qpol} lds", 4, f"x{q}"))
        f.append((lambda: adv(sXC, 128, 1152), 3))
        return f
    def dma_w(q):
        u = q // 9
        f = [(f"s_add_u32 m0, s{sW4K}, {WR + (q%3)*16384}", 1)]
        f.append((f"s_add_u32 s{sOFF}, s{sWC}, {u*4096}", 1))
        for n in range(4):
            f.append((f"buffer_load_dwordx4 v{WD+n}, s[{SW}:{SW+3}], s{sOFF} offen offset:{1024*n} {qpol} lds", 4, f"w{q}"))
        f.append((lambda: adv(sWC, 1 << 19, 9 << 19), 3))
        return f
    def dma_k(G):
        f = [(f"s_add_u32 m0, s{sW4K}, {KR + (G%3)*16384}", 1)]
        f.append((f"s_mov_b32 s{sOFF}, {(G>>3)*16*131072 + (G&7)*16384}", 1))
        for n in range(4):
            f.append((f"buffer_load_dwordx4 v{KD+n}, s[{SK}:{SK+3}], s{sOFF} offen offset:{1024*n} {kvpol} lds", 4, f"k{G}"))
        return f
    def dma_v(G):
        f = [(f"s_add_u32 m0, s{sW4K}, {VR + (G%3)*16384}", 1)]
        f.append((f"s_mov_b32 s{sOFF}, {(G>>3)*16*131072 + (G&7)*16384}", 1))
        for n in range(4):
            f.append((f"buffer_load_dwordx4 v{VD}, s[{SV}:{SV+3}], s{sOFF} offen offset:{1024*n} {kvpol} lds", 4, f"v{G}"))
        return f
    def put(fl):
        for f in fl:
            if callable(f[0]): f[0]()
            else: E(f[0], f[2] if len(f) > 2 else None)
    put(dma_x(0)); put(dma_w(0)); put(dma_x(1)); put(dma_w(1))
    E(f"""
    s_lshl_b32 s{sTMP}, s37, 5
    s_add_u32 s{sTMP}, s{sTMP}, s36
    s_lshl_b32 s82, s{sTMP}, 17
    s_add_u32 s{SK}, s{SK}, s82
    s_addc_u32 s{SK+1}, s{SK+1}, 0
    s_mov_b32 s{SK+2}, {17*131072}
    s_mov_b32 s{SK+3}, 0x20000
    s_add_u32 s{SV}, s{SV}, s82
    s_addc_u32 s{SV+1}, s{SV+1}, 0
    s_mov_b32 s{SV+2}, {17*131072}
    s_mov_b32 s{SV+3}, 0x20000
    s_lshl_b32 s82, s38, 8
    s_add_u32 s{sTMP}, s{sTMP}, s82
    s_lshl_b32 s{sTMP}, s{sTMP}, 15
    s_add_u32 s{sTMP}, s{sTMP}, {O_BASE}
    s_add_u32 s{SO}, s80, s{sTMP}
    s_addc_u32 s{SO+1}, s81, 0
    s_mov_b32 s{SO+2}, {17*32768}
    s_mov_b32 s{SO+3}, 0x20000
    """)
    put(dma_x(2)); put(dma_x(3))
    p0k = opt.get('p0k', {-1: 0, 1: 1, 3: 2})
    p0v = opt.get('p0v', {5: 0, 6: 1})
    if -1 in p0k: put(dma_k(p0k[-1]))
    E(f"""
    v_and_b32 v{t0}, 31, v0
    v_lshrrev_b32 v{t3}, 5, v0
    v_lshlrev_b32 v{t4}, 8, v{t0}
    v_xor_b32 v{t5}, v{t3}, v{t1}
    """)
    for s in range(8):
        E(f"""
        v_xor_b32 v{KA+s}, {2*s}, v{t5}
        v_lshlrev_b32 v{KA+s}, 4, v{KA+s}
        v_add_u32 v{KA+s}, v{KA+s}, v{t4}
        """)
    E(f"""
    v_lshrrev_b32 v{t5}, 1, v{t1}
    v_xor_b32 v{t5}, v{t3}, v{t5}
    v_lshlrev_b32 v{t4}, 7, v{t0}
    s_add_u32 s{sTMP}, s{sW4K}, {VR}
    v_add_u32 v{t4}, s{sTMP}, v{t4}
    """)
    for s in range(4):
        E(f"""
        v_xor_b32 v{XA+s}, {2*s}, v{t5}
        v_lshlrev_b32 v{XA+s}, 4, v{XA+s}
        v_add_u32 v{XA+s}, v{XA+s}, v{t4}
        """)
    E(f"""
    v_lshrrev_b32 v{t0}, 2, v{t1}
    v_and_b32 v{t4}, 1, v0
    v_lshlrev_b32 v{t4}, 4, v{t4}
    v_and_b32 v{t5}, 2, v0
    v_lshlrev_b32 v{t5}, 2, v{t5}
    v_add_u32 v{t4}, v{t4}, v{t5}
    v_and_b32 v{t5}, 16, v0
    v_lshlrev_b32 v{t5}, 1, v{t5}
    v_add_u32 v{t4}, v{t4}, v{t5}
    v_lshlrev_b32 v{t5}, 8, v{t0}
    v_add_u32 v{t4}, v{t4}, v{t5}
    v_lshlrev_b32 v{t3}, 10, v{t3}
    """)
    for t in range(4):
        E(f"""
        v_xor_b32 v{t5}, {t}, v{t0}
        v_lshlrev_b32 v{t5}, 6, v{t5}
        v_add_u32 v{t5}, v{t5}, v{t4}
        v_add_u32 v{t5}, v{t5}, v{t3}
        v_add_u32 v{VA+t}, {VR}, v{t5}
        v_add_u32 v{t5}, v{t5}, v{t3}
        v_add_u32 v{WA+t}, {WR}, v{t5}
        """)
    E(f"""
    v_lshlrev_b32 v{OD}, 4, v0
    s_lshl_b32 s{sTMP}, s35, 13
    v_add_u32 v{OD}, s{sTMP}, v{OD}
    """)

    def rd_x(q):
        slot = (q + 3) % 4
        return [(f"ds_read_b128 a[{X+16*q+4*s}:{X+16*q+4*s+3}], v{XA+s} offset:{slot*16384}", 1) for s in range(4)]
    def rd_w(q, f):
        s, t = f // 4, f % 4
        k, r = WF[f % NWF]
        return [(f"ds_read_b64_tr_b16 {k}[{r+2*jj}:{r+2*jj+1}], v{WA+t} offset:{(q%3)*16384 + (16*s+4*jj)*256}", 1) for jj in range(2)]
    def mf_q(q, f):
        s, t = f // 4, f % 4
        k, r = WF[f % NWF]
        cq = q % 9
        acc = R('v', QACC + 16 * t, 16)
        src = '0' if (cq == 0 and s == 0) else acc
        return f"v_mfma_f32_32x32x16_bf16 {acc}, {k}[{r}:{r+3}], a[{X+16*cq+4*s}:{X+16*cq+4*s+3}], {src}"
    def rd_k(n, s):
        G, hf = n >> 1, n & 1
        return [(f"ds_read_b128 v[{KF+4*s}:{KF+4*s+3}], v{KA+s} offset:{(G%3)*16384 + hf*8192}", 1)]
    def rd_v(n, f, order):
        G, hf = n >> 1, n & 1
        t, s2 = order[f]
        return [(f"ds_read_b64_tr_b16 a[{VF+4*f+2*jj}:{VF+4*f+2*jj+1}], v{VA+t} offset:{(G%3)*16384 + hf*8192 + (16*s2+8*jj)*256}", 1) for jj in range(2)]
    STD = [(f % 4, f // 4) for f in range(8)]
    LAST = [(f // 2, f % 2) for f in range(8)]
    def pv_order(n): return LAST if n == 31 else STD
    def mf_qk(n, s):
        d = R('v', S[n % 2], 16)
        src = d if s else ('0' if n % 16 == 0 else R('v', NEG, 16))
        return f"v_mfma_f32_32x32x16_bf16 {d}, v[{KF+4*s}:{KF+4*s+3}], v[{Q+4*s}:{Q+4*s+3}], {src}"
    def oacc(u, t): return R('a', O1 + 16 * t, 16) if u == 0 else R('v', QACC + 16 * t, 16)
    def mf_pv(n, f):
        t, s2 = pv_order(n)[f]
        d = oacc(n >> 4, t)
        src = '0' if (n % 16 == 0 and s2 == 0) else d
        p = P[n % 2] + 4 * s2
        return f"v_mfma_f32_32x32x16_bf16 {d}, a[{VF+4*f}:{VF+4*f+3}], v[{p}:{p+3}], {src}"
    def cvt_q():
        for i in range(32):
            E(f"v_pk_mul_f32 v[{QACC+2*i}:{QACC+2*i+1}], v[{QACC+2*i}:{QACC+2*i+1}], s[{sSC}:{sSC+1}]")
            if i >= 2: E(f"v_cvt_pk_bf16_f32 v{Q+i-2}, v{QACC+2*i-4}, v{QACC+2*i-3}")
        for i in (30, 31): E(f"v_cvt_pk_bf16_f32 v{Q+i}, v{QACC+2*i}, v{QACC+2*i+1}")
    def max_tree(s, dst, tmp):
        f = [(f"v_max3_f32 v{dst}, v{s}, v{s+1}, v{s+2}", 1), (f"v_max3_f32 v{tmp}, v{s+3}, v{s+4}, v{s+5}", 1)]
        for i in range(6, 16, 4):
            f.append((f"v_max3_f32 v{dst}, v{dst}, v{s+i}, v{s+i+1}", 1))
            if i + 3 < 16: f.append((f"v_max3_f32 v{tmp}, v{tmp}, v{s+i+2}, v{s+i+3}", 1))
        f.append((f"v_max_f32 v{dst}, v{dst}, v{tmp}", 1))
        f.append((f"v_mov_b32 v{tmp}, v{dst}", 1))
        f.append((f"v_permlane32_swap_b32 v{dst}, v{tmp}", 3))
        f.append((f"v_max_f32 v{dst}, v{dst}, v{tmp}", 1))
        return f
    def first_max(n):
        s = S[n % 2]
        f = max_tree(s, LA, LB)
        f.append((f"v_sub_f32 v{NEG}, 0, v{LA}", 1))
        for i in range(1, 16): f.append((f"v_mov_b32 v{NEG+i}, v{NEG}", 1))
        g = [(f"v_sub_f32 v{s+i}, v{s+i}, v{LA}", 1) for i in range(16)]
        return f, g
    rare = {}
    stubs = []
    def softmax_items(n):
        s = S[n % 2]; p = P[n % 2]; L = L1 if n < 16 else L2
        ex = [(f"v_exp_f32 v{T+k%8}, v{s+k}", 2) for k in range(16)]
        ad = []
        for k in range(16):
            acc = LA if k % 2 == 0 else LB
            if k == 0: ad.append(None)
            elif k == 1: ad.append(None)
            elif k < 4: ad.append((f"v_add_f32 v{acc}, v{T+(k-2)%8}, v{T+k%8}", 1))
            else: ad.append((f"v_add_f32 v{acc}, v{acc}, v{T+k%8}", 1))
        cv = [(f"v_cvt_pk_bf16_f32 v{p+e}, v{T+(2*e)%8}, v{T+(2*e+1)%8}", 1) for e in range(8)]
        tail = []
        if n % 16 == 0:
            tail.append((f"v_add_f32 v{L}, v{LA}, v{LB}", 1))
        else:
            key = (n % 2, n >> 4, n % 16 != 15)
            rare[key] = f"K1_RARE_{key[0]}{key[1]}{int(key[2])}"
            tail.append((f"v_add_f32 v{LA}, v{LA}, v{LB}", 1))
            tail.append((f"v_cmp_nge_f32 vcc, s{sTH}, v{LA}", 1))
            def br(n=n, key=key):
                E(f"s_cbranch_vccnz K1_STUB_{n}")
                E.label(f"K1_BACK_{n}")
                stubs.append((n, rare[key]))
            tail.append((br, 1))
            tail.append((f"v_add_f32 v{L}, v{L}, v{LA}", 1))
        return ex, ad, cv, tail
    def softmax_gaps(n, ngaps):
        ex, ad, cv, tail = softmax_items(n)
        gaps = [[] for _ in range(ngaps)]
        ne = ngaps - 2
        extra = 16 - ne
        ge = []
        if extra <= ne:
            for g in range(ne):
                ge += [g] * (2 if g < extra else 1)
        else:
            ge = [k * ne // 16 for k in range(16)]
        assert len(ge) == 16
        for g in range(ngaps):
            for k in range(16):
                if ge[k] == g: gaps[g].append(ex[k])
            for k in range(16):
                if ge[k] + 1 == g and ad[k]: gaps[g].append(ad[k])
            for e in range(8):
                if ge[2 * e + 1] + 1 == g: gaps[g].append(cv[e])
        gaps[ngaps - 2].append(tail[0])
        gaps[ngaps - 1] += tail[1:]
        return gaps
    def epi_items(u, fr, pk):
        t, s2 = fr // 2, fr % 2
        D = XA if fr % 2 == 0 else XD
        f = []
        if u == 0:
            for i in range(8): f.append((f"v_accvgpr_read_b32 v{EP+i}, a{O1+16*t+8*s2+i}", 1))
            src = EP
        else:
            src = QACC + 16 * t + 8 * s2
        if pk:
            for i in range(4): f.append((f"v_pk_mul_f32 v[{src+2*i}:{src+2*i+1}], v[{src+2*i}:{src+2*i+1}], v[{RL}:{RL+1}] op_sel_hi:[1,0]", 1))
        else:
            for i in range(8): f.append((f"v_mul_f32 v{src+i}, v{src+i}, v{RL}", 1))
        for i in range(4): f.append((f"v_cvt_pk_bf16_f32 v{D+i}, v{src+2*i}, v{src+2*i+1}", 1))
        f.append((f"s_mov_b32 s{sTMP}, {u*16*32768 + (fr//4)*4096}", 1))
        f.append((f"buffer_store_dwordx4 v[{D}:{D+3}], v{OD}, s[{SO}:{SO+3}], s{sTMP} offen offset:{(fr%4)*1024} {opol}", 4, "o"))
        return f
    def rl_items(L):
        return [(f"v_mov_b32 v{RL+1}, v{L}", 1), (f"v_mov_b32 v{RL}, v{L}", 1), (f"v_permlane32_swap_b32 v{RL}, v{RL+1}", 3),
                (f"v_add_f32 v{RL}, v{RL}, v{RL+1}", 1), (f"v_rcp_f32 v{RL}, v{RL}", 2)]
    def spread(gaps, items, g0=0, g1=None):
        if g1 is None: g1 = len(gaps)
        n = g1 - g0
        tot = sum(f[1] for f in items); acc = 0
        for f in items:
            g = min(g0 + int((acc + f[1] * 0.5) * n / max(tot, 1)), g1 - 1)
            gaps[g].append(f); acc += f[1]
    def run(mf, gaps):
        for m, g in zip(mf, gaps):
            E(m); put(g)
    def barrier(*tags):
        E.wait_lgkm(0)
        E.wait_tag(*tags)
        E("s_barrier")

    def qchunk(q, extra=(), pre_done=True, nxt=None):
        if not pre_done:
            for f in range(NWF): put(rd_w(q, f))
        mf = [mf_q(q, f) for f in range(16)]
        gaps = [[] for _ in range(16)]
        for f in range(16 - NWF): gaps[f] += rd_w(q, f + NWF)
        spread(gaps, list(extra))
        run(mf, gaps)

    stamp()
    E.wait_tag("x0"); stamp(); put(rd_x(0)); E.wait_lgkm(0); put(dma_x(4))
    for q in range(9):
        barrier(f"w{q}")
        if q == 0: stamp()
        ex = dma_w(q + 2)
        if q in p0k: ex += dma_k(p0k[q])
        if q in p0v: ex += dma_v(p0v[q])
        qchunk(q, ex, pre_done=False)
        if q + 1 < 9:
            E.wait_tag(f"x{q+1}"); put(rd_x(q + 1))
            if q + 5 < 9:
                E.wait_lgkm(0); put(dma_x(q + 5))
    stamp()
    barrier("w9", "k0")
    for s in range(8): put(rd_k(0, s))
    put(dma_w(11))
    cvt_q()
    gaps = [rd_k(1, s) for s in range(8)]
    for f in range(NWF): gaps[f] += rd_w(9, f)
    run([mf_qk(0, s) for s in range(8)], gaps)
    f, g = first_max(0)
    qchunk(9, [("s_nop 0", 8)] + f + g)
    stamp()
    for j in range(33):
        hasqk = j + 1 < 32; haspv = j >= 1; hassm = j < 32
        seq = []
        if j == 16:
            seq = [('pv', f) for f in range(8)] + [('qk', s) for s in range(8)]
        elif hasqk and haspv:
            seq = [('qk', 0)]
            for s in range(1, 8): seq += [('qk', s), ('pv', s - 1)]
            seq += [('pv', 7)]
        elif hasqk: seq = [('qk', s) for s in range(8)]
        else: seq = [('pv', f) for f in range(8)]
        n = len(seq)
        mf = [mf_qk(j + 1, i) if k == 'qk' else mf_pv(j - 1, i) for k, i in seq]
        if j == 16:
            f, g = first_max(16)
            gaps = [[] for _ in range(8)] + softmax_gaps(j, 8)
            spread(gaps, rl_items(L1) + f + g, 0, 8)
        elif hassm: gaps = softmax_gaps(j, n)
        else: gaps = [[] for _ in range(n)]
        bpos = -1
        dm = []
        if j % 2 == 0 and j < 32:
            G = j // 2
            bpos = 2
            tags = [f"k{G+1}", f"v{G}"]
            if G < 8: tags.append(f"w{10+G}")
            gaps[bpos].insert(0, (lambda tags=tags: barrier(*tags), 1))
            if G + 3 < 16: dm += dma_k(G + 3)
            if G + 2 < 16: dm += dma_v(G + 2)
            if 12 + G < 18: dm += dma_w(12 + G)
        for gi, (k, i) in enumerate(seq):
            g = max(gi, bpos)
            if k == 'qk' and j + 2 < 32: gaps[g] += rd_k(j + 2, i)
            if k == 'pv' and j < 32: gaps[g] += rd_v(j, i, pv_order(j))
        if j == 0:
            spread(gaps, [x for f in range(8) for x in rd_v(0, f, STD)], bpos, n)
        isq = j % 2 == 0 and j < 16
        if isq:
            pre = [x for f in range(NWF) for x in rd_w(10 + j // 2, f)]
            spread(gaps, pre, n - 6, n - 1)
        elif dm:
            spread(gaps, dm, bpos + 1, n - 1)
        if 17 <= j < 25:
            spread(gaps, epi_items(0, j - 17, False), 0, n - 1)
        if j == 32:
            put(rl_items(L2))
            for t in range(3):
                spread(gaps, epi_items(1, 2*t, True) + epi_items(1, 2*t+1, True), min(2*t + 4, 7), min(2*t + 6, 8))
        run(mf, gaps)
        if isq:
            qchunk(10 + j // 2, dm)
            if j == 14: cvt_q()
        if j in (15, 31): stamp()
    put(epi_items(1, 6, True)); put(epi_items(1, 7, True))
    if stamps:
        E.wait_vm(0)
        stamp()
        E(f"""
        s_cmp_lg_u32 s35, 0
        s_cbranch_scc1 K1_END
        s_lshl_b32 s{sTMP}, s2, 7
        s_add_u32 s{sTMP}, s{sTMP}, 65536
        s_add_u32 s{SO}, s80, s{sTMP}
        s_addc_u32 s{SO+1}, s81, 0
        s_mov_b32 s{SO+2}, 128
        v_mov_b32 v1, 0
        """)
        for i in range(nst[0]):
            E(f"v_mov_b32 v2, s{sST+2*i}")
            E(f"buffer_store_dword v2, v1, s[{SO}:{SO+3}], 0 offen offset:{4*i}")
            E.wait_vm(0)
    E.label("K1_END")
    E("s_endpgm")
    for n, lab in stubs:
        E.label(f"K1_STUB_{n}")
        E.raw(f"    s_call_b64 s[{sRET}:{sRET+1}], {lab}")
        E.raw(f"    s_branch K1_BACK_{n}")
    for key, lab in rare.items():
        par, u, fix = key
        s = S[par]; sn = S[1 - par]; p = P[par]; L = L1 if u == 0 else L2
        Rr = Emit()
        Rr.label(lab)
        Rr.nop(16)
        for f in max_tree(s, LA, LB): Rr(f[0])
        Rr(f"v_max_f32 v{LA}, 0, v{LA}")
        Rr(f"v_sub_f32 v{LB}, 0, v{LA}")
        Rr(f"v_exp_f32 v{LB}, v{LB}")
        for i in range(16):
            Rr(f"v_sub_f32 v{s+i}, v{s+i}, v{LA}")
            Rr(f"v_sub_f32 v{NEG+i}, v{NEG+i}, v{LA}")
            if fix: Rr(f"v_sub_f32 v{sn+i}, v{sn+i}, v{LA}")
        Rr(f"v_mul_f32 v{L}, v{L}, v{LB}")
        for i in range(64):
            if u == 0:
                Rr(f"v_accvgpr_read_b32 v{T}, a{O1+i}")
                Rr(f"v_mul_f32 v{T}, v{T}, v{LB}")
                Rr(f"v_accvgpr_write_b32 a{O1+i}, v{T}")
            else:
                Rr(f"v_mul_f32 v{QACC+i}, v{QACC+i}, v{LB}")
        Rr(f"v_mov_b32 v{LA}, 0")
        for e in range(8):
            Rr(f"v_exp_f32 v{T}, v{s+2*e}")
            Rr(f"v_exp_f32 v{T+1}, v{s+2*e+1}")
            Rr(f"v_add_f32 v{LA}, v{LA}, v{T}")
            Rr(f"v_add_f32 v{LA}, v{LA}, v{T+1}")
            Rr(f"v_cvt_pk_bf16_f32 v{p+e}, v{T}, v{T+1}")
        Rr.nop(4)
        Rr(f"s_setpc_b64 s[{sRET}:{sRET+1}]")
        E.lines += Rr.lines
    return E, dict(nops=E.nops, waits=E.nwait, count=E.count, vgpr=va.n)
```

```python
from emit import *
from k1 import Alloc, O_BASE

def gen_k2(opt):
    stamps = opt.get('stamps', False)
    RB = 5; CB = 4
    DEPTH = opt.get('depth', 3)
    NS = DEPTH + 1
    wpol = opt.get('wpol', '')
    apol = opt.get('apol', '')
    WIN = opt.get('win', 8)
    E = Emit()
    va = Alloc(1)
    WD = va.get(4); WA = va.get(4); AD = va.get(RB)
    T = va.get(8, 4)
    AF = va.get(NS * RB * 4, 4)
    BF = va.get(2 * CB * 4, 4)
    ACC = 0
    SO, SW, SD = 4, 8, 12
    sWB, sT, sRHO, sA, sB, sN = 16, 17, 18, 19, 20, 21
    sST = 40; nst = [0]
    def stamp():
        if stamps:
            E(f"s_memrealtime s[{sST+2*nst[0]}:{sST+2*nst[0]+1}]")
            E.raw("    s_waitcnt lgkmcnt(0)"); E.lgkm = []
            nst[0] += 1
    E(f"""
    s_and_b32 s24, s2, 7
    s_lshr_b32 s25, s2, 3
    s_and_b32 s26, s24, 3
    s_mul_i32 s26, s26, 30
    s_add_u32 s26, s26, s25
    s_cmp_ge_u32 s25, 30
    s_cbranch_scc1 K2_END
    s_cmp_ge_u32 s26, 117
    s_cbranch_scc1 K2_END
    s_load_dwordx2 s[64:65], s[0:1], 32
    s_load_dwordx2 s[66:67], s[0:1], 72
    s_load_dwordx2 s[68:69], s[0:1], 80
    s_load_dwordx2 s[80:81], s[0:1], 96
    """)
    stamp()
    t0, t1, t2, t3, t4, t5 = [T + i for i in range(6)]
    E(f"""
    v_lshrrev_b32 v{t0}, 6, v0
    v_and_b32 v0, 63, v0
    v_readfirstlane_b32 s35, v{t0}
    s_lshr_b32 s24, s24, 2
    s_mul_i32 s27, s26, 57
    s_lshr_b32 s27, s27, 9
    s_mul_i32 s28, s27, 9
    s_sub_u32 s28, s26, s28
    s_mul_i32 s{sWB}, s35, {NS*4096}
    s_mul_i32 s{sRHO}, s27, {opt.get('rhoT', 3)}
    s_add_u32 s{sRHO}, s{sRHO}, s28
    s_mul_i32 s{sRHO}, s{sRHO}, {opt.get('rot', 1)}
    """)
    E(f"""
    v_lshrrev_b32 v{t0}, 3, v0
    v_mul_u32_u24 v{t0}, 1152, v{t0}
    v_and_b32 v{t1}, 7, v0
    v_lshlrev_b32 v{t1}, 4, v{t1}
    v_and_b32 v{t2}, 16, v0
    v_lshlrev_b32 v{t2}, 1, v{t2}
    v_xor_b32 v{t1}, v{t1}, v{t2}
    v_xor_b32 v{t2}, 64, v{t1}
    v_add_u32 v{WD}, v{t0}, v{t1}
    v_add_u32 v{WD+1}, v{t0}, v{t2}
    v_add_u32 v{WD+2}, {16*1152-2048}, v{WD}
    v_add_u32 v{WD+3}, {24*1152-3072}, v{WD+1}
    v_add_u32 v{WD+1}, {8*1152-1024}, v{WD+1}
    """)
    E(f"""
    v_lshrrev_b32 v{t0}, 4, v0
    v_lshlrev_b32 v{t0}, 9, v{t0}
    v_and_b32 v{t1}, 15, v0
    v_lshlrev_b32 v{t2}, 4, v{t1}
    v_add_u32 v{t0}, v{t0}, v{t2}
    s_mul_i32 s29, s27, {RB}
    """)
    for i in range(RB):
        E(f"""
        s_add_u32 s30, s29, {i}
        s_min_u32 s30, s30, 63
        s_lshr_b32 s31, s30, 3
        s_lshl_b32 s31, s31, 20
        s_bfe_u32 s32, s30, 0x20001
        s_lshl_b32 s32, s32, 13
        s_add_u32 s31, s31, s32
        s_and_b32 s32, s30, 1
        s_lshl_b32 s32, s32, 8
        s_add_u32 s31, s31, s32
        v_add_u32 v{AD+i}, s31, v{t0}
        """)
    E.raw("    s_waitcnt lgkmcnt(0)")
    E(f"""
    s_cmp_eq_u32 s24, 0
    s_cselect_b32 s{SW}, s64, s66
    s_cselect_b32 s{SW+1}, s65, s67
    s_lshl_b32 s30, s28, 7
    s_add_u32 s{SW}, s{SW}, s30
    s_addc_u32 s{SW+1}, s{SW+1}, 0
    s_sub_u32 s{SW+2}, {4096*1152}, s30
    s_mov_b32 s{SW+3}, 0x20000
    s_lshl_b32 s30, s24, 23
    s_add_u32 s30, s30, {O_BASE}
    s_add_u32 s{SO}, s80, s30
    s_addc_u32 s{SO+1}, s81, 0
    s_mov_b32 s{SO+2}, {1<<23}
    s_mov_b32 s{SO+3}, 0x20000
    """)
    NK = 32
    def loads(n):
        f = []
        def setup():
            E(f"""
            s_add_u32 s{sN}, s{sRHO}, {n % WIN}
            s_and_b32 s{sN}, s{sN}, {WIN-1}
            s_add_u32 s{sN}, s{sN}, s36
            s_add_u32 s{sN}, s{sN}, {(n // WIN) * 4 * WIN}
            s_mul_i32 s{sB}, s{sN}, {32*1152}
            s_lshr_b32 s{sA}, s{sN}, 2
            s_lshl_b32 s{sA}, s{sA}, 15
            s_and_b32 s{sN}, s{sN}, 3
            s_lshl_b32 s{sN}, s{sN}, 11
            s_add_u32 s{sA}, s{sA}, s{sN}
            s_add_u32 m0, s{sWB}, {(n % NS) * 4096}
            """)
        f.append((setup, 4))
        for i in range(max(RB, 4)):
            if i < 4: f.append((f"buffer_load_dwordx4 v{WD+i}, s[{SW}:{SW+3}], s{sB} offen offset:{1024*i} {wpol} lds", 2, f"w{n}"))
            if i < RB:
                r = AF + ((n % NS) * RB + i) * 4
                f.append((f"buffer_load_dwordx4 v[{r}:{r+3}], v{AD+i}, s[{SO}:{SO+3}], s{sA} offen {apol}", 2, f"a{n}"))
        return f
    def put(fl):
        for f in fl:
            if callable(f[0]): f[0]()
            else: E(f[0], f[2] if len(f) > 2 else None)
    E(f"s_mul_i32 s36, s35, {WIN}")
    for n in range(DEPTH): put(loads(n))
    E(f"""
    v_lshrrev_b32 v{t0}, 4, v0
    v_lshlrev_b32 v{t2}, 10, v{t0}
    v_lshrrev_b32 v{t3}, 2, v{t1}
    v_lshlrev_b32 v{t3}, 7, v{t3}
    v_add_u32 v{t2}, v{t2}, v{t3}
    v_and_b32 v{t3}, 3, v0
    v_lshlrev_b32 v{t3}, 3, v{t3}
    v_add_u32 v{t2}, v{t2}, v{t3}
    v_add_u32 v{t2}, s{sWB}, v{t2}
    v_lshrrev_b32 v{t3}, 3, v0
    v_and_b32 v{t3}, 3, v{t3}
    """)
    for cbk in range(CB):
        E(f"""
        v_xor_b32 v{t4}, {cbk}, v{t3}
        v_lshlrev_b32 v{t4}, 5, v{t4}
        v_add_u32 v{WA+cbk}, v{t4}, v{t2}
        """)
    def rd_b(n):
        f = []
        for cbk in range(CB):
            r = BF + ((n % 2) * CB + cbk) * 4
            for jj in range(2):
                f.append((f"ds_read_b64_tr_b16 v[{r+2*jj}:{r+2*jj+1}], v{WA+cbk} offset:{(n % NS)*4096 + jj*512}", 1))
        return f
    E.wait_tag("w0"); put(rd_b(0))
    stamp()
    for n in range(NK):
        mf = []
        for i in range(RB):
            for cbk in range(CB):
                a = R('a', ACC + (i * CB + cbk) * 4, 4)
                rb = BF + ((n % 2) * CB + cbk) * 4
                ra = AF + ((n % NS) * RB + i) * 4
                mf.append(f"v_mfma_f32_16x16x32_bf16 {a}, v[{rb}:{rb+3}], v[{ra}:{ra+3}], {'0' if n == 0 else a}")
        fill = []
        if n + DEPTH < NK: fill += loads(n + DEPTH)
        if n + 1 < NK:
            fill.append((lambda n=n: E.wait_tag(f"w{n+1}"), 1))
            fill += rd_b(n + 1)
        E.wait_tag(f"a{n}")
        interleave(E, mf, fill)
    stamp()
    E("s_barrier")
    E(f"""
    v_lshlrev_b32 v{t0}, 4, v0
    s_mul_i32 s30, s35, {RB*CB*1024}
    v_add_u32 v{t0}, s30, v{t0}
    """)
    for k in range(RB * CB):
        E(f"ds_write_b128 v{t0}, a[{ACC+4*k}:{ACC+4*k+3}] offset:{k*1024}")
    E(f"""
    v_and_b32 v{t1}, 7, v0
    v_lshlrev_b32 v{t2}, 9, v{t1}
    v_lshrrev_b32 v{t3}, 3, v0
    v_lshlrev_b32 v{t4}, 4, v{t3}
    v_add_u32 v{t2}, v{t2}, v{t4}
    s_lshr_b32 s30, s35, 1
    s_lshl_b32 s30, s30, 12
    s_and_b32 s31, s35, 1
    s_lshl_b32 s31, s31, 7
    s_add_u32 s30, s30, s31
    v_add_u32 v{t2}, s30, v{t2}
    s_lshl_b32 s30, s35, 3
    v_add_u32 v{t3}, s30, v{t3}
    v_mul_u32_u24 v{t3}, 2304, v{t3}
    v_lshlrev_b32 v{t1}, 4, v{t1}
    v_add_u32 v{t3}, v{t3}, v{t1}
    s_mul_i32 s30, s27, {80*2304}
    s_mul_i32 s31, s24, 1152
    s_add_u32 s30, s30, s31
    s_lshl_b32 s31, s28, 7
    s_add_u32 s30, s30, s31
    s_add_u32 s{SD}, s68, s30
    s_addc_u32 s{SD+1}, s69, 0
    s_sub_u32 s{SD+2}, {1024*2304}, s30
    s_mov_b32 s{SD+3}, 0x20000
    v_add_u32 v{t4}, {2*RB*CB*1024}, v{t2}
    """)
    E.wait_lgkm(0)
    E("s_barrier")
    for rnd in range(3):
        if rnd == 2:
            E("s_cmp_ge_u32 s35, 2")
            E("s_cbranch_scc1 K2_FIN")
        base = AF + 32 * (rnd % 2)
        for w in range(4):
            for g in range(2):
                r = base + (w * 2 + g) * 4
                E(f"ds_read_b128 v[{r}:{r+3}], v{t2 if w < 2 else t4} offset:{(w%2)*RB*CB*1024 + rnd*8192 + g*256}")
        for i in range(8):
            E(f"v_add_f32 v{base+i}, v{base+i}, v{base+8+i}")
            E(f"v_add_f32 v{base+16+i}, v{base+16+i}, v{base+24+i}")
        for i in range(8):
            E(f"v_add_f32 v{base+i}, v{base+i}, v{base+16+i}")
        for i in range(4):
            E(f"v_cvt_pk_bf16_f32 v{base+8+i}, v{base+2*i}, v{base+2*i+1}")
        E(f"s_mov_b32 s30, {rnd*32*2304}")
        E(f"buffer_store_dwordx4 v[{base+8}:{base+11}], v{t3}, s[{SD}:{SD+3}], s30 offen")
    E.label("K2_FIN")
    if stamps:
        E.wait_vm(0, force=True)
        stamp()
        E(f"""
        s_cmp_lg_u32 s35, 0
        s_cbranch_scc1 K2_END
        s_lshl_b32 s30, s2, 7
        s_add_u32 s30, s30, {65536*2}
        s_add_u32 s{SO}, s80, s30
        s_addc_u32 s{SO+1}, s81, 0
        s_mov_b32 s{SO+2}, 128
        v_mov_b32 v1, 0
        """)
        for i in range(nst[0]):
            E(f"v_mov_b32 v2, s{sST+2*i}")
            E(f"buffer_store_dword v2, v1, s[{SO}:{SO+3}], 0 offen offset:{4*i}")
            E.wait_vm(0)
    E.label("K2_END")
    E("s_endpgm")
    lds = max(4 * NS * 4096, 4 * RB * CB * 1024)
    acc_off = (va.n + 3) // 4 * 4
    return E, dict(nops=E.nops, waits=E.nwait, count=E.count, vgpr=va.n, accum=acc_off, total=acc_off + RB * CB * 4, lds=lds)
```

```python
import sys, json
from asmlib import *
import k1, k2
HDR = open('concat_heads__mha_block_cached__mha_block_cached__near_ridge.s.ref').read().split('; Override launch')[0]
def build(out, o1={}, o2={}):
    E1, i1 = k1.gen_k1(o1)
    E2, i2 = k2.gen_k2(o2)
    print(out, i1, i2)
    s = wrap_list([
        dict(name=NAME, body=E1.text(), grid=256, block=256, lds=163840, vgpr=512, accum=256),
        dict(name="oproj_kernel", body=E2.text(), grid=240, block=256, lds=o2.get('lds', max(i2['lds'], 98304)), vgpr=i2['total'], accum=i2['accum']),
    ], header=HDR)
    open(out, 'w').write(s)
if __name__ == '__main__':
    build('d1.s')
    build('d1_st.s', dict(stamps=True), dict(stamps=True))
```

```python
from gen import *
E1, i1 = k1.gen_k1({})
E2, i2 = k2.gen_k2({})
A = dict(name=NAME, body=E1.text(), grid=256, block=256, lds=163840, vgpr=512, accum=256)
B = dict(name="oproj_kernel", body=E2.text(), grid=240, block=256, lds=98304, vgpr=i2['total'], accum=i2['accum'])
Z = dict(name="nop_kernel", body="    s_endpgm\n", grid=1, block=64, lds=0, vgpr=8, accum=8)
open('x_a.s','w').write(wrap_list([A,B], header=HDR))
open('x_b.s','w').write(wrap_list([A,B,Z], header=HDR))
open('x_c.s','w').write(wrap_list([A,B,Z,Z,Z], header=HDR))
open('x_d.s','w').write(wrap_list([A,B,B], header=HDR))
open('x_e.s','w').write(wrap_list([A,A,B], header=HDR))
```

```python
from emit import *
import math, struct

def f32bits(x):
    return struct.unpack('<I', struct.pack('<f', x))[0]

O_BASE = 1 << 20
SL = 16384

class Alloc:
    def __init__(self, start): self.n = start
    def get(self, k=1, al=1):
        self.n = (self.n + al - 1) // al * al
        r = self.n; self.n += k; return r

PLAN_A = dict(
    init=['x0', 'w0', 'x1', 'w1'],
    xslot=[4, 5, 4, 5, 4, 5, 4, 5, 4],
    chunk={0: ['w2', 'x2', 'k0'], 1: ['w3', 'x3', 'k1'], 2: ['w4', 'x4', 'k2'], 3: ['w5', 'x5', 'k3'], 4: ['w6', 'x6', 'v0'],
           5: ['w7', 'x7'], 6: ['w8', 'x8'], 7: ['w9', 'v1'], 8: ['w10', 'v2']},
)

def gen(opt):
    stamps = opt.get('stamps', False)
    kvpol = opt.get('kvpol', 'nt')
    qpol = opt.get('qpol', '')
    thresh = opt.get('thresh', 4096.0)
    plans = opt.get('plans', [PLAN_A])
    J0 = opt.get('j0', 21)
    WIN = opt.get('win', 8)
    fused = opt.get('fused', True)
    RB, CB = 5, 4
    E = Emit()
    va = Alloc(1)
    KA = va.get(8); VA = va.get(4); WA = va.get(4); KD = va.get(4); VD = va.get(1); WD = va.get(4); OD = 0
    RL = va.get(2, 2)
    L1 = va.get(1); L2 = va.get(1); LA = va.get(1); LB = va.get(1)
    XA = va.get(4, 4); XD = va.get(4, 4)
    S = [va.get(16, 4), va.get(16, 4)]
    NEG = va.get(16, 4)
    P = [va.get(8, 4), va.get(8, 4)]
    T = va.get(8, 4)
    WFV = va.get(8, 4)
    EP = va.get(8, 4)
    QACC = va.get(64, 4)
    Q = va.get(32, 4)
    KF = va.get(32, 4)
    assert va.n <= 256, va.n
    X = 0; O1 = 144; VF = 208; WFA = 240
    WF = [('a', WFA + 4 * i) for i in range(4)] + [('v', WFV), ('v', WFV + 4), ('v', EP), ('v', EP + 4)]
    NWF = len(WF)
    ACC = 0
    ASET = [80, 100, 120, 144]
    BSET = [WFA, VF]
    AD = WFV; PV_ = WFV + 5; PD = WFV + 6; TM = WFV + 7
    SX, SW, SK, SV, SO = 4, 8, 12, 16, 20
    SWO, SOR, SFL, SPL = SX, SW, 64, 68
    SD = SK
    sW4K, sXC, sWC, sOFF, sTH, sRET, sSC, sTMP = 24, 25, 26, 27, 28, 30, 32, 34
    sRHO, sA, sB, sN, sT, sCB, sLIVE, sCNT = 92, 93, 94, 95, 96, 97, 98, 99
    sST = 40
    nst = [0]
    STR = list(range(40, 64)) + list(range(72, 80))
    stn = []
    def stamp(name='', lvl=1):
        if stamps and (lvl <= stamps or name in opt.get('stl', ())):
            E(f"s_memrealtime s[100:101]")
            E.raw("    s_waitcnt lgkmcnt(0)"); E.lgkm = []
            E(f"s_mov_b32 s{STR[nst[0]]}, s100")
            nst[0] += 1; stn.append(name)
    c = math.log2(math.e) / math.sqrt(128.0)

    kslot = lambda G: G % 4
    vslot = lambda G: [7, 5, 4, 6][G % 4]
    wslot = lambda q: [8, 9, 6][q % 3] if q < 9 else 8 + (q - 9) % 2
    st = dict(epoch=0, content={}, lastread={}, nread={}, visible=set(), issued=set())
    NREADS = {'x': 4, 'w': 32, 'k': 16, 'v': 32, 'u': 8}
    def on_issue(item, slot):
        p = st['content'].get(slot)
        if p is not None:
            assert st['nread'].get(p, 0) == NREADS[p[0]], (item, p, st['nread'].get(p, 0))
            if p[0] in 'xu':
                E.wait_lgkm(len(E.lgkm) - 1 - max([i for i, d in enumerate(E.lgkm) if ('tag', p) in d], default=-1))
            else:
                assert st['epoch'] > st['lastread'][p], (item, p)
        st['content'][slot] = item; st['issued'].add(item)
    def on_read(item, slot):
        assert st['content'].get(slot) == item, (item, slot, st['content'].get(slot))
        if item[0] in 'xu':
            E.wait_tag(item)
        else:
            assert item in st['visible'], item
        st['nread'][item] = st['nread'].get(item, 0) + 1
        st['lastread'][item] = st['epoch']
    def lds_read(text, item, slot):
        def f():
            on_read(item, slot)
            E(text)
            E.lgkm[-1].add(('tag', item))
        return (f, 1)
    def barrier(*tags):
        E.wait_lgkm(0)
        E.wait_tag(*tags)
        E("s_barrier")
        st['epoch'] += 1
        pend = {t for t, d in E.vm}
        for it in st['issued']:
            if it not in pend: st['visible'].add(it)
    def put(fl):
        for f in fl:
            if callable(f[0]): f[0]()
            else: E(f[0], f[2] if len(f) > 2 else None)

    E(f"""
    s_cmp_ge_u32 s2, 256
    s_cbranch_scc1 K1_END
    s_load_dwordx8 s[64:71], s[0:1], 0
    s_load_dwordx8 s[72:79], s[0:1], 40
    s_load_dwordx2 s[80:81], s[0:1], 96
    s_load_dwordx2 s[84:85], s[0:1], 32
    s_load_dwordx2 s[86:87], s[0:1], 72
    s_load_dwordx4 s[88:91], s[0:1], 80
    """)
    stamp('start')
    E(f"""
    v_lshrrev_b32 v{T}, 6, v0
    v_and_b32 v0, 63, v0
    v_readfirstlane_b32 s35, v{T}
    s_and_b32 s36, s2, 7
    s_lshr_b32 s37, s2, 3
    s_lshr_b32 s38, s36, 2
    s_and_b32 s36, s36, 3
    s_lshl_b32 s36, s36, 2
    s_and_b32 s39, s37, 3
    s_add_u32 s36, s36, s39
    s_lshr_b32 s37, s37, 2
    s_lshl_b32 s{sW4K}, s35, 12
    s_lshl_b32 s39, s39, 1
    s_add_u32 s39, s39, s37
    s_cmp_ge_u32 s39, 9
    s_cselect_b32 s{sTMP}, 9, 0
    s_sub_u32 s39, s39, s{sTMP}
    s_mul_i32 s39, s39, {opt.get('rot', 1)}
    s_lshl_b32 s{sXC}, s39, 7
    s_lshl_b32 s{sWC}, s39, 19
    """)
    t0, t1, t2, t3, t4, t5 = T, T + 1, T + 2, T + 3, T + 4, T + 5
    E(f"""
    v_lshrrev_b32 v{t0}, 3, v0
    s_lshl_b32 s{sTMP}, s35, 5
    v_add_u32 v{t0}, s{sTMP}, v{t0}
    v_mul_u32_u24 v{t0}, 1152, v{t0}
    v_and_b32 v{t1}, 7, v0
    v_lshrrev_b32 v{t2}, 4, v0
    v_xor_b32 v{t3}, v{t1}, v{t2}
    v_xor_b32 v{t4}, 4, v{t3}
    v_lshlrev_b32 v{t3}, 4, v{t3}
    v_lshlrev_b32 v{t4}, 4, v{t4}
    v_add_u32 v{XD}, v{t0}, v{t3}
    v_add_u32 v{XD+1}, v{t0}, v{t4}
    v_add_u32 v{XD+2}, {16*1152-2048}, v{XD}
    v_add_u32 v{XD+3}, {24*1152-3072}, v{XD+1}
    v_add_u32 v{XD+1}, {8*1152-1024}, v{XD+1}
    v_and_b32 v{t1}, 15, v0
    v_lshlrev_b32 v{t3}, 2, v{t2}
    v_xor_b32 v{t3}, v{t1}, v{t3}
    v_lshlrev_b32 v{t3}, 4, v{t3}
    s_lshl_b32 s{sTMP}, s35, 4
    v_add_u32 v{t0}, s{sTMP}, v{t2}
    v_lshlrev_b32 v{t4}, 13, v{t0}
    v_add_u32 v{WD}, v{t4}, v{t3}
    v_add_u32 v{WD+1}, {4*8192-1024}, v{WD}
    v_add_u32 v{WD+2}, {8*8192-2048}, v{WD}
    v_add_u32 v{WD+3}, {12*8192-3072}, v{WD}
    v_lshlrev_b32 v{t4}, 8, v{t0}
    v_add_u32 v{VD}, v{t4}, v{t3}
    """)
    for n in range(4):
        E(f"""
        v_add_u32 v{t3}, {4*n}, v{t2}
        v_xor_b32 v{t3}, v{t1}, v{t3}
        v_lshlrev_b32 v{t3}, 4, v{t3}
        v_add_u32 v{KD+n}, v{t4}, v{t3}
        """)
    E.raw("    s_waitcnt lgkmcnt(0)")
    E(f"""
    s_cmp_eq_u32 s38, 0
    s_cselect_b32 s{SX}, s64, s72
    s_cselect_b32 s{SX+1}, s65, s73
    s_cselect_b32 s{SK}, s66, s74
    s_cselect_b32 s{SK+1}, s67, s75
    s_cselect_b32 s{SV}, s68, s76
    s_cselect_b32 s{SV+1}, s69, s77
    s_cselect_b32 s{SW}, s70, s78
    s_cselect_b32 s{SW+1}, s71, s79
    s_mul_i32 s{sTMP}, s37, 147456
    s_add_u32 s{SX}, s{SX}, s{sTMP}
    s_addc_u32 s{SX+1}, s{SX+1}, 0
    s_mov_b32 s{SX+2}, 147456
    s_mov_b32 s{SX+3}, 0x20000
    s_lshl_b32 s{sTMP}, s36, 8
    s_add_u32 s{SW}, s{SW}, s{sTMP}
    s_addc_u32 s{SW+1}, s{SW+1}, 0
    s_sub_u32 s{SW+2}, {576*8192}, s{sTMP}
    s_mov_b32 s{SW+3}, 0x20000
    s_lshl_b32 s{sTMP}, s37, 5
    s_add_u32 s{sTMP}, s{sTMP}, s36
    s_lshl_b32 s82, s{sTMP}, 17
    s_add_u32 s{SK}, s{SK}, s82
    s_addc_u32 s{SK+1}, s{SK+1}, 0
    s_mov_b32 s{SK+2}, {17*131072}
    s_mov_b32 s{SK+3}, 0x20000
    s_add_u32 s{SV}, s{SV}, s82
    s_addc_u32 s{SV+1}, s{SV+1}, 0
    s_mov_b32 s{SV+2}, {17*131072}
    s_mov_b32 s{SV+3}, 0x20000
    """)
    def adv(s, step, lim):
        E(f"""
        s_add_u32 s{s}, s{s}, {step}
        s_cmp_eq_u32 s{s}, {lim}
        s_cselect_b32 s{s}, 0, s{s}
        """)
    cur = dict(plan=None)
    def dma(item):
        k, i = item[0], int(item[1:])
        slot = {'x': lambda: cur['plan']['xslot'][i], 'w': lambda: wslot(i), 'k': lambda: kslot(i), 'v': lambda: vslot(i)}[k]()
        def first():
            on_issue(item, slot)
            E(f"s_add_u32 m0, s{sW4K}, {slot*SL}")
        f = [(first, 1)]
        if k == 'x':
            for n in range(4):
                f.append((f"buffer_load_dwordx4 v{XD+n}, s[{SX}:{SX+3}], s{sXC} offen offset:{1024*n} {qpol} lds", 4, item))
            f.append((lambda: adv(sXC, 128, 1152), 3))
        elif k == 'w':
            f.append((f"s_add_u32 s{sOFF}, s{sWC}, {(i//9)*4096}", 1))
            for n in range(4):
                f.append((f"buffer_load_dwordx4 v{WD+n}, s[{SW}:{SW+3}], s{sOFF} offen offset:{1024*n} {qpol} lds", 4, item))
            f.append((lambda: adv(sWC, 1 << 19, 9 << 19), 3))
        else:
            f.append((f"s_mov_b32 s{sOFF}, {(i>>3)*16*131072 + (i&7)*16384}", 1))
            for n in range(4):
                if k == 'k': f.append((f"buffer_load_dwordx4 v{KD+n}, s[{SK}:{SK+3}], s{sOFF} offen offset:{1024*n} {kvpol} lds", 4, item))
                else: f.append((f"buffer_load_dwordx4 v{VD}, s[{SV}:{SV+3}], s{sOFF} offen offset:{1024*n} {kvpol} lds", 4, item))
        return f
    XB, VB, WB = 2 * SL, 4 * SL, 6 * SL
    def setup_rest():
        E(f"""
        s_mov_b32 s{sTH}, {hex(f32bits(thresh))}
        s_mov_b32 s{sSC}, {hex(f32bits(c))}
        s_mov_b32 s{sSC+1}, {hex(f32bits(c))}
        s_lshl_b32 s{sTMP}, s37, 5
        s_add_u32 s{sTMP}, s{sTMP}, s36
        s_lshl_b32 s82, s38, 8
        s_add_u32 s{sTMP}, s{sTMP}, s82
        s_lshl_b32 s{sTMP}, s{sTMP}, 15
        s_add_u32 s{sTMP}, s{sTMP}, {O_BASE}
        s_add_u32 s{SO}, s80, s{sTMP}
        s_addc_u32 s{SO+1}, s81, 0
        s_mov_b32 s{SO+2}, {17*32768}
        s_mov_b32 s{SO+3}, 0x20000
        v_and_b32 v{t0}, 31, v0
        v_lshrrev_b32 v{t3}, 5, v0
        v_lshlrev_b32 v{t4}, 8, v{t0}
        v_xor_b32 v{t5}, v{t3}, v{t1}
        """)
        for s in range(8):
            E(f"""
            v_xor_b32 v{KA+s}, {2*s}, v{t5}
            v_lshlrev_b32 v{KA+s}, 4, v{KA+s}
            v_add_u32 v{KA+s}, v{KA+s}, v{t4}
            """)
        E(f"""
        v_lshrrev_b32 v{t5}, 1, v{t1}
        v_xor_b32 v{t5}, v{t3}, v{t5}
        v_lshlrev_b32 v{t4}, 7, v{t0}
        s_add_u32 s{sTMP}, s{sW4K}, {XB}
        v_add_u32 v{t4}, s{sTMP}, v{t4}
        """)
        for s in range(4):
            E(f"""
            v_xor_b32 v{XA+s}, {2*s}, v{t5}
            v_lshlrev_b32 v{XA+s}, 4, v{XA+s}
            v_add_u32 v{XA+s}, v{XA+s}, v{t4}
            """)
        E(f"""
        v_lshrrev_b32 v{t0}, 2, v{t1}
        v_and_b32 v{t4}, 1, v0
        v_lshlrev_b32 v{t4}, 4, v{t4}
        v_and_b32 v{t5}, 2, v0
        v_lshlrev_b32 v{t5}, 2, v{t5}
        v_add_u32 v{t4}, v{t4}, v{t5}
        v_and_b32 v{t5}, 16, v0
        v_lshlrev_b32 v{t5}, 1, v{t5}
        v_add_u32 v{t4}, v{t4}, v{t5}
        v_lshlrev_b32 v{t5}, 8, v{t0}
        v_add_u32 v{t4}, v{t4}, v{t5}
        v_lshlrev_b32 v{t3}, 10, v{t3}
        """)
        for t in range(4):
            E(f"""
            v_xor_b32 v{t5}, {t}, v{t0}
            v_lshlrev_b32 v{t5}, 6, v{t5}
            v_add_u32 v{t5}, v{t5}, v{t4}
            v_add_u32 v{t5}, v{t5}, v{t3}
            v_add_u32 v{VA+t}, {VB}, v{t5}
            v_add_u32 v{t5}, v{t5}, v{t3}
            v_add_u32 v{WA+t}, {WB}, v{t5}
            """)
        E(f"""
        v_lshlrev_b32 v{OD}, 4, v0
        s_lshl_b32 s{sTMP}, s35, 13
        v_add_u32 v{OD}, s{sTMP}, v{OD}
        """)

    def rd_x(q):
        slot = cur['plan']['xslot'][q]
        off = slot * SL - XB; assert 0 <= off < 65536 - 4096
        return [lds_read(f"ds_read_b128 a[{X+16*q+4*s}:{X+16*q+4*s+3}], v{XA+s} offset:{off}", f"x{q}", slot) for s in range(4)]
    def rd_w(q, f):
        s, t = f // 4, f % 4
        k, r = WF[f % NWF]
        return [lds_read(f"ds_read_b64_tr_b16 {k}[{r+2*jj}:{r+2*jj+1}], v{WA+t} offset:{wslot(q)*SL - WB + (16*s+4*jj)*256}", f"w{q}", wslot(q)) for jj in range(2)]
    def mf_q(q, f):
        s, t = f // 4, f % 4
        k, r = WF[f % NWF]
        cq = q % 9
        acc = R('v', QACC + 16 * t, 16)
        src = '0' if (cq == 0 and s == 0) else acc
        return f"v_mfma_f32_32x32x16_bf16 {acc}, {k}[{r}:{r+3}], a[{X+16*cq+4*s}:{X+16*cq+4*s+3}], {src}"
    def rd_k(n, s):
        G, hf = n >> 1, n & 1
        return [lds_read(f"ds_read_b128 v[{KF+4*s}:{KF+4*s+3}], v{KA+s} offset:{kslot(G)*SL + hf*8192}", f"k{G}", kslot(G))]
    def rd_v(n, f, order):
        G, hf = n >> 1, n & 1
        t, s2 = order[f]
        return [lds_read(f"ds_read_b64_tr_b16 a[{VF+4*f+2*jj}:{VF+4*f+2*jj+1}], v{VA+t} offset:{vslot(G)*SL - VB + hf*8192 + (16*s2+8*jj)*256}", f"v{G}", vslot(G)) for jj in range(2)]
    STD = [(f % 4, f // 4) for f in range(8)]
    LAST = [(f // 2, f % 2) for f in range(8)]
    def pv_order(n): return LAST if n % 16 == 15 else STD
    def mf_qk(n, s):
        d = R('v', S[n % 2], 16)
        src = d if s else ('0' if n % 16 == 0 else R('v', NEG, 16))
        return f"v_mfma_f32_32x32x16_bf16 {d}, v[{KF+4*s}:{KF+4*s+3}], v[{Q+4*s}:{Q+4*s+3}], {src}"
    def oacc(u, t): return R('a', O1 + 16 * t, 16) if u == 0 else R('v', QACC + 16 * t, 16)
    def mf_pv(n, f):
        t, s2 = pv_order(n)[f]
        d = oacc(n >> 4, t)
        src = '0' if (n % 16 == 0 and s2 == 0) else d
        p = P[n % 2] + 4 * s2
        return f"v_mfma_f32_32x32x16_bf16 {d}, a[{VF+4*f}:{VF+4*f+3}], v[{p}:{p+3}], {src}"
    def cvt_q():
        for i in range(32):
            E(f"v_pk_mul_f32 v[{QACC+2*i}:{QACC+2*i+1}], v[{QACC+2*i}:{QACC+2*i+1}], s[{sSC}:{sSC+1}]")
            if i >= 2: E(f"v_cvt_pk_bf16_f32 v{Q+i-2}, v{QACC+2*i-4}, v{QACC+2*i-3}")
        for i in (30, 31): E(f"v_cvt_pk_bf16_f32 v{Q+i}, v{QACC+2*i}, v{QACC+2*i+1}")
    def max_tree(s, dst, tmp):
        f = [(f"v_max3_f32 v{dst}, v{s}, v{s+1}, v{s+2}", 1), (f"v_max3_f32 v{tmp}, v{s+3}, v{s+4}, v{s+5}", 1)]
        for i in range(6, 16, 4):
            f.append((f"v_max3_f32 v{dst}, v{dst}, v{s+i}, v{s+i+1}", 1))
            if i + 3 < 16: f.append((f"v_max3_f32 v{tmp}, v{tmp}, v{s+i+2}, v{s+i+3}", 1))
        f.append((f"v_max_f32 v{dst}, v{dst}, v{tmp}", 1))
        f.append((f"v_mov_b32 v{tmp}, v{dst}", 1))
        f.append((f"v_permlane32_swap_b32 v{dst}, v{tmp}", 3))
        f.append((f"v_max_f32 v{dst}, v{dst}, v{tmp}", 1))
        return f
    def first_max(n):
        s = S[n % 2]
        f = max_tree(s, LA, LB)
        f.append((f"v_sub_f32 v{NEG}, 0, v{LA}", 1))
        for i in range(1, 16): f.append((f"v_mov_b32 v{NEG+i}, v{NEG}", 1))
        g = [(f"v_sub_f32 v{s+i}, v{s+i}, v{LA}", 1) for i in range(16)]
        return f, g
    rare = {}
    stubs = []
    def softmax_items(n):
        s = S[n % 2]; p = P[n % 2]; L = L1 if n < 16 else L2
        ex = [(f"v_exp_f32 v{T+k%8}, v{s+k}", 2) for k in range(16)]
        ad = []
        for k in range(16):
            acc = LA if k % 2 == 0 else LB
            if k < 2: ad.append(None)
            elif k < 4: ad.append((f"v_add_f32 v{acc}, v{T+(k-2)%8}, v{T+k%8}", 1))
            else: ad.append((f"v_add_f32 v{acc}, v{acc}, v{T+k%8}", 1))
        cv = [(f"v_cvt_pk_bf16_f32 v{p+e}, v{T+(2*e)%8}, v{T+(2*e+1)%8}", 1) for e in range(8)]
        tail = []
        if n % 16 == 0:
            tail.append((f"v_add_f32 v{L}, v{LA}, v{LB}", 1))
        else:
            key = (n % 2, n >> 4, n % 16 != 15)
            rare[key] = f"K1_RARE_{key[0]}{key[1]}{int(key[2])}"
            tail.append((f"v_add_f32 v{LA}, v{LA}, v{LB}", 1))
            tail.append((f"v_cmp_nge_f32 vcc, s{sTH}, v{LA}", 1))
            def br(n=n, key=key):
                E(f"s_cbranch_vccnz K1_STUB_{n}")
                E.label(f"K1_BACK_{n}")
                stubs.append((n, rare[key]))
            tail.append((br, 1))
            tail.append((f"v_add_f32 v{L}, v{L}, v{LA}", 1))
        return ex, ad, cv, tail
    def softmax_gaps(n, ngaps):
        ex, ad, cv, tail = softmax_items(n)
        gaps = [[] for _ in range(ngaps)]
        ne = ngaps - 2
        extra = 16 - ne
        ge = []
        if extra <= ne:
            for g in range(ne): ge += [g] * (2 if g < extra else 1)
        else:
            ge = [k * ne // 16 for k in range(16)]
        for g in range(ngaps):
            for k in range(16):
                if ge[k] == g: gaps[g].append(ex[k])
            for k in range(16):
                if ge[k] + 1 == g and ad[k]: gaps[g].append(ad[k])
            for e in range(8):
                if ge[2 * e + 1] + 1 == g: gaps[g].append(cv[e])
        gaps[ngaps - 2].append(tail[0])
        gaps[ngaps - 1] += tail[1:]
        return gaps
    opol = opt.get('opol', 'sc1')
    def epi_items(u, fr, pk):
        t, s2 = fr // 2, fr % 2
        D = XA if fr % 2 == 0 else XD
        f = []
        if u == 0:
            for i in range(8): f.append((f"v_accvgpr_read_b32 v{EP+i}, a{O1+16*t+8*s2+i}", 1))
            src = EP
        else:
            src = QACC + 16 * t + 8 * s2
        if pk:
            for i in range(4): f.append((f"v_pk_mul_f32 v[{src+2*i}:{src+2*i+1}], v[{src+2*i}:{src+2*i+1}], v[{RL}:{RL+1}] op_sel_hi:[1,0]", 1))
        else:
            for i in range(8): f.append((f"v_mul_f32 v{src+i}, v{src+i}, v{RL}", 1))
        for i in range(4): f.append((f"v_cvt_pk_bf16_f32 v{D+i}, v{src+2*i}, v{src+2*i+1}", 1))
        f.append((f"s_mov_b32 s{sTMP}, {u*16*32768 + (fr//4)*4096}", 1))
        f.append((f"buffer_store_dwordx4 v[{D}:{D+3}], v{OD}, s[{SO}:{SO+3}], s{sTMP} offen offset:{(fr%4)*1024} {opol}", 4, f"o{u}"))
        return f
    def rl_items(L):
        return [(f"v_mov_b32 v{RL+1}, v{L}", 1), (f"v_mov_b32 v{RL}, v{L}", 1), (f"v_permlane32_swap_b32 v{RL}, v{RL+1}", 3),
                (f"v_add_f32 v{RL}, v{RL}, v{RL+1}", 1), (f"v_rcp_f32 v{RL}, v{RL}", 2)]
    def spread(gaps, items, g0=0, g1=None):
        if g1 is None: g1 = len(gaps)
        n = g1 - g0
        tot = sum(f[1] for f in items); acc = 0
        for f in items:
            g = min(g0 + int((acc + f[1] * 0.5) * n / max(tot, 1)), g1 - 1)
            gaps[g].append(f); acc += f[1]
    def run(mf, gaps):
        for m, g in zip(mf, gaps):
            E(m); put(g)
    def qchunk(q, extra=(), pre_done=True):
        if not pre_done:
            for f in range(NWF): put(rd_w(q, f))
        mf = [mf_q(q, f) for f in range(16)]
        gaps = [[] for _ in range(16)]
        for f in range(16 - NWF): gaps[f] += rd_w(q, f + NWF)
        spread(gaps, list(extra))
        run(mf, gaps)

    NA2 = 32 - J0 if fused else 0
    def uslot(n):
        if n < NA2 + 2: return 8 + n % 2
        m = n - (NA2 + 2)
        a, b = 8 + (NA2 % 2), 8 + ((NA2 + 1) % 2)
        return [6, 7, a, b][m % 4]
    def bset(n): return BSET[0] if n <= NA2 else BSET[(n - NA2) % 2]
    def oproj_setup():
        a, b, cc = TM, PV_, PD
        txt = f"""
        s_and_b32 s{sT}, s2, 3
        s_mul_i32 s{sT}, s{sT}, 30
        s_lshr_b32 s{sCB}, s2, 3
        s_cmp_lt_u32 s{sCB}, 30
        s_cselect_b32 s{sLIVE}, 1, 0
        s_add_u32 s{sCB}, s{sCB}, s{sT}
        s_cmp_lt_u32 s{sCB}, 117
        s_cselect_b32 s{sLIVE}, s{sLIVE}, 0
        s_min_u32 s{sCB}, s{sCB}, 116
        s_mul_i32 s{sT}, s{sCB}, 57
        s_lshr_b32 s{sT}, s{sT}, 9
        s_mul_i32 s{sN}, s{sT}, 9
        s_sub_u32 s{sCB}, s{sCB}, s{sN}
        s_mul_i32 s{sRHO}, s{sT}, 3
        s_add_u32 s{sRHO}, s{sRHO}, s{sCB}
        v_bfe_u32 v{a}, v{OD}, 7, 3
        v_mul_u32_u24 v{a}, 1152, v{a}
        v_and_b32 v{b}, 0x70, v{OD}
        v_and_b32 v{cc}, 0x100, v{OD}
        v_lshrrev_b32 v{cc}, 3, v{cc}
        v_xor_b32 v{b}, v{b}, v{cc}
        v_xor_b32 v{cc}, 64, v{b}
        v_add_u32 v{WD}, v{a}, v{b}
        v_add_u32 v{WD+1}, v{a}, v{cc}
        v_add_u32 v{WD+2}, {16*1152-2048}, v{WD}
        v_add_u32 v{WD+3}, {24*1152-3072}, v{WD+1}
        v_add_u32 v{WD+1}, {8*1152-1024}, v{WD+1}
        v_and_b32 v{a}, 0x300, v{OD}
        v_lshlrev_b32 v{b}, 2, v{a}
        v_and_b32 v{cc}, 0xc0, v{OD}
        v_lshlrev_b32 v{cc}, 1, v{cc}
        v_add_u32 v{b}, v{b}, v{cc}
        v_and_b32 v{cc}, 0x30, v{OD}
        v_lshrrev_b32 v{cc}, 1, v{cc}
        v_add_u32 v{b}, v{b}, v{cc}
        s_add_u32 s{sN}, s{sW4K}, {WB}
        v_add_u32 v{b}, s{sN}, v{b}
        v_and_b32 v{cc}, 0x180, v{OD}
        v_lshrrev_b32 v{cc}, 2, v{cc}
        v_add_u32 v{WA}, v{b}, v{cc}
        v_xor_b32 v{WA+1}, 32, v{WA}
        v_xor_b32 v{WA+2}, 64, v{WA}
        v_xor_b32 v{WA+3}, 0x60, v{WA}
        v_lshlrev_b32 v{a}, 1, v{a}
        v_and_b32 v{b}, 0xf0, v{OD}
        v_add_u32 v{a}, v{a}, v{b}
        """
        f = [(l.strip(), 1) for l in txt.strip().split('\n')]
        for i in range(RB):
            def g(i=i):
                E(f"""
                s_mul_i32 s{sA}, s{sT}, {RB}
                s_add_u32 s{sA}, s{sA}, {i}
                s_min_u32 s{sA}, s{sA}, 63
                s_lshr_b32 s{sB}, s{sA}, 3
                s_lshl_b32 s{sB}, s{sB}, 20
                s_bfe_u32 s{sN}, s{sA}, 0x20001
                s_lshl_b32 s{sN}, s{sN}, 13
                s_add_u32 s{sB}, s{sB}, s{sN}
                s_and_b32 s{sN}, s{sA}, 1
                s_lshl_b32 s{sN}, s{sN}, 8
                s_add_u32 s{sB}, s{sB}, s{sN}
                v_add_u32 v{AD+i}, s{sB}, v{a}
                """)
            f.append((g, 6))
        def srds():
            E(f"""
            s_cmp_eq_u32 s38, 0
            s_cselect_b32 s{SWO}, s84, s86
            s_cselect_b32 s{SWO+1}, s85, s87
            s_lshl_b32 s{sN}, s{sCB}, 7
            s_add_u32 s{SWO}, s{SWO}, s{sN}
            s_addc_u32 s{SWO+1}, s{SWO+1}, 0
            s_sub_u32 s{SWO+2}, {4096*1152}, s{sN}
            s_lshl_b32 s{sN}, s38, 23
            s_add_u32 s{sN}, s{sN}, {O_BASE}
            s_add_u32 s{SOR}, s80, s{sN}
            s_addc_u32 s{SOR+1}, s81, 0
            s_mov_b32 s{SOR+2}, {1<<23}
            s_lshl_b32 s{sN}, s38, 3
            s_add_u32 s{sN}, s{sN}, s37
            s_lshl_b32 s{sN}, s{sN}, 4
            s_add_u32 s{sN}, s{sN}, s36
            s_add_u32 s{SFL}, s90, s{sN}
            s_addc_u32 s{SFL+1}, s91, 0
            s_mov_b32 s{SFL+2}, 4
            s_mov_b32 s{SFL+3}, 0x20000
            s_lshl_b32 s{sN}, s38, 7
            s_add_u32 s{SPL}, s90, s{sN}
            s_addc_u32 s{SPL+1}, s91, 0
            s_mov_b32 s{SPL+2}, 128
            s_mov_b32 s{SPL+3}, 0x20000
            s_mul_i32 s{sA}, s{sT}, {RB}
            s_add_u32 s{sB}, s{sA}, {RB-1}
            s_min_u32 s{sB}, s{sB}, 63
            s_lshr_b32 s{sA}, s{sA}, 3
            s_lshr_b32 s{sB}, s{sB}, 3
            s_sub_u32 s{sB}, s{sB}, s{sA}
            s_lshl_b32 s{sA}, s{sA}, 4
            s_lshl_b32 s{sB}, s{sB}, 6
            s_or_b32 s{sB}, s{sB}, 0x30
            v_and_b32 v{PV_}, s{sB}, v{OD}
            v_lshrrev_b32 v{PV_}, 2, v{PV_}
            v_add_u32 v{PV_}, s{sA}, v{PV_}
            s_mul_i32 s{sCNT}, s35, {WIN}
            """)
        f.append((srds, 20))
        return f
    def publish(u):
        return [(f"v_mov_b32 v{TM}, {1 if u == 0 else 3}", 1),
                (f"buffer_store_byte v{TM}, v{OD}, s[{SFL}:{SFL+3}], 0 offen sc1", 4, f"fl{u}")]
    def poll_issue(u):
        return [(f"buffer_load_dword v{PD}, v{PV_}, s[{SPL}:{SPL+3}], 0 offen sc1", 4, f"pl{u}")]
    polls = []
    def poll_check(u):
        m = 0x01010101 if u == 0 else 0x02020202
        def g():
            E(f"v_and_b32 v{PD}, {hex(m)}, v{PD}")
            E(f"v_cmp_ne_u32 vcc, {hex(m)}, v{PD}")
            E(f"s_cbranch_vccnz K1_POLL_{u}")
            E.label(f"K1_PBACK_{u}")
            polls.append((u, m))
        return [(g, 3)]
    def ld_setup(n):
        sl, nn = n >> 4, n & 15
        E(f"""
        s_add_u32 s{sN}, s{sRHO}, {nn % WIN}
        s_and_b32 s{sN}, s{sN}, {WIN-1}
        s_add_u32 s{sN}, s{sN}, s{sCNT}
        s_add_u32 s{sN}, s{sN}, {sl*64 + (nn // WIN) * 4 * WIN}
        """)
    def ld_u(n):
        def first():
            on_issue(f"u{n}", uslot(n))
            ld_setup(n)
            E(f"s_mul_i32 s{sB}, s{sN}, {32*1152}")
            E(f"s_add_u32 m0, s{sW4K}, {uslot(n)*SL}")
        return [(first, 5)] + [(f"buffer_load_dwordx4 v{WD+i}, s[{SWO}:{SWO+3}], s{sB} offen offset:{1024*i} lds", 4, f"u{n}") for i in range(4)]
    def ld_a(n):
        def first():
            ld_setup(n)
            E(f"""
            s_lshr_b32 s{sA}, s{sN}, 2
            s_lshl_b32 s{sA}, s{sA}, 15
            s_and_b32 s{sN}, s{sN}, 3
            s_lshl_b32 s{sN}, s{sN}, 11
            s_add_u32 s{sA}, s{sA}, s{sN}
            """)
        f = [(first, 6)]
        for i in range(RB):
            r = ASET[n % 4] + 4 * i
            f.append((f"buffer_load_dwordx4 a[{r}:{r+3}], v{AD+i}, s[{SOR}:{SOR+3}], s{sA} offen sc1", 4, f"a{n}"))
        return f
    def rd_b(n):
        f = []
        for cbk in range(CB):
            r = bset(n) + 4 * cbk
            for jj in range(2):
                f.append(lds_read(f"ds_read_b64_tr_b16 a[{r+2*jj}:{r+2*jj+1}], v{WA+cbk} offset:{uslot(n)*SL - WB + jj*512}", f"u{n}", uslot(n)))
        return f
    def mf_o(n):
        mf = []
        for i in range(RB):
            for cbk in range(CB):
                a = R('a', ACC + (i * CB + cbk) * 4, 4)
                rb = bset(n) + 4 * cbk; ra = ASET[n % 4] + 4 * i
                mf.append(f"v_mfma_f32_16x16x32_bf16 {a}, a[{rb}:{rb+3}], a[{ra}:{ra+3}], {'0' if n == 0 else a}")
        return mf

    def p0(plan):
        cur['plan'] = plan
        for it in plan['init']: put(dma(it))
        setup_rest()
        stamp('iss')
        xr = plan.get('xread', {q - 1: [q] for q in range(9)})
        for q in xr.get(-1, []): put(rd_x(q))
        for it in plan['chunk'].get(-1, []): put(dma(it))
        for q in range(9):
            barrier(f"w{q}")
            if q == 0: stamp('b0')
            ex = [f for it in plan['chunk'].get(q, []) for f in dma(it)]
            qchunk(q, ex, pre_done=False)
            for qq in xr.get(q, []): put(rd_x(qq))
    import copy
    if len(plans) == 1:
        p0(plans[0])
    else:
        E(f"s_bitcmp1_b32 s2, {opt.get('pbit', 3)}")
        E("s_cbranch_scc1 K1_P0B")
        save = (copy.deepcopy(st), list(E.vm), list(E.lgkm), nst[0])
        p0(plans[0])
        endA = (copy.deepcopy(st), [t for t, d in E.vm])
        E.wait_lgkm(0)
        E("s_branch K1_P0J")
        E.label("K1_P0B")
        st.clear(); st.update(copy.deepcopy(save[0])); E.vm = list(save[1]); E.lgkm = list(save[2]); nst[0] = save[3]
        p0(plans[1])
        E.wait_lgkm(0)
        E.label("K1_P0J")
        A_, B_ = endA[1], [t for t, d in E.vm]
        n = min(len(A_), len(B_))
        assert A_[len(A_)-n:] == B_[len(B_)-n:], (A_, B_)
        if len(A_) > len(B_): E.vm = [(t, set()) for t in A_]
        assert endA[0]['content'] == st['content'], (endA[0]['content'], st['content'])
        st['visible'] &= endA[0]['visible']
    stamp('p0')
    barrier("w9", "k0")
    for s in range(8): put(rd_k(0, s))
    put(dma('v3'))
    cvt_q()
    gaps = [rd_k(1, s) for s in range(8)]
    for f in range(NWF): gaps[f] += rd_w(9, f)
    run([mf_qk(0, s) for s in range(8)], gaps)
    f, g = first_max(0)
    qchunk(9, [("s_nop 0", 8)] + f + g)
    stamp('pre')
    for j in range(33):
        hasqk = j + 1 < 32; haspv = j >= 1; hassm = j < 32
        if j == 16:
            seq = [('pv', f) for f in range(8)] + [('qk', s) for s in range(8)]
        elif hasqk and haspv:
            seq = [('qk', 0)]
            for s in range(1, 8): seq += [('qk', s), ('pv', s - 1)]
            seq += [('pv', 7)]
        elif hasqk: seq = [('qk', s) for s in range(8)]
        else: seq = [('pv', f) for f in range(8)]
        n = len(seq)
        mf = [mf_qk(j + 1, i) if k == 'qk' else mf_pv(j - 1, i) for k, i in seq]
        if j == 16:
            f, g = first_max(16)
            gaps = [[] for _ in range(8)] + softmax_gaps(j, 8)
            spread(gaps, rl_items(L1) + f + g, 0, 8)
        elif hassm: gaps = softmax_gaps(j, n)
        else: gaps = [[] for _ in range(n)]
        bpos = -1
        dm = []
        if j % 2 == 0 and j < 32:
            G = j // 2
            bpos = 2
            tags = [f"k{G+1}", f"v{G}"]
            if G < 8: tags.append(f"w{10+G}")
            if j == 18: tags.append("o0")
            gaps[bpos].insert(0, (lambda tags=tags: barrier(*tags), 1))
            if j == 18 and fused: gaps[bpos][1:1] = publish(0)
            if 11 + G < 18: dm += dma(f"w{11+G}")
            if G + 4 < 16: dm += dma(f"k{G+4}")
            if G >= 1 and G + 3 < 16: dm += dma(f"v{G+3}")
        for gi, (k, i) in enumerate(seq):
            g = max(gi, bpos)
            if k == 'qk' and j + 2 < 32: gaps[g] += rd_k(j + 2, i)
            if k == 'pv' and j < 32: gaps[g] += rd_v(j, i, pv_order(j))
        if j == 0:
            spread(gaps, [x for f in range(8) for x in rd_v(0, f, STD)], bpos, n)
        isq = j % 2 == 0 and j < 16
        if isq:
            pre = [x for f in range(NWF) for x in rd_w(10 + j // 2, f)]
            spread(gaps, pre, n - 6, n - 1)
        if j == 16:
            spread(gaps, epi_items(0, 0, False) + epi_items(0, 1, False), 8, n - 1)
        if j == 17:
            spread(gaps, [x for fr in range(2, 8) for x in epi_items(0, fr, False)], 0, n - 3)
        if j == 15 and fused:
            spread(gaps, oproj_setup(), 0, n - 1)
        ol = []
        no = j - J0
        if fused and j < 32:
            if j == J0 - 2: ol += ld_u(0) + ld_u(1) + poll_issue(0)
            if j == J0 - 1: ol += poll_check(0) + ld_a(0) + ld_a(1)
            if 1 <= no: ol += ld_u(no + 1) + ld_a(no + 1)
        if not isq:
            spread(gaps, ol + dm if opt.get('ofirst', True) else dm + ol, bpos + 1, n - 1)
        if fused and 0 <= no < NA2:
            spread(gaps, rd_b(no), n - 4, n - 1)
        if j == 32:
            put(rl_items(L2))
            for t in range(3):
                spread(gaps, epi_items(1, 2*t, True) + epi_items(1, 2*t+1, True), min(2*t + 4, 7), min(2*t + 6, 8))
        run(mf, gaps)
        if isq:
            qchunk(10 + j // 2, dm)
            if j == 14: cvt_q()
        if fused and 0 <= no < NA2:
            for m in mf_o(no): E(m)
        stamp(f's{j}', 1 if j in (15, 31) else 2)
    put(epi_items(1, 6, True)); put(epi_items(1, 7, True))
    if fused:
        put(rd_b(NA2))
        barrier("o1")
        put(publish(1))
        stamp('pub')
        E(f"s_cmp_eq_u32 s{sLIVE}, 0")
        E("s_cbranch_scc1 K1_FIN")
        DEP = 3
        nu = NA2 + 1; na = NA2 + 1
        PI = opt.get('pollahead', 1)
        for n in range(NA2, 32):
            fill = []
            while nu <= min(n + DEP, 31) or na <= min(n + DEP, 31):
                if nu <= min(n + DEP, 31): fill += ld_u(nu); nu += 1
                if na <= min(n + DEP, 31):
                    if na == 16 - PI: fill += poll_issue(1)
                    if na == 16:
                        fill += poll_check(1)
                        if stamps: fill.append((lambda: stamp('poll2'), 1))
                    fill += ld_a(na); na += 1
            if n + 1 < 32: fill += rd_b(n + 1)
            interleave(E, mf_o(n), fill)
        stamp('oend')
        r0, r1, r2, r3, r4 = T, T + 1, T + 2, T + 3, T + 4
        E(f"""
        v_and_b32 v{r0}, 0x3f0, v{OD}
        s_mul_i32 s{sN}, s35, {RB*CB*1024}
        v_add_u32 v{r0}, s{sN}, v{r0}
        """)
        for k in range(RB * CB):
            E(f"ds_write_b128 v{r0}, a[{ACC+4*k}:{ACC+4*k+3}] offset:{k*1024}")
        E(f"""
        v_and_b32 v{r1}, 0x70, v{OD}
        v_lshlrev_b32 v{r2}, 5, v{r1}
        v_bfe_u32 v{r3}, v{OD}, 7, 3
        v_lshlrev_b32 v{r4}, 4, v{r3}
        v_add_u32 v{r2}, v{r2}, v{r4}
        s_lshr_b32 s{sN}, s35, 1
        s_lshl_b32 s{sN}, s{sN}, 12
        s_and_b32 s{sA}, s35, 1
        s_lshl_b32 s{sA}, s{sA}, 7
        s_add_u32 s{sN}, s{sN}, s{sA}
        v_add_u32 v{r2}, s{sN}, v{r2}
        s_lshl_b32 s{sN}, s35, 3
        v_add_u32 v{r3}, s{sN}, v{r3}
        v_mul_u32_u24 v{r3}, 2304, v{r3}
        v_add_u32 v{r3}, v{r3}, v{r1}
        s_mul_i32 s{sN}, s{sT}, {80*2304}
        s_mul_i32 s{sA}, s38, 1152
        s_add_u32 s{sN}, s{sN}, s{sA}
        s_lshl_b32 s{sA}, s{sCB}, 7
        s_add_u32 s{sN}, s{sN}, s{sA}
        s_add_u32 s{SD}, s88, s{sN}
        s_addc_u32 s{SD+1}, s89, 0
        s_sub_u32 s{SD+2}, {1024*2304}, s{sN}
        v_add_u32 v{r4}, {2*RB*CB*1024}, v{r2}
        """)
        E.wait_lgkm(0)
        E("s_barrier")
        for rnd in range(3):
            if rnd == 2:
                E("s_cmp_ge_u32 s35, 2")
                E("s_cbranch_scc1 K1_FIN")
            base = QACC + 32 * (rnd % 2)
            if rnd < 2 or True:
                for w in range(4):
                    for g in range(2):
                        r = base + (w * 2 + g) * 4
                        E(f"ds_read_b128 v[{r}:{r+3}], v{r2 if w < 2 else r4} offset:{(w%2)*RB*CB*1024 + rnd*8192 + g*256}")
            for i in range(8):
                E(f"v_add_f32 v{base+i}, v{base+i}, v{base+8+i}")
                E(f"v_add_f32 v{base+16+i}, v{base+16+i}, v{base+24+i}")
            for i in range(8):
                E(f"v_add_f32 v{base+i}, v{base+i}, v{base+16+i}")
            for i in range(4):
                E(f"v_cvt_pk_bf16_f32 v{base+8+i}, v{base+2*i}, v{base+2*i+1}")
            E(f"s_mov_b32 s{sN}, {rnd*32*2304}")
            E(f"buffer_store_dwordx4 v[{base+8}:{base+11}], v{r3}, s[{SD}:{SD+3}], s{sN} offen")
    E.label("K1_FIN")
    if stamps:
        E.wait_vm(0, force=True)
        stamp('fin')
        E(f"""
        s_cmp_lg_u32 s35, 0
        s_cbranch_scc1 K1_END
        s_lshl_b32 s{sTMP}, s2, 7
        s_add_u32 s{sTMP}, s{sTMP}, 65536
        s_add_u32 s{SO}, s80, s{sTMP}
        s_addc_u32 s{SO+1}, s81, 0
        s_mov_b32 s{SO+2}, 128
        v_mov_b32 v1, 0
        """)
        for i in range(nst[0]):
            E(f"v_mov_b32 v2, s{STR[i]}")
            E(f"buffer_store_dword v2, v1, s[{SO}:{SO+3}], 0 offen offset:{4*i}")
            E.wait_vm(0)
    E.label("K1_END")
    E("s_endpgm")
    for u, m in polls:
        E.raw(f"""K1_POLL_{u}:
    s_mov_b32 s{sRET}, 0
K1_PLOOP_{u}:
    buffer_load_dword v{PD}, v{PV_}, s[{SPL}:{SPL+3}], 0 offen sc1
    s_add_u32 s{sRET}, s{sRET}, 1
    s_waitcnt vmcnt(0)
    v_and_b32 v{PD}, {hex(m)}, v{PD}
    v_cmp_ne_u32 vcc, {hex(m)}, v{PD}
    s_cmp_gt_u32 s{sRET}, 0x30000
    s_cbranch_scc1 K1_PBACK_{u}
    s_cbranch_vccnz K1_PLOOP_{u}
    s_branch K1_PBACK_{u}""")
    for n, lab in stubs:
        E.label(f"K1_STUB_{n}")
        E.raw(f"    s_call_b64 s[{sRET}:{sRET+1}], {lab}")
        E.raw(f"    s_branch K1_BACK_{n}")
    for key, lab in rare.items():
        par, u, fix = key
        s = S[par]; sn = S[1 - par]; p = P[par]; L = L1 if u == 0 else L2
        Rr = Emit()
        Rr.label(lab)
        Rr.nop(16)
        for f in max_tree(s, LA, LB): Rr(f[0])
        Rr(f"v_max_f32 v{LA}, 0, v{LA}")
        Rr(f"v_sub_f32 v{LB}, 0, v{LA}")
        Rr(f"v_exp_f32 v{LB}, v{LB}")
        for i in range(16):
            Rr(f"v_sub_f32 v{s+i}, v{s+i}, v{LA}")
            Rr(f"v_sub_f32 v{NEG+i}, v{NEG+i}, v{LA}")
            if fix: Rr(f"v_sub_f32 v{sn+i}, v{sn+i}, v{LA}")
        Rr(f"v_mul_f32 v{L}, v{L}, v{LB}")
        for i in range(64):
            if u == 0:
                Rr(f"v_accvgpr_read_b32 v{T}, a{O1+i}")
                Rr(f"v_mul_f32 v{T}, v{T}, v{LB}")
                Rr(f"v_accvgpr_write_b32 a{O1+i}, v{T}")
            else:
                Rr(f"v_mul_f32 v{QACC+i}, v{QACC+i}, v{LB}")
        Rr(f"v_mov_b32 v{LA}, 0")
        for e in range(8):
            Rr(f"v_exp_f32 v{T}, v{s+2*e}")
            Rr(f"v_exp_f32 v{T+1}, v{s+2*e+1}")
            Rr(f"v_add_f32 v{LA}, v{LA}, v{T}")
            Rr(f"v_add_f32 v{LA}, v{LA}, v{T+1}")
            Rr(f"v_cvt_pk_bf16_f32 v{p+e}, v{T}, v{T+1}")
        Rr.nop(4)
        Rr(f"s_setpc_b64 s[{sRET}:{sRET+1}]")
        E.lines += Rr.lines
    return E, dict(nops=E.nops, waits=E.nwait, count=E.count, vgpr=va.n, nst=nst[0], stn=stn)

if __name__ == '__main__':
    pass
```

```python
import sys
from asmlib import *
import f1
HDR = open('concat_heads__mha_block_cached__mha_block_cached__near_ridge.s.ref').read().split('; Override launch')[0]
def build(out, o={}):
    E, i = f1.gen(o)
    print(out, i)
    open(out, 'w').write(wrap_single(E.text(), 256, 256, 163840, 512, accum=256, header=HDR))
if __name__ == '__main__':
    build('f1.s')
    build('f1_st.s', dict(stamps=True))
```

```python
from genh import *
def base(front, kv=kvA):
    back, c = back_std(kv, 20)
    back['pref'] = {30: dict(u=[6, 7, 5, 0, 1, 2, 4])}
    back['ld'][('s', 30)] += ['u8']
    back['ld'][('s', 31)] += ['u9', 'u7']
    tail = [('ld', ['u10', 'u11']), ('bar', 'u6', 'u8', 'u9', 'u7'), ('mf', 12), ('bar', 'o1'), ('pub', 1),
        ('mf', 28, ['u12', 'u13', 'p1']), ('ld', ['c1']), ('mf', 32, ['a5', 'a6', 'a7']),
        ('bar', 'u10', 'u11', 'u12', 'u13'), ('mf', 60, ['u14', 'u15'], 'setup'), ('bar', 'u14', 'u15'), ('mf', -1)]
    return dict(fronts=[front], back=back, pref=dict(v=[4, 5, 6], u=[6, 7]), uorder=[0,1,2,3,4,5,8,9,6,7,10,11,12,13,14,15], tail=tail, pub=20,
         of2={5: ('a', 80), 6: ('a', 112), 7: ('a', 144)})
ST = dict(stamps=1, stl=['i0','i1','i2']+[f'c{q}' for q in range(9)]+['s3','s7','s23'])
if __name__ == '__main__':
    f = front_std(kvA); build('p_a.s', dict(base(f), **ST))
    f = front_std(kvA); f.update(init=['x0','w0'], init2=['x1','w1'], pspan=8); build('p_b.s', dict(base(f), **ST))
    f = front_std(kvA); f.update(init=['x0','w0'], init2=['x1','w1'], pspan=8, lagp=0); build('p_c.s', dict(base(f), **ST))
    f = front_std(kvA); f.update(init=['x0','w0'], init2=['x1','w1'], pspan=8)
    for q in range(7): f['ld'][('q', q)] = [f'w{q+2}', f'x{q+2}']
    f['ld'][('q', 7)] = ['w9', 'k0', 'k1']; f['ld'][('q', 8)] = ['w10', 'v0', 'k2']; f['ld']['pre'] = ['w11', 'v1', 'k3']; f['ld']['pre2'] = ['v2']
    build('p_d.s', dict(base(f), **ST))
    f = front_std(kvA); f.update(init=['x0','w0'], init2=['x1','w1'], pspan=8)
    for q in range(7): f['ld'][('q', q)] = [f'w{q+2}', f'x{q+2}']
    f['ld'][('q', 1)] += ['k0', 'k1']; f['ld'][('q', 4)] += ['k2', 'v0']
    f['ld'][('q', 7)] = ['w9', 'k3', 'v1']; f['ld'][('q', 8)] = ['w10', 'v2']
    build('p_e.s', dict(base(f), **ST))
```

```python
import sys, copy
from asmlib import *
import h1
HDR = open('concat_heads__mha_block_cached__mha_block_cached__near_ridge.s.ref').read().split('; Override launch')[0]
def build(out, o={}):
    E, i = h1.gen(copy.deepcopy(o))
    print(out, i)
    open(out, 'w').write(wrap_single(E.text(), 256, 256, 163840, 512, accum=256, header=HDR))

def kv_lead(first, order):
    kv = {}; i = 0
    for G, c in enumerate(first):
        kv[G] = order[i:i + c]; i += c
    assert i >= len(order), (i, len(order))
    return kv
REM = [x for g in range(3, 16) for x in ([f"k{g+1}"] if g + 1 < 16 else []) + [f"v{g}"]]
kvA = kv_lead([1] + [2] * 11 + [1, 1], REM)

def front_std(kv):
    ld = {('q', 0): ['w2', 'x2', 'k0'], ('q', 1): ['w3', 'x3', 'k1'], ('q', 2): ['w4', 'x4', 'k2'], ('q', 3): ['w5', 'x5', 'k3'],
          ('q', 4): ['w6', 'x6', 'v0'], ('q', 5): ['w7', 'x7'], ('q', 6): ['w8', 'x8'], ('q', 7): ['w9', 'v1'], ('q', 8): ['w10', 'v2'],
          'pre': ['w11']}
    cm = {-1: 10, 14: 8}
    for j in range(14): cm[j] = 9
    for G in range(8):
        l = ([f"w{12+G}"] if 12 + G < 18 else []) + kv.get(G, [])
        ld[('s', 2 * G)] = l[:2] if G < 7 else l
        if G < 7: ld[('s', 2 * G + 1)] = l[2:]
    ld[('s', 1)] = ld[('s', 1)] + ['y0']
    for k in range(8): ld[('s', 5 + k)] = ld[('s', 5 + k)] + [f'z{k}']
    return dict(init=['x0', 'w0', 'x1', 'w1'], ld=ld, cm=cm, prew=['w9', 'w10'])

def back_std(kv, us=20, pc=23, aat=(23, 27, 29)):
    ld = {}; cm = {}
    for G in range(8, 16):
        l = kv.get(G, [])
        ld[('s', 2 * G)] = l[:1]; ld[('s', 2 * G + 1)] = l[1:]
    ld[('s', 16)] = ['p3'] + ld[('s', 16)]; ld[('s', 18)] = ld[('s', 18)] + ['c3']
    ld[('s', us - 2)] = ['u0'] + ld[('s', us - 2)]
    ld[('s', us - 1)] = ld[('s', us - 1)] + ['a0']
    c = 1
    for j in range(us, 32, 2):
        ld[('s', j)] = [f"u{c}"] + ld[('s', j)]; c += 1
        cm[j] = 10; cm[j + 1] = 10
    ld[('s', pc - 1)] = ['p0'] + ld[('s', pc - 1)]
    for i, j in enumerate(aat): ld[('s', j)] = ld[('s', j)] + [f"a{i+1}"]
    ld[('s', pc)] = ['c0'] + ld[('s', pc)]
    cm[us] = 2
    cm[32] = 8
    return dict(ld=ld, cm=cm, ustart=us), c
```

```python
from emit import *
import math, struct

def f32bits(x):
    return struct.unpack('<I', struct.pack('<f', x))[0]

O_BASE = 1 << 20
SL = 16384

class Alloc:
    def __init__(self, start): self.n = start
    def get(self, k=1, al=1):
        self.n = (self.n + al - 1) // al * al
        r = self.n; self.n += k; return r

def gen(opt):
    stamps = opt.get('stamps', False)
    kvpol = opt.get('kvpol', 'nt')
    qpol = opt.get('qpol', '')
    thresh = opt.get('thresh', 4096.0)
    DC = opt.get('dmacost', 5)
    E = Emit()
    va = Alloc(1)
    KA = va.get(8); VA = va.get(4); WA = va.get(4); KD = va.get(4); VD = va.get(1); WD = va.get(4); OD = 0
    RL = va.get(2, 2)
    L1 = va.get(1); L2 = va.get(1); LA = va.get(1); LB = va.get(1)
    XA = va.get(4, 4); XD = va.get(4, 4)
    S = [va.get(16, 4), va.get(16, 4)]
    NEG = va.get(16, 4)
    P = [va.get(8, 4), va.get(8, 4)]
    T = va.get(8, 4)
    WFV = va.get(8, 4)
    EP = va.get(8, 4)
    QACC = va.get(64, 4)
    Q = va.get(32, 4)
    KF = va.get(32, 4)
    assert va.n <= 256, va.n
    X = 0; O1 = 144; VF = 208; WFA = 240
    WF = [('a', WFA + 4 * i) for i in range(4)] + [('v', WFV), ('v', WFV + 4), ('v', EP), ('v', EP + 4)]
    NWF = len(WF)
    ACC = 0
    OF = {0: ('a', 80), 1: ('a', 112), 2: ('a', 144), 3: ('a', 176), 4: ('v', Q)}
    OF.update(opt.get('of2', {5: ('a', 80), 6: ('a', 112), 7: ('a', VF)}))
    UD = [WD, WD + 1, WD + 2, WD + 3, WA + 1]; UA = WA; PV_ = WA + 2; PD = WA + 3
    SX, SW, SK, SV, SO = 4, 8, 12, 16, 20
    SWO, SOR, SFL, SPL = SX, SW, 64, 68
    SPW, SPR, SD = SK, SV, SO
    sW4K, sXC, sWC, sOFF, sTH, sRET, sSC, sTMP = 24, 25, 26, 27, 28, 30, 32, 34
    sR1, sA, sB, sN, sM, sHG, sW5K, sMK = 92, 93, 94, 95, 96, 97, 98, 99
    nst = [0]
    STR = list(range(40, 64)) + list(range(72, 80))
    stn = []
    def stamp(name='', lvl=1):
        if stamps and (lvl <= stamps or name in opt.get('stl', ())):
            E(f"{opt.get('clk', 's_memrealtime')} s[100:101]")
            E.raw("    s_waitcnt lgkmcnt(0)"); E.lgkm = []
            E(f"s_mov_b32 s{STR[nst[0]]}, s100")
            nst[0] += 1; stn.append(name)
    c = math.log2(math.e) / math.sqrt(128.0)

    US = 20480
    PREF = dict(k=[0, 1, 2, 3], v=[3, 4, 5, 6], w=[7, 8, 9, 6], x=[5, 6], u=[5, 6, 7])
    PREF.update(opt.get('pref', {}))
    st = dict(epoch=0, live=[], lastread={}, nread={}, visible=set(), issued=set(), addr={})
    NREADS = {'x': 4, 'w': 32, 'k': 16, 'v': 32, 'u': 40}
    cur = dict(plan=None, var='')
    def size(item): return US if item[0] == 'u' else SL
    def overl(a, sz): return [p for p in st['live'] if st['addr'][p] < a + sz and a < st['addr'][p] + size(p)]
    def dead(p, item):
        if st['nread'].get(p, 0) != NREADS[p[0]]: return False
        if p[0] == 'x' and item[0] != 'u': return True
        return st['epoch'] > st['lastread'][p]
    def on_issue(item):
        ov = dict(opt.get('slotmap', {})); ov.update((cur['plan'] or {}).get('slotmap', {}))
        cands = [ov[item]] if item in ov else PREF[item[0]]
        sz = size(item)
        fr = [c_ for c_ in cands if all(dead(p, item) for p in overl(c_ * sz, sz))]
        assert fr, (item, cands, [(p, st['addr'][p]) for p in st['live']])
        a = fr[0] * sz
        for p in overl(a, sz):
            if p[0] == 'x':
                E.wait_lgkm(len(E.lgkm) - 1 - max([i for i, d in enumerate(E.lgkm) if ('tag', p) in d], default=-1))
            st['live'].remove(p)
        st['live'].append(item); st['issued'].add(item); st['addr'][item] = a
        return a
    def on_read(item):
        assert item in st['live'], item
        if item[0] == 'x':
            E.wait_tag(item)
        else:
            assert item in st['visible'], item
        st['nread'][item] = st['nread'].get(item, 0) + 1
        st['lastread'][item] = st['epoch']
        return st['addr'][item]
    def lds_read(fn, item):
        def f():
            a = on_read(item)
            t = fn(a)
            off = int(t.split('offset:')[1]); assert 0 <= off < 65536, t
            E(t)
            E.lgkm[-1].add(('tag', item))
        return (f, 1)
    def barrier(*tags):
        E.wait_lgkm(0)
        E.wait_tag(*tags)
        E("s_barrier")
        st['epoch'] += 1
        pend = {t for t, d in E.vm}
        for it in st['issued']:
            if it not in pend: st['visible'].add(it)
    def put(fl):
        for f in fl:
            if callable(f[0]): f[0]()
            else: E(f[0], f[2] if len(f) > 2 else None)

    E(f"""
    s_cmp_ge_u32 s2, 256
    s_cbranch_scc1 K1_END
    s_load_dwordx8 s[64:71], s[0:1], 0
    s_load_dwordx8 s[72:79], s[0:1], 40
    s_load_dwordx2 s[80:81], s[0:1], 96
    s_load_dwordx2 s[84:85], s[0:1], 32
    s_load_dwordx2 s[86:87], s[0:1], 72
    s_load_dwordx4 s[88:91], s[0:1], 80
    """)
    stamp('start')
    E(f"""
    v_lshrrev_b32 v{T}, 6, v0
    v_and_b32 v0, 63, v0
    v_readfirstlane_b32 s35, v{T}
    s_and_b32 s36, s2, 7
    s_lshr_b32 s37, s2, 3
    s_lshr_b32 s38, s36, 2
    s_and_b32 s36, s36, 3
    s_lshl_b32 s36, s36, 2
    s_and_b32 s39, s37, 3
    s_add_u32 s36, s36, s39
    s_lshr_b32 s37, s37, 2
    s_lshl_b32 s{sW4K}, s35, 12
    s_lshl_b32 s39, s39, 1
    s_add_u32 s39, s39, s37
    s_cmp_ge_u32 s39, 9
    s_cselect_b32 s{sTMP}, 9, 0
    s_sub_u32 s39, s39, s{sTMP}
    s_mul_i32 s39, s39, {opt.get('rot', 1)}
    s_lshl_b32 s{sXC}, s39, 7
    s_lshl_b32 s{sWC}, s39, 19
    """)
    t0, t1, t2, t3, t4, t5 = T, T + 1, T + 2, T + 3, T + 4, T + 5
    E(f"""
    v_lshrrev_b32 v{t0}, 3, v0
    s_lshl_b32 s{sTMP}, s35, 5
    v_add_u32 v{t0}, s{sTMP}, v{t0}
    v_mul_u32_u24 v{t0}, 1152, v{t0}
    v_and_b32 v{t1}, 7, v0
    v_lshrrev_b32 v{t2}, 4, v0
    v_xor_b32 v{t3}, v{t1}, v{t2}
    v_xor_b32 v{t4}, 4, v{t3}
    v_lshlrev_b32 v{t3}, 4, v{t3}
    v_lshlrev_b32 v{t4}, 4, v{t4}
    v_add_u32 v{XD}, v{t0}, v{t3}
    v_add_u32 v{XD+1}, v{t0}, v{t4}
    v_add_u32 v{XD+2}, {16*1152-2048}, v{XD}
    v_add_u32 v{XD+3}, {24*1152-3072}, v{XD+1}
    v_add_u32 v{XD+1}, {8*1152-1024}, v{XD+1}
    v_and_b32 v{t1}, 15, v0
    v_lshlrev_b32 v{t3}, 2, v{t2}
    v_xor_b32 v{t3}, v{t1}, v{t3}
    v_lshlrev_b32 v{t3}, 4, v{t3}
    s_lshl_b32 s{sTMP}, s35, 4
    v_add_u32 v{t0}, s{sTMP}, v{t2}
    v_lshlrev_b32 v{t4}, 13, v{t0}
    v_add_u32 v{WD}, v{t4}, v{t3}
    v_add_u32 v{WD+1}, {4*8192-1024}, v{WD}
    v_add_u32 v{WD+2}, {8*8192-2048}, v{WD}
    v_add_u32 v{WD+3}, {12*8192-3072}, v{WD}
    v_lshlrev_b32 v{t4}, 8, v{t0}
    v_add_u32 v{VD}, v{t4}, v{t3}
    """)
    for n in range(4):
        E(f"""
        v_add_u32 v{t3}, {4*n}, v{t2}
        v_xor_b32 v{t3}, v{t1}, v{t3}
        v_lshlrev_b32 v{t3}, 4, v{t3}
        v_add_u32 v{KD+n}, v{t4}, v{t3}
        """)
    E.raw("    s_waitcnt lgkmcnt(0)")
    E(f"""
    s_cmp_eq_u32 s38, 0
    s_cselect_b32 s{SX}, s64, s72
    s_cselect_b32 s{SX+1}, s65, s73
    s_cselect_b32 s{SK}, s66, s74
    s_cselect_b32 s{SK+1}, s67, s75
    s_cselect_b32 s{SV}, s68, s76
    s_cselect_b32 s{SV+1}, s69, s77
    s_cselect_b32 s{SW}, s70, s78
    s_cselect_b32 s{SW+1}, s71, s79
    s_mul_i32 s{sTMP}, s37, 147456
    s_add_u32 s{SX}, s{SX}, s{sTMP}
    s_addc_u32 s{SX+1}, s{SX+1}, 0
    s_mov_b32 s{SX+2}, 147456
    s_mov_b32 s{SX+3}, 0x20000
    s_lshl_b32 s{sTMP}, s36, 8
    s_add_u32 s{SW}, s{SW}, s{sTMP}
    s_addc_u32 s{SW+1}, s{SW+1}, 0
    s_sub_u32 s{SW+2}, {576*8192}, s{sTMP}
    s_mov_b32 s{SW+3}, 0x20000
    s_lshl_b32 s{sTMP}, s37, 5
    s_add_u32 s{sTMP}, s{sTMP}, s36
    s_lshl_b32 s82, s{sTMP}, 17
    s_add_u32 s{SK}, s{SK}, s82
    s_addc_u32 s{SK+1}, s{SK+1}, 0
    s_mov_b32 s{SK+2}, {17*131072}
    s_mov_b32 s{SK+3}, 0x20000
    s_add_u32 s{SV}, s{SV}, s82
    s_addc_u32 s{SV+1}, s{SV+1}, 0
    s_mov_b32 s{SV+2}, {17*131072}
    s_mov_b32 s{SV+3}, 0x20000
    """)
    def adv(s, step, lim):
        E(f"""
        s_add_u32 s{s}, s{s}, {step}
        s_cmp_eq_u32 s{s}, {lim}
        s_cselect_b32 s{s}, 0, s{s}
        """)
    def dma(item):
        k, i = item[0], int(item[1:])
        if k == 'r': return rd_x(i)
        if k == 'z': return arm(i)
        if k == 'y': return zero_flags()
        if k == 'u': return ld_u(i)
        if k == 'a': return ld_a(i)
        if k == 'p': return poll_issue(i)
        if k == 'c': return poll_check(i)
        def first():
            a = on_issue(item)
            E(f"s_add_u32 m0, s{sW4K}, {a}")
        f = [(first, 1)]
        if k == 'x':
            for n in range(4):
                f.append((f"buffer_load_dwordx4 v{XD+n}, s[{SX}:{SX+3}], s{sXC} offen offset:{1024*n} {qpol} lds", DC, item))
            f.append((lambda: adv(sXC, 128, 1152), 3))
        elif k == 'w':
            f.append((f"s_add_u32 s{sOFF}, s{sWC}, {(i//9)*4096}", 1))
            for n in range(4):
                f.append((f"buffer_load_dwordx4 v{WD+n}, s[{SW}:{SW+3}], s{sOFF} offen offset:{1024*n} {qpol} lds", DC, item))
            f.append((lambda: adv(sWC, 1 << 19, 9 << 19), 3))
        else:
            f.append((f"s_mov_b32 s{sOFF}, {(i>>3)*16*131072 + (i&7)*16384}", 1))
            for n in range(4):
                if k == 'k': f.append((f"buffer_load_dwordx4 v{KD+n}, s[{SK}:{SK+3}], s{sOFF} offen offset:{1024*n} {kvpol} lds", DC, item))
                else: f.append((f"buffer_load_dwordx4 v{VD}, s[{SV}:{SV+3}], s{sOFF} offen offset:{1024*n} {kvpol} lds", DC, item))
        return f
    XB, VB, WB = 3 * SL, 3 * SL, 6 * SL
    F_BASE = 0x1c0000
    def fl_off(u, own):
        a, b = (sHG, sM) if u < 2 else (sM, sHG)
        E(f"s_lshl_b32 s{sB}, s{a}, 8")
        if u == 2: E(f"s_add_u32 s{sB}, s{sB}, 1024")
        if own: E(f"s_lshl2_add_u32 s{sB}, s{b}, s{sB}")
    def zero_flags():
        def g(u):
            if u == 0: E(f"v_mov_b32 v{RL}, 0")
            fl_off(u, True)
            E(f"buffer_store_dword v{RL}, v{RL+1}, s[{SPL}:{SPL+3}], s{sB} offen sc1", "z")
            st['issued'].add(f"y{u}")
        return [(lambda: g(0), DC), (lambda: g(2), DC)]
    def arm(k):
        NZ = opt.get('nz', 8)
        def g():
            assert "y0" in st['issued'] and "y2" in st['issued']
            E.wait_tag("z")
            if k == 0: E(f"v_mov_b32 v{RL}, 1")
            E(f"s_and_b32 s{sB}, s37, {NZ-1}")
            E(f"s_cmp_eq_u32 s{sB}, {k}")
            E(f"s_cselect_b32 s{sB}, s36, 0x1000")
            E(f"buffer_store_byte v{RL}, v{RL+1}, s[{SFL}:{SFL+3}], s{sB} offen sc1", "arm")
            st['issued'].add(f"z{k}")
        return [(g, DC + 3)]
    def setup_rest():
        E(f"""
        s_mov_b32 s{sTH}, {hex(f32bits(thresh))}
        s_mov_b32 s{sSC}, {hex(f32bits(c))}
        s_mov_b32 s{sSC+1}, {hex(f32bits(c))}
        s_lshl_b32 s{sTMP}, s38, 3
        s_add_u32 s{sTMP}, s{sTMP}, s37
        s_add_u32 s{sTMP}, s{sTMP}, 1
        s_lshl_b32 s{sTMP}, s{sTMP}, 21
        s_add_u32 s82, s80, s{sTMP}
        s_addc_u32 s83, s81, 0
        s_lshl_b32 s{sTMP}, s36, 15
        s_add_u32 s{SO}, s82, s{sTMP}
        s_addc_u32 s{SO+1}, s83, 0
        s_mov_b32 s{SO+2}, {17*32768}
        s_mov_b32 s{SO+3}, 0x20000
        v_and_b32 v{t0}, 31, v0
        v_lshrrev_b32 v{t3}, 5, v0
        v_lshlrev_b32 v{t4}, 8, v{t0}
        v_xor_b32 v{t5}, v{t3}, v{t1}
        """)
        for s in range(8):
            E(f"""
            v_xor_b32 v{KA+s}, {2*s}, v{t5}
            v_lshlrev_b32 v{KA+s}, 4, v{KA+s}
            v_add_u32 v{KA+s}, v{KA+s}, v{t4}
            """)
        E(f"""
        v_lshrrev_b32 v{t5}, 1, v{t1}
        v_xor_b32 v{t5}, v{t3}, v{t5}
        v_lshlrev_b32 v{t4}, 7, v{t0}
        s_add_u32 s{sTMP}, s{sW4K}, {XB}
        v_add_u32 v{t4}, s{sTMP}, v{t4}
        """)
        for s in range(4):
            E(f"""
            v_xor_b32 v{XA+s}, {2*s}, v{t5}
            v_lshlrev_b32 v{XA+s}, 4, v{XA+s}
            v_add_u32 v{XA+s}, v{XA+s}, v{t4}
            """)
        E(f"""
        v_lshrrev_b32 v{t0}, 2, v{t1}
        v_and_b32 v{t4}, 1, v0
        v_lshlrev_b32 v{t4}, 4, v{t4}
        v_and_b32 v{t5}, 2, v0
        v_lshlrev_b32 v{t5}, 2, v{t5}
        v_add_u32 v{t4}, v{t4}, v{t5}
        v_and_b32 v{t5}, 16, v0
        v_lshlrev_b32 v{t5}, 1, v{t5}
        v_add_u32 v{t4}, v{t4}, v{t5}
        v_lshlrev_b32 v{t5}, 8, v{t0}
        v_add_u32 v{t4}, v{t4}, v{t5}
        v_lshlrev_b32 v{t3}, 10, v{t3}
        """)
        for t in range(4):
            E(f"""
            v_xor_b32 v{t5}, {t}, v{t0}
            v_lshlrev_b32 v{t5}, 6, v{t5}
            v_add_u32 v{t5}, v{t5}, v{t4}
            v_add_u32 v{t5}, v{t5}, v{t3}
            v_add_u32 v{VA+t}, {VB}, v{t5}
            v_add_u32 v{t5}, v{t5}, v{t3}
            v_add_u32 v{WA+t}, {WB}, v{t5}
            """)
        E(f"""
        v_lshlrev_b32 v{OD}, 4, v0
        s_lshl_b32 s{sTMP}, s35, 13
        v_add_u32 v{OD}, s{sTMP}, v{OD}
        s_and_b32 s{sM}, s36, 3
        s_lshr_b32 s{sHG}, s36, 2
        s_lshl_b32 s{sN}, s38, 3
        s_add_u32 s{sN}, s{sN}, s37
        s_lshl_b32 s{sA}, s{sN}, 4
        s_add_u32 s{SFL}, s90, s{sA}
        s_addc_u32 s{SFL+1}, s91, 0
        s_mov_b32 s{SFL+2}, 16
        s_mov_b32 s{SFL+3}, 0x20000
        s_add_u32 s{SPL}, s82, {F_BASE}
        s_addc_u32 s{SPL+1}, s83, 0
        s_mov_b32 s{SPL+2}, 2048
        s_mov_b32 s{SPL+3}, 0x20000
        v_lshlrev_b32 v{RL+1}, 8, v{OD}
        """)

    def rd_x(q):
        return [lds_read(lambda sl, s=s: f"ds_read_b128 a[{X+16*q+4*s}:{X+16*q+4*s+3}], v{XA+s} offset:{sl - XB}", f"x{q}") for s in range(4)]
    def wst(q, f):
        if q in opt.get('tmajor', ()): return f % 4, f // 4
        return f // 4, f % 4
    def rd_w(q, f, ri):
        s, t = wst(q, f)
        k, r = WF[ri % NWF]
        return [lds_read(lambda sl, jj=jj: f"ds_read_b64_tr_b16 {k}[{r+2*jj}:{r+2*jj+1}], v{WA+t} offset:{sl - WB + (16*s+4*jj)*256}", f"w{q}") for jj in range(2)]
    def mf_q(q, f, ri):
        s, t = wst(q, f)
        k, r = WF[ri % NWF]
        cq = q % 9
        acc = R('v', QACC + 16 * t, 16)
        src = '0' if (cq == 0 and s == 0) else acc
        return f"v_mfma_f32_32x32x16_bf16 {acc}, {k}[{r}:{r+3}], a[{X+16*cq+4*s}:{X+16*cq+4*s+3}], {src}"
    def rd_k(n, s):
        G, hf = n >> 1, n & 1
        return [lds_read(lambda sl: f"ds_read_b128 v[{KF+4*s}:{KF+4*s+3}], v{KA+s} offset:{sl + hf*8192}", f"k{G}")]
    def rd_v(n, f, order):
        G, hf = n >> 1, n & 1
        t, s2 = order[f]
        return [lds_read(lambda sl, jj=jj: f"ds_read_b64_tr_b16 a[{VF+4*f+2*jj}:{VF+4*f+2*jj+1}], v{VA+t} offset:{sl - VB + hf*8192 + (16*s2+8*jj)*256}", f"v{G}") for jj in range(2)]
    STD = [(f % 4, f // 4) for f in range(8)]
    LAST = [(f // 2, f % 2) for f in range(8)]
    def pv_order(n): return LAST if n % 16 == 15 else STD
    def mf_qk(n, s):
        d = R('v', S[n % 2], 16)
        src = d if s else ('0' if n % 16 == 0 else R('v', NEG, 16))
        return f"v_mfma_f32_32x32x16_bf16 {d}, v[{KF+4*s}:{KF+4*s+3}], v[{Q+4*s}:{Q+4*s+3}], {src}"
    def oacc(u, t): return R('a', O1 + 16 * t, 16) if u == 0 else R('v', QACC + 16 * t, 16)
    def mf_pv(n, f):
        t, s2 = pv_order(n)[f]
        d = oacc(n >> 4, t)
        src = '0' if (n % 16 == 0 and s2 == 0) else d
        p = P[n % 2] + 4 * s2
        return f"v_mfma_f32_32x32x16_bf16 {d}, a[{VF+4*f}:{VF+4*f+3}], v[{p}:{p+3}], {src}"
    def cvt_q():
        for i in range(32):
            E(f"v_pk_mul_f32 v[{QACC+2*i}:{QACC+2*i+1}], v[{QACC+2*i}:{QACC+2*i+1}], s[{sSC}:{sSC+1}]")
            if i >= 2: E(f"v_cvt_pk_bf16_f32 v{Q+i-2}, v{QACC+2*i-4}, v{QACC+2*i-3}")
        for i in (30, 31): E(f"v_cvt_pk_bf16_f32 v{Q+i}, v{QACC+2*i}, v{QACC+2*i+1}")
    def max_tree(s, dst, tmp):
        f = [(f"v_max3_f32 v{dst}, v{s}, v{s+1}, v{s+2}", 1), (f"v_max3_f32 v{tmp}, v{s+3}, v{s+4}, v{s+5}", 1)]
        for i in range(6, 16, 4):
            f.append((f"v_max3_f32 v{dst}, v{dst}, v{s+i}, v{s+i+1}", 1))
            if i + 3 < 16: f.append((f"v_max3_f32 v{tmp}, v{tmp}, v{s+i+2}, v{s+i+3}", 1))
        f.append((f"v_max_f32 v{dst}, v{dst}, v{tmp}", 1))
        f.append((f"v_mov_b32 v{tmp}, v{dst}", 1))
        f.append((f"v_permlane32_swap_b32 v{dst}, v{tmp}", 3))
        f.append((f"v_max_f32 v{dst}, v{dst}, v{tmp}", 1))
        return f
    def first_max(n):
        s = S[n % 2]
        f = max_tree(s, LA, LB)
        f.append((f"v_sub_f32 v{NEG}, 0, v{LA}", 1))
        for i in range(1, 16): f.append((f"v_mov_b32 v{NEG+i}, v{NEG}", 1))
        g = [(f"v_sub_f32 v{s+i}, v{s+i}, v{LA}", 1) for i in range(16)]
        return f, g
    rare = {}
    stubs = []
    def softmax_items(n):
        s = S[n % 2]; p = P[n % 2]; L = L1 if n < 16 else L2
        ex = [(f"v_exp_f32 v{T+k%8}, v{s+k}", 2) for k in range(16)]
        ad = []
        for k in range(16):
            acc = LA if k % 2 == 0 else LB
            if k < 2: ad.append(None)
            elif k < 4: ad.append((f"v_add_f32 v{acc}, v{T+(k-2)%8}, v{T+k%8}", 1))
            else: ad.append((f"v_add_f32 v{acc}, v{acc}, v{T+k%8}", 1))
        cv = [(f"v_cvt_pk_bf16_f32 v{p+e}, v{T+(2*e)%8}, v{T+(2*e+1)%8}", 1) for e in range(8)]
        tail = []
        if n % 16 == 0:
            tail.append((f"v_add_f32 v{L}, v{LA}, v{LB}", 1))
        else:
            key = (n % 2, n >> 4, n % 16 != 15)
            rare[key] = f"K1_RARE_{key[0]}{key[1]}{int(key[2])}"
            tail.append((f"v_add_f32 v{LA}, v{LA}, v{LB}", 1))
            tail.append((f"v_cmp_nge_f32 vcc, s{sTH}, v{LA}", 1))
            def br(n=n, key=key):
                nm = f"{n}{cur['var']}"
                E(f"s_cbranch_vccnz K1_STUB_{nm}")
                E.label(f"K1_BACK_{nm}")
                stubs.append((nm, rare[key]))
            tail.append((br, 1))
            tail.append((f"v_add_f32 v{L}, v{L}, v{LA}", 1))
        return ex, ad, cv, tail
    def softmax_stream(n):
        ex, ad, cv, tail = softmax_items(n)
        f = []
        LAG = opt.get('smlag', 2)
        for k in range(16 + LAG):
            if k < 16: f.append(ex[k])
            kk = k - LAG
            if kk >= 0:
                if ad[kk]: f.append(ad[kk])
                if kk % 2 == 1: f.append(cv[kk // 2])
        return f, tail
    opol = opt.get('opol', 'sc1')
    def epi_items(u, fr, pk):
        t, s2 = fr // 2, fr % 2
        D = (XA if fr % 2 == 0 else XD) if u == 0 else Q + 4 * fr
        f = []
        if u == 0:
            for i in range(8): f.append((f"v_accvgpr_read_b32 v{EP+i}, a{O1+16*t+8*s2+i}", 1))
            src = EP
        else:
            src = QACC + 16 * t + 8 * s2
        if pk:
            for i in range(4): f.append((f"v_pk_mul_f32 v[{src+2*i}:{src+2*i+1}], v[{src+2*i}:{src+2*i+1}], v[{RL}:{RL+1}] op_sel_hi:[1,0]", 1))
        else:
            for i in range(8): f.append((f"v_mul_f32 v{src+i}, v{src+i}, v{RL}", 1))
        for i in range(4): f.append((f"v_cvt_pk_bf16_f32 v{D+i}, v{src+2*i}, v{src+2*i+1}", 1))
        f.append((f"s_mov_b32 s{sTMP}, {u*16*32768 + (fr//4)*4096}", 1))
        f.append((f"buffer_store_dwordx4 v[{D}:{D+3}], v{OD}, s[{SO}:{SO+3}], s{sTMP} offen offset:{(fr%4)*1024} {opol}", DC, f"o{u}"))
        return f
    def rl_items(L):
        return [(f"v_mov_b32 v{RL+1}, v{L}", 1), (f"v_mov_b32 v{RL}, v{L}", 1), (f"v_permlane32_swap_b32 v{RL}, v{RL+1}", 3),
                (f"v_add_f32 v{RL}, v{RL}, v{RL+1}", 1), (f"v_rcp_f32 v{RL}, v{RL}", 2)]
    def items(l): return [f for it in l for f in dma(it)]

    class Strm:
        def __init__(self, its, g0=0, g1=None, lo=None, asap=False, hard=False, hi=None):
            self.its = list(its); self.g0 = g0; self.g1 = g1; self.lo = lo; self.asap = asap; self.hard = hard; self.hi = hi
    def schedule(mf, streams, fixed=None):
        n = len(mf)
        fixed = fixed or {}
        Q_ = []
        total = sum(f[1] for v in fixed.values() for f in v)
        for sm in streams:
            g1 = n if sm.g1 is None else min(sm.g1, n)
            g0 = min(sm.g0, g1 - 1)
            tot = sum(f[1] for f in sm.its); acc = 0; l = []
            total += tot
            prev = 0
            hi = list(sm.hi) if sm.hi else [n] * len(sm.its)
            for i in range(len(hi) - 2, -1, -1): hi[i] = min(hi[i], hi[i + 1])
            for i, f in enumerate(sm.its):
                lo = max(g0, sm.lo[i] if sm.lo else 0, prev); prev = lo
                due = lo if sm.asap else max(lo, g0 + (acc + f[1] * 0.5) * (g1 - g0) / max(tot, 1) - 0.5)
                acc += f[1]
                assert lo <= hi[i], (f, lo, hi[i])
                l.append((f, min(lo, n - 1), due, min(hi[i], max(g1 - 1, min(lo, n - 1))), sm.hard))
            Q_.append(l)
        cap = max(opt.get('cap', 6), total / n)
        carry = 0.0
        for g in range(n):
            m = mf[g]
            if callable(m): m()
            else: E(m)
            used = 0
            for f in fixed.get(g, []): put([f]); used += f[1]
            lim = cap + carry
            while True:
                best = None
                for l in Q_:
                    if not l or l[0][1] > g: continue
                    f, lo, due, hi, hard = l[0]
                    forced = hi <= g or (hard and due <= g)
                    if not forced:
                        if due > g + opt.get('early', 1.5): continue
                        if used + f[1] > lim + 0.01 and not (used == 0): continue
                    key = (0 if forced else 1, due)
                    if best is None or key < best[0]: best = (key, l)
                if best is None: break
                f = best[1].pop(0)[0]
                put([f]); used += f[1]
            carry = max(0.0, min(lim - used, cap - int(cap)))
        for l in Q_: assert not l

    CS = dict(fr=[], nm=0, nr=0)
    def cs_tiles(upto):
        return sorted({d[0] for d in CS['fr'][CS['nr']:upto]}, key=lambda x: int(x[1:]))
    def cs_take(cm, ra):
        m0 = CS['nm']; CS['nm'] = m0 + cm; CS['m0'] = m0
        assert CS['nm'] <= len(CS['fr'])
        mf = [CS['fr'][i][2](i) for i in range(m0, m0 + cm)]
        r1 = min(m0 + cm + ra, len(CS['fr']))
        rd = []
        for i in range(CS['nr'], r1):
            rd.append((i, CS['fr'][i][1](i), i - NWF - m0, CS['fr'][i][0]))
        CS['nr'] = max(CS['nr'], r1)
        return mf, rd, m0
    def q_frags(qs): return [(f"w{q}", (lambda i, q=q, f=f: rd_w(q, f, i)), (lambda i, q=q, f=f: mf_q(q, f, i))) for q in qs for f in range(16)]

    UBASE = 5 * US
    UB = dict(ok=False, first=True)
    def oproj_setup():
        a, b, cc = EP, EP + 1, EP + 2
        f = []
        def sc():
            E(f"""
            s_mul_i32 s{sW5K}, s35, 5120
            s_lshr_b32 s{sA}, s{sM}, 1
            s_mul_i32 s{sA}, s{sA}, 576
            s_and_b32 s{sB}, s{sM}, 1
            s_lshl_b32 s{sN}, s{sB}, 8
            s_add_u32 s{sA}, s{sA}, s{sN}
            s_cmp_eq_u32 s{sB}, 0
            s_cselect_b32 s{sMK}, 0x40000000, 0
            """)
        f.append((sc, 11))
        def srd1():
            E(f"""
            s_cmp_eq_u32 s38, 0
            s_cselect_b32 s{SWO}, s84, s86
            s_cselect_b32 s{SWO+1}, s85, s87
            s_mul_i32 s{sN}, s{sHG}, {512*1152}
            s_add_u32 s{sN}, s{sN}, s{sA}
            s_add_u32 s{SWO}, s{SWO}, s{sN}
            s_addc_u32 s{SWO+1}, s{SWO+1}, 0
            s_sub_u32 s{SWO+2}, {4096*1152}, s{sN}
            """)
        f.append((srd1, 8))
        def srd2():
            E(f"""
            s_lshl_b32 s{sN}, s{sM}, 15
            s_sub_u32 s{SOR}, s{SO}, s{sN}
            s_subb_u32 s{SOR+1}, s{SO+1}, 0
            s_mov_b32 s{SOR+2}, {20*32768}
            s_mul_i32 s{sB}, s35, {16*1152}
            """)
        f.append((srd2, 5))
        for n in range(5):
            io = 1024 * n if n < 4 else 0
            txt = f"""
            v_bfe_u32 v{a}, v{OD}, 4, 6
            v_add_u32 v{a}, {64*n}, v{a}
            v_mul_u32_u24 v{b}, 3277, v{a}
            v_lshrrev_b32 v{b}, 16, v{b}
            v_mul_u32_u24 v{cc}, 20, v{b}
            v_sub_u32 v{a}, v{a}, v{cc}
            v_mul_u32_u24 v{b}, 1152, v{b}
            v_lshlrev_b32 v{cc}, 4, v{a}
            v_lshlrev_b32 v{a}, 26, v{a}
            v_and_b32 v{a}, s{sMK}, v{a}
            v_add3_u32 v{b}, v{b}, v{cc}, v{a}
            v_add_u32 v{b}, s{sB}, v{b}
            v_subrev_u32 v{UD[n]}, {io}, v{b}
            """
            f += [(l.strip(), 1) for l in txt.strip().split('\n')]
        txt = f"""
        v_bfe_u32 v{a}, v{OD}, 6, 2
        v_mul_u32_u24 v{a}, 320, v{a}
        v_bfe_u32 v{b}, v{OD}, 9, 1
        v_mul_u32_u24 v{b}, 2560, v{b}
        v_and_b32 v{cc}, 0x10, v{OD}
        v_add3_u32 v{a}, v{a}, v{b}, v{cc}
        v_and_b32 v{b}, 0x20, v{OD}
        v_lshrrev_b32 v{b}, 2, v{b}
        v_and_b32 v{cc}, 0x100, v{OD}
        v_lshrrev_b32 v{cc}, 3, v{cc}
        v_add3_u32 v{a}, v{a}, v{b}, v{cc}
        v_add_u32 v{UA}, {UBASE}, v{a}
        v_and_b32 v{PV_}, 0x30, v{OD}
        v_lshrrev_b32 v{PV_}, 2, v{PV_}
        """
        f += [(l.strip(), 1) for l in txt.strip().split('\n')]
        return f
    def ubase_setup():
        UB['ok'] = True
        return [(f"v_subrev_u32 v{KA}, {UBASE}, v{UA}", 1), (f"v_subrev_u32 v{KA+1}, {UBASE-3*US}, v{UA}", 1)]
    def publish(u):
        def g():
            fl_off(u, True)
            E(f"v_mov_b32 v{PD}, {3 if u == 1 else 1}")
            E(f"v_lshlrev_b32 v{RL+1}, 8, v{OD}")
            E(f"buffer_store_dword v{PD}, v{RL+1}, s[{SPL}:{SPL+3}], s{sB} offen sc1", f"fl{u}")
            stamp(f'pb{u}', 3)
        return [(g, DC + 4)]
    def poll_ld(u):
        if u == 3: return f"buffer_load_dword v{PD}, v{PV_}, s[{SFL}:{SFL+3}], 0 offen sc1"
        return f"buffer_load_dword v{PD}, v{PV_}, s[{SPL}:{SPL+3}], s{sB} offen sc1"
    def poll_issue(u):
        def g():
            assert u == 3 or 3 in polls
            assert all(f'z{k}' in st['issued'] for k in range(opt.get('nz', 8)))
            if u < 3: fl_off(u, False)
            E(poll_ld(u), f"pl{u}")
        return [(g, DC)]
    polls = []
    def poll_check(u):
        def g():
            stamp(f'pw{u}', 3)
            E(f"s_mov_b32 s{sN}, {hex([1, 2, 1, 0x01010101][u])}")
            if u < 3: fl_off(u, False)
            E(f"v_and_b32 v{PD}, s{sN}, v{PD}")
            E(f"v_cmp_ne_u32_e64 s[100:101], s{sN}, v{PD}")
            E(f"s_cmp_lg_u64 s[100:101], 0")
            E(f"s_cbranch_scc1 K1_POLL_{u}")
            E.label(f"K1_PBACK_{u}")
            polls.append(u)
            stamp(f'pc{u}', 3)
        return [(g, 6)]
    def rot(hs):
        E(f"s_add_u32 s{sN}, s{sM}, {hs & 3}")
        E(f"s_and_b32 s{sN}, s{sN}, 3")
    def ld_u(c):
        A = {}
        def first():
            A['a'] = on_issue(f"u{c}")
            rot(c >> 1)
            E(f"s_mul_i32 s{sOFF}, s{sN}, {128*1152}")
            E(f"s_add_u32 s{sOFF}, s{sOFF}, {(c >> 3)*2048*1152 + (c & 1)*64*1152}")
            E(f"s_add_u32 m0, s{sW5K}, {A['a']}")
        f = [(first, 5)] + [(f"buffer_load_dwordx4 v{UD[i]}, s[{SWO}:{SWO+3}], s{sOFF} offen offset:{1024*i} lds", DC, f"u{c}") for i in range(4)]
        f.append((lambda: E(f"s_add_u32 m0, s{sW5K}, {A['a'] + 4096}"), 1))
        f.append((f"buffer_load_dwordx4 v{UD[4]}, s[{SWO}:{SWO+3}], s{sOFF} offen lds", DC, f"u{c}"))
        return f
    def ld_a(hs):
        k, r = OF[hs]
        def first():
            for h2 in range(hs):
                if OF[h2] == OF[hs]:
                    assert not any(d[0] in (f"u{2*h2}", f"u{2*h2+1}") for d in CS['fr'][CS['m0']:]), (hs, h2)
            if hs == 0: E.wait_tag("o0")
            else: assert (hs >> 2) in polls
            rot(hs)
            E(f"s_lshl_b32 s{sA}, s{sN}, 15")
            if hs >= 4: E(f"s_add_u32 s{sA}, s{sA}, {16*32768}")
        f = [(first, 4)]
        for fr in range(8):
            if fr == 4: f.append((f"s_add_u32 s{sA}, s{sA}, 4096", 1))
            f.append((f"buffer_load_dwordx4 {k}[{r+4*fr}:{r+4*fr+3}], v{OD}, s[{SOR}:{SOR+3}], s{sA} offen offset:{(fr%4)*1024} sc1", DC, f"a{hs}"))
        return f
    def ust(c, f):
        if c in opt.get('utmajor', (15,)): return f % 4, f // 4
        return f // 5, f % 5
    def rd_u(c, f, ri):
        s, t = ust(c, f)
        k, r = WF[ri % NWF]
        def fn(a, jj):
            if a >= UBASE: b, o = UA, UBASE
            else:
                assert UB['ok']
                b, o = (KA, 0) if a < 3 * US else (KA + 1, 3 * US)
            return f"ds_read_b64_tr_b16 {k}[{r+2*jj}:{r+2*jj+1}], v{b} offset:{a - o + (16*s+4*jj)*320 + t*64}"
        return [lds_read(lambda a, jj=jj: fn(a, jj), f"u{c}") for jj in range(2)]
    def mf_u(c, f, ri, first):
        s, t = ust(c, f)
        k, r = WF[ri % NWF]
        kb, rb = OF[c >> 1]; rb += 4 * (4 * (c & 1) + s)
        acc = R('a', ACC + 16 * t, 16)
        return f"v_mfma_f32_32x32x16_bf16 {acc}, {k}[{r}:{r+3}], {kb}[{rb}:{rb+3}], {'0' if first and s == 0 else acc}"
    def u_frags(cs): return [(f"u{c}", (lambda i, c=c, f=f: rd_u(c, f, i)), (lambda i, c=c, f=f: mf_u(c, f, i, c == cs[0]))) for c in cs for f in range(20)]

    def merge(att, cm):
        na, nc = len(att), cm
        seq = []; ia = ic = 0
        while ia < na or ic < nc:
            if ic < nc and (ia >= na or (ic + 1) * na <= ia * nc + opt.get('cbias', 0) * nc): seq.append(('c', ic)); ic += 1
            else: seq.append(att[ia]); ia += 1
        return seq
    def cread_stream(rd, cpos, bpos, newt, m0):
        its = []; lo = []; hi = []
        for i, reads, after, tile in rd:
            g = cpos[after] if after >= 0 else 0
            if tile in newt: g = max(g, bpos)
            assert i - m0 >= len(cpos) or cpos[i - m0] > g, "fragment read after its use"
            h = 10**6 if i - m0 >= len(cpos) else max(g, cpos[i - m0] - 3)
            for x in reads: its.append(x); lo.append(g); hi.append(h)
        return Strm(its, lo=lo, asap=True, hi=hi)

    def p0(plan):
        PREF.update(plan.get('pref0', {}))
        stamp('i0', 3)
        for it in plan['init']: put(dma(it))
        stamp('i1', 3)
        setup_rest()
        stamp('i2', 3)
        for it in plan.get('init2', []): put(dma(it))
        stamp('iss')
        xr = plan.get('xread', {q - 1: [q] for q in range(9)})
        for q in xr.get(-1, []): put(rd_x(q))
        put(items(plan['ld'].get(('q', -1), [])))
        CS.update(fr=q_frags(range(9)), nm=0, nr=0)
        LAGP = plan.get('lagp', 8)
        for q in range(10):
            cm = 16 - LAGP if q == 0 else (16 if q < 9 else LAGP)
            if cm == 0: continue
            tags = [f"w{q}"] if q < 9 else ["k0"] + plan['prew']
            fixed = {}; bp = 0
            if q == 0 or LAGP == 0:
                barrier(*tags)
                if q == 0: stamp('b0')
                _, rd, _ = cs_take(0, NWF)
                for r in rd: put(r[1])
            else:
                bp = plan.get('bposp', 2)
                fixed[bp] = [(lambda tags=tags: barrier(*tags), 2)]
            mf, rd, m0 = cs_take(cm, LAGP)
            cpos = list(range(cm))
            sts = [cread_stream(rd, cpos, bp, tags, m0), Strm(items(plan['ld'].get(('q', q), [])), g0=bp, g1=plan.get('pspan', 16))]
            if q < 9: sts.append(Strm([x for qq in xr.get(q, []) for x in rd_x(qq)], g0=cm - 2))
            if q == 9:
                sts.append(Strm([x for s in range(8) for x in rd_k(0, s)] + items(plan['ld'].get('pre', [])), g0=bp))
            schedule(mf, sts, fixed)
            stamp(f'c{q}', 2)
        stamp('p0')
        if LAGP == 0:
            barrier("k0", *plan['prew'])
            for s in range(8): put(rd_k(0, s))
            put(items(plan['ld'].get('pre', [])))
        CS.update(fr=q_frags(range(9, 18)), nm=0, nr=0)
        _, rd, _ = cs_take(0, NWF)
        cvt_q()
        schedule([mf_qk(0, s) for s in range(8)], [Strm([rd_k(1, s)[0] for s in range(8)], lo=list(range(8)), asap=True),
                                                   Strm([x for r in rd for x in r[1]])])
        f, g = first_max(0)
        cm = plan['cm'][-1]
        mf, rd, m0 = cs_take(cm, plan.get('ra', 8))
        schedule(mf, [cread_stream(rd, list(range(cm)), 0, (), m0), Strm(f + g, g0=1), Strm(items(plan['ld'].get('pre2', [])))])
        stamp('pre')
    PUB = opt.get('pub', 18)
    def step(j, plan):
        hasqk = j + 1 < 32; haspv = j >= 1; hassm = j < 32
        if j == 16:
            att = [('pv', f) for f in range(8)] + [('qk', s) for s in range(8)]
        elif hasqk and haspv:
            att = [('qk', 0)]
            for s in range(1, 8): att += [('qk', s), ('pv', s - 1)]
            att += [('pv', 7)]
        elif hasqk: att = [('qk', s) for s in range(8)]
        else: att = [('pv', f) for f in range(8)]
        if j == plan.get('ustart'):
            assert CS['nm'] == len(CS['fr']) and j >= 18 and opt['uorder'][-1] == 15
            CS.update(fr=u_frags(opt['uorder']), nm=0, nr=0)
        cmd = plan.get('cm', {}); ra = plan.get('ra', 8)
        cm = cmd.get(j, 0)
        bpos = -1; newt = ()
        fixed = {}
        if j % 2 == 0 and j <= opt.get('lastbar', 30):
            G = j // 2
            bpos = opt.get('bpos', 2)
            newt = cs_tiles(CS['nm'] + cm + cmd.get(j + 1, 0) + ra)
            newt = [t for t in newt if t not in st['visible']]
            tags = [f"k{G+1}", f"v{G}"] + newt
            if j == PUB: tags.append("o0")
            fixed[bpos] = [(lambda tags=tags: barrier(*tags), 2)]
            if j == PUB: fixed[bpos] += publish(0)
        if j in plan.get('pref', {}): PREF.update(plan['pref'][j])
        while ra > 0 and any(t not in st['visible'] and t not in newt for t in cs_tiles(CS['nm'] + cm + ra)): ra -= 1
        cmf, rd, m0 = cs_take(cm, ra)
        seq = merge(att, cm)
        n = len(seq)
        mf = [mf_qk(j + 1, i) if k == 'qk' else mf_pv(j - 1, i) if k == 'pv' else cmf[i] for k, i in seq]
        cpos = [g for g, (k, i) in enumerate(seq) if k == 'c']
        lastatt = max(g for g, (k, i) in enumerate(seq) if k != 'c')
        sts = []
        if hassm:
            sm, tail = softmax_stream(j)
            if j == 16:
                f, g = first_max(16)
                q0 = min(gi for gi, (k, i) in enumerate(seq) if k == 'qk')
                a_ = rl_items(L1) + f; b_ = g + sm + tail
                sts.append(Strm(a_ + b_, 0, n, hi=[q0 - 2] * len(a_) + [n] * len(b_)))
            else:
                lo = [0] * (len(sm) + len(tail))
                if len(tail) > 1:
                    lo[-2] = lastatt
                sts.append(Strm(sm + tail, 0, n, lo=lo))
        its = []; lo = []
        for gi, (k, i) in enumerate(seq):
            g = max(gi, bpos)
            r = []
            if k == 'qk' and j + 2 < 32: r = rd_k(j + 2, i)
            if k == 'pv' and j < 32: r = rd_v(j, i, pv_order(j))
            its += r; lo += [g] * len(r)
        sts.append(Strm(its, lo=lo, asap=True))
        if j == 0:
            sts.append(Strm([x for f in range(8) for x in rd_v(0, f, STD)], bpos, n))
        sts.append(cread_stream(rd, cpos, bpos, newt, m0))
        if j == 16:
            sts.append(Strm(epi_items(0, 0, False) + epi_items(0, 1, False), 8, n))
        if j == 17:
            sts.append(Strm([x for fr in range(2, 8) for x in epi_items(0, fr, False)], 0, n - 2))
        if j == 15:
            sts.append(Strm(oproj_setup(), 0, n))
        if j == 30:
            fixed.setdefault(0, []).extend(ubase_setup())
        g0, g1 = plan.get('span', {}).get(j, (bpos + 1, n))
        sts.append(Strm(items(plan['ld'].get(('s', j), [])), max(g0, bpos + 1), min(g1, n)))
        if j == 32:
            put(rl_items(L2))
            pv = [g for g, (k, i) in enumerate(seq) if k == 'pv']
            its = []; lo = []
            for t in range(4):
                e = epi_items(1, 2*t, False) + epi_items(1, 2*t+1, False)
                its += e; lo += [min(pv[2*t+1] + 2, n - 1)] * len(e)
            sts.append(Strm(its, lo=lo, asap=True))
        schedule(mf, sts, fixed)
        if j == 14: cvt_q()
        stamp(f's{j}', 1 if j in (15, 31) else 2)
    import copy
    fronts = opt['fronts']; JOIN = opt.get('join', 15); back = opt['back']
    def front(plan, var):
        cur['plan'] = plan; cur['var'] = var
        p0(plan)
        for j in range(JOIN): step(j, plan)
        cur['plan'] = None; cur['var'] = ''
    if len(fronts) == 1:
        front(fronts[0], '')
    else:
        E(f"s_bitcmp1_b32 s2, {opt.get('pbit', 3)}")
        E("s_cbranch_scc1 K1_P0B")
        save = (copy.deepcopy(st), list(E.vm), list(E.lgkm), nst[0], list(stn))
        front(fronts[0], 'a')
        endA = (copy.deepcopy(st), [t for t, d in E.vm], list(stn))
        E.wait_lgkm(0)
        E("s_branch K1_P0J")
        E.label("K1_P0B")
        st.clear(); st.update(copy.deepcopy(save[0])); E.vm = list(save[1]); E.lgkm = list(save[2]); nst[0] = save[3]; stn[:] = save[4]
        front(fronts[1], 'b')
        E.wait_lgkm(0)
        E.label("K1_P0J")
        E.nop(12)
        A_, B_ = endA[1], [t for t, d in E.vm]
        n = min(len(A_), len(B_))
        assert A_[len(A_)-n:] == B_[len(B_)-n:], (A_, B_)
        if len(A_) > len(B_): E.vm = [(t, set()) for t in A_]
        assert endA[2] == stn
        SA = endA[0]
        assert SA['issued'] == st['issued'], (SA['issued'] ^ st['issued'])
        assert SA['epoch'] == st['epoch']
        for p in set(SA['live']) | set(st['live']):
            full = lambda s_: s_['nread'].get(p, 0) == NREADS[p[0]]
            assert SA['nread'].get(p, 0) == st['nread'].get(p, 0), p
            if not full(st) or SA['lastread'][p] == SA['epoch'] or st['lastread'][p] == st['epoch']:
                assert p in SA['live'] and p in st['live'] and SA['addr'][p] == st['addr'][p], p
                if p in st['lastread']: st['lastread'][p] = max(st['lastread'][p], SA['lastread'][p])
        st['visible'] &= SA['visible']
    cur['plan'] = back
    for j in range(JOIN, 33): step(j, back)
    PREF['u'] = opt.get('tailu', [5, 6, 7, 0, 1, 2, 3, 4])
    PS = 10240
    PT = [S[0], S[1]]
    def pstore(t):
        f = []
        tm = PT[t % 2]
        for h in range(2):
            for i in range(8): f.append((f"v_accvgpr_read_b32 v{tm+8*h+i}, a{ACC+16*t+8*h+i}", 1))
            for i in range(4): f.append((f"v_cvt_pk_bf16_f32 v{tm+8*h+i}, v{tm+8*h+2*i}, v{tm+8*h+2*i+1}", 1))
            so = {0: '0', 1: '0', 2: f's{sOFF}', 3: f's{sOFF}', 4: f's{sA}'}[t]
            f.append((f"buffer_store_dwordx4 v[{tm+8*h}:{tm+8*h+3}], v{KA+2}, s[{SPW}:{SPW+3}], {so} offen offset:{((2*t+h)%4)*1024} {opol}", DC, "ps"))
        return f
    def tail_setup():
        def g1():
            E(f"""
            s_mul_i32 s{sN}, s{sM}, {16*PS}
            s_add_u32 s{sN}, s{sN}, {1<<20}
            s_add_u32 s{SPW}, s82, s{sN}
            s_addc_u32 s{SPW+1}, s83, 0
            s_mul_i32 s{sN}, s{sHG}, {4*PS}
            s_add_u32 s{SPR}, s{SPW}, s{sN}
            s_addc_u32 s{SPR+1}, s{SPW+1}, 0
            s_mov_b32 s{SPR+2}, {4*PS}
            s_mul_i32 s{sN}, s{sHG}, {PS}
            s_add_u32 s{SPW}, s{SPW}, s{sN}
            s_addc_u32 s{SPW+1}, s{SPW+1}, 0
            s_sub_u32 s{SPW+2}, {16*PS}, s{sN}
            """)
        def g2():
            E(f"""
            v_and_b32 v{KA+3}, 0x3f0, v{OD}
            s_mul_i32 s{sN}, s35, {4*PS}
            s_cmp_eq_u32 s35, s{sHG}
            s_cselect_b32 s{sN}, 0x20000000, s{sN}
            v_add_u32 v{KA+2}, s{sN}, v{KA+3}
            s_lshl_b32 s{sN}, s35, 11
            v_add_u32 v{KA+7}, s{sN}, v{KA+3}
            s_lshl_b32 s{sN}, s35, 10
            v_add_u32 v{KA+3}, s{sN}, v{KA+3}
            s_cmp_ge_u32 s35, 2
            s_cselect_b32 s{sR1}, 0x40000000, s{sMK}
            v_add_u32 v{KA+4}, s{sR1}, v{KA+3}
            v_bfe_u32 v{KA+5}, v{OD}, 4, 5
            v_mul_u32_u24 v{KA+5}, 2304, v{KA+5}
            v_and_b32 v{KA+6}, 0x200, v{OD}
            v_lshrrev_b32 v{KA+6}, 5, v{KA+6}
            s_lshl_b32 s{sN}, s35, 5
            v_add3_u32 v{KA+5}, v{KA+5}, v{KA+6}, s{sN}
            v_and_b32 v{KA+6}, 0x3f0, v{OD}
            """)
        def g3():
            E(f"""
            s_lshl_b32 s{sN}, s37, 2
            s_add_u32 s{sN}, s{sN}, s{sHG}
            s_mul_i32 s{sN}, s{sN}, {32*2304}
            s_mul_i32 s{sTMP}, s38, 1152
            s_add_u32 s{sN}, s{sN}, s{sTMP}
            s_lshr_b32 s{sTMP}, s{sM}, 1
            s_mul_i32 s{sTMP}, s{sTMP}, 576
            s_add_u32 s{sN}, s{sN}, s{sTMP}
            s_and_b32 s{sTMP}, s{sM}, 1
            s_lshl_b32 s{sTMP}, s{sTMP}, 8
            s_add_u32 s{sN}, s{sN}, s{sTMP}
            s_add_u32 s{SD}, s88, s{sN}
            s_addc_u32 s{SD+1}, s89, 0
            s_sub_u32 s{SD+2}, {1024*2304}, s{sN}
            """)
        return [(g1, 6), (g2, 6), (g3, 6)]
    ops = opt['tail']
    for oi, op in enumerate(ops):
        if op[0] == 'mf':
            cm = op[1] if op[1] >= 0 else len(CS['fr']) - CS['nm']
            ra = 8
            while ra > 0 and any(t not in st['visible'] for t in cs_tiles(CS['nm'] + cm + ra)): ra -= 1
            if CS['nr'] < min(CS['nm'] + 2, len(CS['fr'])):
                _, rd, _ = cs_take(0, NWF)
                for r in rd: put(r[1])
            mf, rd, m0 = cs_take(cm, ra)
            sts = [cread_stream(rd, list(range(cm)), 0, (), m0), Strm(items(op[2]) if len(op) > 2 else [])]
            if len(op) > 3 and op[3] == 'setup':
                assert all(f"u{c}" in st['issued'] for c in range(8)) and CS['nm'] < len(CS['fr'])
                sts.append(Strm(tail_setup()))
            if CS['nm'] == len(CS['fr']):
                assert len(op) <= 2
                E(f"s_mov_b32 s{sOFF}, 4096")
                E(f"s_add_u32 s{sA}, s{sMK}, 8192")
                its = []; lo = []
                for t in range(4):
                    e = pstore(t); its += e; lo += [cm - 20 + 4 * t + 3 + 2] * len(e)
                sts.append(Strm(its, lo=lo, asap=True))
            schedule(mf, sts)
            if CS['nm'] == len(CS['fr']): put(pstore(4))
        elif op[0] == 'bar': barrier(*op[1:])
        elif op[0] == 'pub': put(publish(op[1]))
        elif op[0] == 'ld': put(items(op[1]))
        elif op[0] == 'st': stamp(op[1])
        else: raise ValueError(op)
    stamp('oend')
    LP = [a for a in range(0, 65536 - 24576 + 1, 4096) if all(dead(p, 'u') for p in overl(a, 24576))][0]
    E(f"s_cmp_lg_u32 s35, s{sHG}")
    E("s_cbranch_scc1 K1_NOLP")
    for k in range(20):
        E(f"ds_write_b128 v{KA+6}, a[{ACC+4*k}:{ACC+4*k+3}] offset:{LP + k*1024}")
    E.label("K1_NOLP")
    barrier("ps")
    put(publish(2))
    stamp('pub2')
    put(poll_issue(2))
    RB_ = QACC
    for r in range(3):
        for h in range(2):
            d = RB_ + r * 8 + 4 * h
            E(f"ds_read_b128 v[{d}:{d+3}], v{KA+7} offset:{LP + r*8192 + h*1024}")
    for i in range(3):
        E(f"""
        s_add_u32 s{sTMP}, s{sHG}, {i+1}
        s_and_b32 s{sTMP}, s{sTMP}, 3
        s_mul_i32 s{[sOFF, sA, sXC][i]}, s{sTMP}, {PS}
        """)
    E(f"v_add_u32 v{KA+2}, 4096, v{KA+3}")
    E(f"v_add_u32 v{KA+4}, 8192, v{KA+4}")
    put(poll_check(2))
    stamp('poll3')
    LB_ = RB_ + 24
    for r in range(3):
        for i in range(3):
            d = LB_ + (r * 3 + i) * 4
            E(f"buffer_load_dwordx4 v[{d}:{d+3}], v{[KA+3, KA+2, KA+4][r]}, s[{SPR}:{SPR+3}], s{[sOFF, sA, sXC][i]} offen sc1", "pr")
    for r in range(3):
        base = RB_ + r * 8
        for i in range(3):
            d = LB_ + (r * 3 + i) * 4
            for e in range(4):
                E(f"v_lshlrev_b32 v{T+2*e}, 16, v{d+e}")
                E(f"v_and_b32 v{T+2*e+1}, 0xffff0000, v{d+e}")
            for e in range(8):
                E(f"v_add_f32 v{base+e}, v{base+e}, v{T+e}")
        for i in range(4):
            E(f"v_cvt_pk_bf16_f32 v{base+i}, v{base+2*i}, v{base+2*i+1}")
        E(f"buffer_store_dwordx4 v[{base}:{base+3}], v{KA+5}, s[{SD}:{SD+3}], {'0' if r < 2 else f's{sR1}'} offen offset:{r*128} {opt.get('dpol', '')}")
    E.label("K1_FIN")
    if stamps:
        E.wait_vm(0, force=True)
        stamp('fin')
        E(f"""
        s_cmp_lg_u32 s35, 0
        s_cbranch_scc1 K1_END
        s_lshl_b32 s{sTMP}, s2, 7
        s_add_u32 s{sTMP}, s{sTMP}, 65536
        s_add_u32 s{SO}, s80, s{sTMP}
        s_addc_u32 s{SO+1}, s81, 0
        s_mov_b32 s{SO+2}, 128
        v_mov_b32 v1, 0
        """)
        for i in range(nst[0]):
            E(f"v_mov_b32 v2, s{STR[i]}")
            E(f"buffer_store_dword v2, v1, s[{SO}:{SO+3}], 0 offen offset:{4*i}")
            E.wait_vm(0)
    E.label("K1_END")
    E("s_endpgm")
    for u in polls:
        E.raw(f"""K1_POLL_{u}:
    s_mov_b32 s{sRET}, 0
K1_PLOOP_{u}:
    {poll_ld(u)}
    s_add_u32 s{sRET}, s{sRET}, 1
    s_waitcnt vmcnt(0)
    v_and_b32 v{PD}, s{sN}, v{PD}
    v_cmp_ne_u32_e64 s[100:101], s{sN}, v{PD}
    s_cmp_gt_u32 s{sRET}, 0x30000
    s_cbranch_scc1 K1_PBACK_{u}
    s_cmp_lg_u64 s[100:101], 0
    s_cbranch_scc1 K1_PLOOP_{u}
    s_branch K1_PBACK_{u}""")
    for n, lab in stubs:
        E.label(f"K1_STUB_{n}")
        E.raw(f"    s_call_b64 s[{sRET}:{sRET+1}], {lab}")
        E.raw(f"    s_branch K1_BACK_{n}")
    for key, lab in rare.items():
        par, u, fix = key
        s = S[par]; sn = S[1 - par]; p = P[par]; L = L1 if u == 0 else L2
        Rr = Emit()
        Rr.label(lab)
        Rr.nop(16)
        for f in max_tree(s, LA, LB): Rr(f[0])
        Rr(f"v_max_f32 v{LA}, 0, v{LA}")
        Rr(f"v_sub_f32 v{LB}, 0, v{LA}")
        Rr(f"v_exp_f32 v{LB}, v{LB}")
        for i in range(16):
            Rr(f"v_sub_f32 v{s+i}, v{s+i}, v{LA}")
            Rr(f"v_sub_f32 v{NEG+i}, v{NEG+i}, v{LA}")
            if fix: Rr(f"v_sub_f32 v{sn+i}, v{sn+i}, v{LA}")
        Rr(f"v_mul_f32 v{L}, v{L}, v{LB}")
        for i in range(64):
            if u == 0:
                Rr(f"v_accvgpr_read_b32 v{T}, a{O1+i}")
                Rr(f"v_mul_f32 v{T}, v{T}, v{LB}")
                Rr(f"v_accvgpr_write_b32 a{O1+i}, v{T}")
            else:
                Rr(f"v_mul_f32 v{QACC+i}, v{QACC+i}, v{LB}")
        Rr(f"v_mov_b32 v{LA}, 0")
        for e in range(8):
            Rr(f"v_exp_f32 v{T}, v{s+2*e}")
            Rr(f"v_exp_f32 v{T+1}, v{s+2*e+1}")
            Rr(f"v_add_f32 v{LA}, v{LA}, v{T}")
            Rr(f"v_add_f32 v{LA}, v{LA}, v{T+1}")
            Rr(f"v_cvt_pk_bf16_f32 v{p+e}, v{T}, v{T+1}")
        Rr.nop(4)
        Rr(f"s_setpc_b64 s[{sRET}:{sRET+1}]")
        E.lines += Rr.lines
    return E, dict(nops=E.nops, waits=E.nwait, count=E.count, vgpr=va.n, nst=nst[0], stn=stn)

if __name__ == '__main__':
    pass
```

```python
import sys, copy
from asmlib import *
import h2
from genh import kv_lead, REM, kvA, HDR
def build(out, o={}):
    E, i = h2.gen(copy.deepcopy(o))
    print(out, i)
    open(out, 'w').write(wrap_single(E.text(), 256, 256, 163840, 512, accum=256, header=HDR))
def front_std(kv):
    ld = {('q', 0): ['w2', 'x2', 'k0'], ('q', 1): ['w3', 'x3', 'k1'], ('q', 2): ['w4', 'x4', 'k2'], ('q', 3): ['w5', 'x5', 'k3'],
          ('q', 4): ['w6', 'x6', 'v0'], ('q', 5): ['w7', 'x7'], ('q', 6): ['w8', 'x8'], ('q', 7): ['w9', 'v1'], ('q', 8): ['w10', 'v2'],
          'pre': ['w11']}
    cm = {-1: 10}
    for j in range(14): cm[j] = 10 if j % 2 == 0 or j == 13 else 9
    for G in range(8):
        l = ([f"w{12+G}"] if 12 + G < 18 else []) + kv.get(G, [])
        ld[('s', 2 * G)] = l[:2] if G < 7 else l
        if G < 7: ld[('s', 2 * G + 1)] = l[2:]
    ld[('s', 1)] = ld[('s', 1)] + ['n0']; ld[('s', 7)] = ld[('s', 7)] + ['n1']
    return dict(init=['x0', 'w0', 'x1', 'w1'], ld=ld, cm=cm, prew=['w9', 'w10'])
def back_kv(kv, early=()):
    ld = {}
    for G in range(8, 16):
        l = kv.get(G, [])
        if G in early: ld[('s', 2 * G)] = list(l); ld[('s', 2 * G + 1)] = []
        else: ld[('s', 2 * G)] = l[:1]; ld[('s', 2 * G + 1)] = l[1:]
    ld[('s', 15)] = []; ld[('s', 32)] = []
    return ld
```

```python
from emit import *
import math, struct

def f32bits(x):
    return struct.unpack('<I', struct.pack('<f', x))[0]

O_BASE = 1 << 20
SL = 16384

class Alloc:
    def __init__(self, start): self.n = start
    def get(self, k=1, al=1):
        self.n = (self.n + al - 1) // al * al
        r = self.n; self.n += k; return r

def gen(opt):
    stamps = opt.get('stamps', False)
    kvpol = opt.get('kvpol', 'nt')
    qpol = opt.get('qpol', '')
    thresh = opt.get('thresh', 4096.0)
    DC = opt.get('dmacost', 5)
    E = Emit()
    va = Alloc(1)
    KA = va.get(8); VA = va.get(4); WA = va.get(4); KD = va.get(4); VD = va.get(1); WD = va.get(4); OD = 0
    RL = va.get(2, 2)
    L1 = va.get(1); L2 = va.get(1); LA = va.get(1); LB = va.get(1)
    XA = va.get(4, 4); XD = va.get(4, 4)
    S = [va.get(16, 4), va.get(16, 4)]
    NEG = va.get(16, 4)
    P = [va.get(8, 4), va.get(8, 4)]
    T = va.get(8, 4)
    WFV = va.get(8, 4)
    EP = va.get(8, 4)
    QACC = va.get(64, 4)
    Q = va.get(32, 4)
    KF = va.get(32, 4)
    assert va.n <= 256, va.n
    X = 0; O1 = 144; VF = 208; WFA = 240
    WF = [('a', WFA + 4 * i) for i in range(4)] + [('v', WFV), ('v', WFV + 4), ('v', EP), ('v', EP + 4)]
    NWF = len(WF)
    ACC = 0
    OF = {0: ('a', 80), 1: ('a', 112), 2: ('a', 144), 3: ('a', 176), 4: ('v', Q)}
    OF.update(opt.get('of2', {5: ('a', 80), 6: ('a', 112), 7: ('a', VF)}))
    UD = [WD, WD + 1, WD + 2, WD + 3, WA + 1]; UA = WA; PV_ = WA + 2; PD = WA + 3
    SX, SW, SK, SV, SO = 4, 8, 12, 16, 20
    SWO, SOR, SFL, SPL = SX, SW, 64, 68
    SPW, SPR, SD = SK, SV, SO
    sW4K, sXC, sWC, sOFF, sTH, sRET, sSC, sTMP = 24, 25, 26, 27, 28, 30, 32, 34
    sR1, sA, sB, sN, sM, sHG, sW5K, sMK = 92, 93, 94, 95, 96, 97, 98, 99
    nst = [0]
    STR = list(range(40, 64)) + list(range(72, 80))
    stn = []
    def stamp(name='', lvl=1):
        if stamps and (lvl <= stamps or name in opt.get('stl', ())):
            E(f"{opt.get('clk', 's_memrealtime')} s[100:101]")
            E.raw("    s_waitcnt lgkmcnt(0)"); E.lgkm = []
            E(f"s_mov_b32 s{STR[nst[0]]}, s100")
            nst[0] += 1; stn.append(name)
    c = math.log2(math.e) / math.sqrt(128.0)

    US = 20480
    PREF = dict(k=[0, 1, 2, 3], v=[3, 4, 5, 6], w=[7, 8, 9, 6], x=[5, 6], u=[5, 6, 7])
    PREF.update(opt.get('pref', {}))
    st = dict(epoch=0, live=[], lastread={}, nread={}, visible=set(), issued=set(), addr={})
    NREADS = {'x': 4, 'w': 32, 'k': 16, 'v': 32, 'u': 40}
    cur = dict(plan=None, var='')
    def size(item): return US if item[0] == 'u' else SL
    def overl(a, sz): return [p for p in st['live'] if st['addr'][p] < a + sz and a < st['addr'][p] + size(p)]
    def dead(p, item):
        if st['nread'].get(p, 0) != NREADS[p[0]]: return False
        if p[0] == 'x' and item[0] != 'u': return True
        return st['epoch'] > st['lastread'][p]
    def on_issue(item):
        ov = dict(opt.get('slotmap', {})); ov.update((cur['plan'] or {}).get('slotmap', {}))
        cands = [ov[item]] if item in ov else PREF[item[0]]
        sz = size(item)
        fr = [c_ for c_ in cands if all(dead(p, item) for p in overl(c_ * sz, sz))]
        assert fr, (item, cands, [(p, st['addr'][p]) for p in st['live']])
        a = fr[0] * sz
        for p in overl(a, sz):
            if p[0] == 'x':
                E.wait_lgkm(len(E.lgkm) - 1 - max([i for i, d in enumerate(E.lgkm) if ('tag', p) in d], default=-1))
            st['live'].remove(p)
        st['live'].append(item); st['issued'].add(item); st['addr'][item] = a
        return a
    def on_read(item):
        assert item in st['live'], item
        if item[0] == 'x':
            E.wait_tag(item)
        else:
            assert item in st['visible'], item
        st['nread'][item] = st['nread'].get(item, 0) + 1
        st['lastread'][item] = st['epoch']
        return st['addr'][item]
    def lds_read(fn, item):
        def f():
            a = on_read(item)
            t = fn(a)
            off = int(t.split('offset:')[1]); assert 0 <= off < 65536, t
            E(t)
            E.lgkm[-1].add(('tag', item))
        return (f, 1)
    def barrier(*tags):
        E.wait_lgkm(0)
        stamp(f"B{st['epoch']}a", 3)
        E.wait_tag(*tags)
        stamp(f"B{st['epoch']}b", 3)
        E("s_barrier")
        stamp(f"B{st['epoch']}c", 3)
        st['epoch'] += 1
        pend = {t for t, d in E.vm}
        for it in st['issued']:
            if it not in pend: st['visible'].add(it)
    def put(fl):
        for f in fl:
            if callable(f[0]): f[0]()
            else: E(f[0], f[2] if len(f) > 2 else None)

    E(f"""
    s_cmp_ge_u32 s2, 256
    s_cbranch_scc1 K1_END
    s_load_dwordx8 s[64:71], s[0:1], 0
    s_load_dwordx8 s[72:79], s[0:1], 40
    s_load_dwordx2 s[80:81], s[0:1], 96
    s_load_dwordx2 s[84:85], s[0:1], 32
    s_load_dwordx2 s[86:87], s[0:1], 72
    s_load_dwordx4 s[88:91], s[0:1], 80
    """)
    stamp('start')
    E(f"""
    v_lshrrev_b32 v{T}, 6, v0
    v_and_b32 v0, 63, v0
    v_readfirstlane_b32 s35, v{T}
    s_and_b32 s36, s2, 7
    s_lshr_b32 s37, s2, 3
    s_lshr_b32 s38, s36, 2
    s_and_b32 s36, s36, 3
    s_lshl_b32 s36, s36, 2
    s_and_b32 s39, s37, 3
    s_add_u32 s36, s36, s39
    s_lshr_b32 s37, s37, 2
    s_lshl_b32 s{sW4K}, s35, 12
    s_lshl_b32 s39, s39, 1
    s_add_u32 s39, s39, s37
    s_cmp_ge_u32 s39, 9
    s_cselect_b32 s{sTMP}, 9, 0
    s_sub_u32 s39, s39, s{sTMP}
    s_mul_i32 s39, s39, {opt.get('rot', 1)}
    s_lshl_b32 s{sXC}, s39, 7
    s_lshl_b32 s{sWC}, s39, 19
    """)
    if opt.get('kvrot'):
        E({1: "s_mov_b32 s29, s37", 2: "s_mov_b32 s29, s36", 3: "s_xor_b32 s29, s36, s37"}[opt['kvrot']])
        E("s_and_b32 s29, s29, 7")
        E("s_lshl_b32 s29, s29, 14")
    t0, t1, t2, t3, t4, t5 = T, T + 1, T + 2, T + 3, T + 4, T + 5
    E(f"""
    v_lshrrev_b32 v{t0}, 3, v0
    s_lshl_b32 s{sTMP}, s35, 5
    v_add_u32 v{t0}, s{sTMP}, v{t0}
    v_mul_u32_u24 v{t0}, 1152, v{t0}
    v_and_b32 v{t1}, 7, v0
    v_lshrrev_b32 v{t2}, 4, v0
    v_xor_b32 v{t3}, v{t1}, v{t2}
    v_xor_b32 v{t4}, 4, v{t3}
    v_lshlrev_b32 v{t3}, 4, v{t3}
    v_lshlrev_b32 v{t4}, 4, v{t4}
    v_add_u32 v{XD}, v{t0}, v{t3}
    v_add_u32 v{XD+1}, v{t0}, v{t4}
    v_add_u32 v{XD+2}, {16*1152-2048}, v{XD}
    v_add_u32 v{XD+3}, {24*1152-3072}, v{XD+1}
    v_add_u32 v{XD+1}, {8*1152-1024}, v{XD+1}
    v_and_b32 v{t1}, 15, v0
    v_lshlrev_b32 v{t3}, 2, v{t2}
    v_xor_b32 v{t3}, v{t1}, v{t3}
    v_lshlrev_b32 v{t3}, 4, v{t3}
    s_lshl_b32 s{sTMP}, s35, 4
    v_add_u32 v{t0}, s{sTMP}, v{t2}
    v_lshlrev_b32 v{t4}, 13, v{t0}
    v_add_u32 v{WD}, v{t4}, v{t3}
    v_add_u32 v{WD+1}, {4*8192-1024}, v{WD}
    v_add_u32 v{WD+2}, {8*8192-2048}, v{WD}
    v_add_u32 v{WD+3}, {12*8192-3072}, v{WD}
    v_lshlrev_b32 v{t4}, 8, v{t0}
    v_add_u32 v{VD}, v{t4}, v{t3}
    """)
    for n in range(4):
        E(f"""
        v_add_u32 v{t3}, {4*n}, v{t2}
        v_xor_b32 v{t3}, v{t1}, v{t3}
        v_lshlrev_b32 v{t3}, 4, v{t3}
        v_add_u32 v{KD+n}, v{t4}, v{t3}
        """)
    E.raw("    s_waitcnt lgkmcnt(0)")
    E(f"""
    s_cmp_eq_u32 s38, 0
    s_cselect_b32 s{SX}, s64, s72
    s_cselect_b32 s{SX+1}, s65, s73
    s_cselect_b32 s{SK}, s66, s74
    s_cselect_b32 s{SK+1}, s67, s75
    s_cselect_b32 s{SV}, s68, s76
    s_cselect_b32 s{SV+1}, s69, s77
    s_cselect_b32 s{SW}, s70, s78
    s_cselect_b32 s{SW+1}, s71, s79
    s_mul_i32 s{sTMP}, s37, 147456
    s_add_u32 s{SX}, s{SX}, s{sTMP}
    s_addc_u32 s{SX+1}, s{SX+1}, 0
    s_mov_b32 s{SX+2}, 147456
    s_mov_b32 s{SX+3}, 0x20000
    s_lshl_b32 s{sTMP}, s36, 8
    s_add_u32 s{SW}, s{SW}, s{sTMP}
    s_addc_u32 s{SW+1}, s{SW+1}, 0
    s_sub_u32 s{SW+2}, {576*8192}, s{sTMP}
    s_mov_b32 s{SW+3}, 0x20000
    s_lshl_b32 s{sTMP}, s37, 5
    s_add_u32 s{sTMP}, s{sTMP}, s36
    s_lshl_b32 s82, s{sTMP}, 17
    s_add_u32 s{SK}, s{SK}, s82
    s_addc_u32 s{SK+1}, s{SK+1}, 0
    s_mov_b32 s{SK+2}, {17*131072}
    s_mov_b32 s{SK+3}, 0x20000
    s_add_u32 s{SV}, s{SV}, s82
    s_addc_u32 s{SV+1}, s{SV+1}, 0
    s_mov_b32 s{SV+2}, {17*131072}
    s_mov_b32 s{SV+3}, 0x20000
    """)
    def adv(s, step, lim):
        E(f"""
        s_add_u32 s{s}, s{s}, {step}
        s_cmp_eq_u32 s{s}, {lim}
        s_cselect_b32 s{s}, 0, s{s}
        """)
    def dma(item):
        k, i = item[0], int(item[1:])
        if k == 'r': return rd_x(i)
        if k == 'z': return arm(i)
        if k == 'y': return zero_flags()
        if k == 'u': return ld_u(i)
        if k == 'a': return ld_a(i)
        if k == 'p': return poll_issue(i)
        if k == 'c': return poll_check(i)
        def first():
            a = on_issue(item)
            E(f"s_add_u32 m0, s{sW4K}, {a}")
        f = [(first, 1)]
        if k == 'x':
            for n in range(4):
                f.append((f"buffer_load_dwordx4 v{XD+n}, s[{SX}:{SX+3}], s{sXC} offen offset:{1024*n} {qpol} lds", DC, item))
            f.append((lambda: adv(sXC, 128, 1152), 3))
        elif k == 'w':
            f.append((f"s_add_u32 s{sOFF}, s{sWC}, {(i//9)*4096}", 1))
            for n in range(4):
                f.append((f"buffer_load_dwordx4 v{WD+n}, s[{SW}:{SW+3}], s{sOFF} offen offset:{1024*n} {qpol} lds", DC, item))
            f.append((lambda: adv(sWC, 1 << 19, 9 << 19), 3))
        else:
            if opt.get('kvrot'): f.append((f"s_xor_b32 s{sOFF}, s29, {(i>>3)*16*131072 + (i&7)*16384}", 1))
            else: f.append((f"s_mov_b32 s{sOFF}, {(i>>3)*16*131072 + (i&7)*16384}", 1))
            for n in range(4):
                if k == 'k': f.append((f"buffer_load_dwordx4 v{KD+n}, s[{SK}:{SK+3}], s{sOFF} offen offset:{1024*n} {kvpol} lds", DC, item))
                else: f.append((f"buffer_load_dwordx4 v{VD}, s[{SV}:{SV+3}], s{sOFF} offen offset:{1024*n} {kvpol} lds", DC, item))
        return f
    XB, VB, WB = 3 * SL, 3 * SL, 6 * SL
    F_BASE = 0x1c0000
    def fl_off(u, own):
        a, b = (sHG, sM) if u < 2 else (sM, sHG)
        E(f"s_lshl_b32 s{sB}, s{a}, 8")
        if u == 2: E(f"s_add_u32 s{sB}, s{sB}, 1024")
        if own: E(f"s_lshl2_add_u32 s{sB}, s{b}, s{sB}")
    def zero_flags():
        def g(u):
            if u == 0: E(f"v_mov_b32 v{RL}, 0")
            fl_off(u, True)
            E(f"buffer_store_dword v{RL}, v{RL+1}, s[{SPL}:{SPL+3}], s{sB} offen sc1", "z")
            st['issued'].add(f"y{u}")
        return [(lambda: g(0), DC), (lambda: g(2), DC)]
    def arm(k):
        NZ = opt.get('nz', 8)
        def g():
            assert "y0" in st['issued'] and "y2" in st['issued']
            E.wait_tag("z")
            if k == 0: E(f"v_mov_b32 v{RL}, 1")
            E(f"s_and_b32 s{sB}, s37, {NZ-1}")
            E(f"s_cmp_eq_u32 s{sB}, {k}")
            E(f"s_cselect_b32 s{sB}, s36, 0x1000")
            E(f"buffer_store_byte v{RL}, v{RL+1}, s[{SFL}:{SFL+3}], s{sB} offen sc1", "arm")
            st['issued'].add(f"z{k}")
        return [(g, DC + 3)]
    def setup_rest():
        E(f"""
        s_mov_b32 s{sTH}, {hex(f32bits(thresh))}
        s_mov_b32 s{sSC}, {hex(f32bits(c))}
        s_mov_b32 s{sSC+1}, {hex(f32bits(c))}
        s_lshl_b32 s{sTMP}, s38, 3
        s_add_u32 s{sTMP}, s{sTMP}, s37
        s_add_u32 s{sTMP}, s{sTMP}, 1
        s_lshl_b32 s{sTMP}, s{sTMP}, 21
        s_add_u32 s82, s80, s{sTMP}
        s_addc_u32 s83, s81, 0
        s_lshl_b32 s{sTMP}, s36, 15
        s_add_u32 s{SO}, s82, s{sTMP}
        s_addc_u32 s{SO+1}, s83, 0
        s_mov_b32 s{SO+2}, {17*32768}
        s_mov_b32 s{SO+3}, 0x20000
        v_and_b32 v{t0}, 31, v0
        v_lshrrev_b32 v{t3}, 5, v0
        v_lshlrev_b32 v{t4}, 8, v{t0}
        v_xor_b32 v{t5}, v{t3}, v{t1}
        """)
        for s in range(8):
            E(f"""
            v_xor_b32 v{KA+s}, {2*s}, v{t5}
            v_lshlrev_b32 v{KA+s}, 4, v{KA+s}
            v_add_u32 v{KA+s}, v{KA+s}, v{t4}
            """)
        E(f"""
        v_lshrrev_b32 v{t5}, 1, v{t1}
        v_xor_b32 v{t5}, v{t3}, v{t5}
        v_lshlrev_b32 v{t4}, 7, v{t0}
        s_add_u32 s{sTMP}, s{sW4K}, {XB}
        v_add_u32 v{t4}, s{sTMP}, v{t4}
        """)
        for s in range(4):
            E(f"""
            v_xor_b32 v{XA+s}, {2*s}, v{t5}
            v_lshlrev_b32 v{XA+s}, 4, v{XA+s}
            v_add_u32 v{XA+s}, v{XA+s}, v{t4}
            """)
        E(f"""
        v_lshrrev_b32 v{t0}, 2, v{t1}
        v_and_b32 v{t4}, 1, v0
        v_lshlrev_b32 v{t4}, 4, v{t4}
        v_and_b32 v{t5}, 2, v0
        v_lshlrev_b32 v{t5}, 2, v{t5}
        v_add_u32 v{t4}, v{t4}, v{t5}
        v_and_b32 v{t5}, 16, v0
        v_lshlrev_b32 v{t5}, 1, v{t5}
        v_add_u32 v{t4}, v{t4}, v{t5}
        v_lshlrev_b32 v{t5}, 8, v{t0}
        v_add_u32 v{t4}, v{t4}, v{t5}
        v_lshlrev_b32 v{t3}, 10, v{t3}
        """)
        for t in range(4):
            E(f"""
            v_xor_b32 v{t5}, {t}, v{t0}
            v_lshlrev_b32 v{t5}, 6, v{t5}
            v_add_u32 v{t5}, v{t5}, v{t4}
            v_add_u32 v{t5}, v{t5}, v{t3}
            v_add_u32 v{VA+t}, {VB}, v{t5}
            v_add_u32 v{t5}, v{t5}, v{t3}
            v_add_u32 v{WA+t}, {WB}, v{t5}
            """)
        E(f"""
        v_lshlrev_b32 v{OD}, 4, v0
        s_lshl_b32 s{sTMP}, s35, 13
        v_add_u32 v{OD}, s{sTMP}, v{OD}
        s_and_b32 s{sM}, s36, 3
        s_lshr_b32 s{sHG}, s36, 2
        s_lshl_b32 s{sN}, s38, 3
        s_add_u32 s{sN}, s{sN}, s37
        s_lshl_b32 s{sA}, s{sN}, 4
        s_add_u32 s{SFL}, s90, s{sA}
        s_addc_u32 s{SFL+1}, s91, 0
        s_mov_b32 s{SFL+2}, 16
        s_mov_b32 s{SFL+3}, 0x20000
        s_add_u32 s{SPL}, s82, {F_BASE}
        s_addc_u32 s{SPL+1}, s83, 0
        s_mov_b32 s{SPL+2}, 2048
        s_mov_b32 s{SPL+3}, 0x20000
        v_lshlrev_b32 v{RL+1}, 8, v{OD}
        """)

    def rd_x(q):
        return [lds_read(lambda sl, s=s: f"ds_read_b128 a[{X+16*q+4*s}:{X+16*q+4*s+3}], v{XA+s} offset:{sl - XB}", f"x{q}") for s in range(4)]
    def wst(q, f):
        if q in opt.get('tmajor', ()): return f % 4, f // 4
        return f // 4, f % 4
    def rd_w(q, f, ri):
        s, t = wst(q, f)
        k, r = WF[ri % NWF]
        return [lds_read(lambda sl, jj=jj: f"ds_read_b64_tr_b16 {k}[{r+2*jj}:{r+2*jj+1}], v{WA+t} offset:{sl - WB + (16*s+4*jj)*256}", f"w{q}") for jj in range(2)]
    def mf_q(q, f, ri):
        s, t = wst(q, f)
        k, r = WF[ri % NWF]
        cq = q % 9
        acc = R('v', QACC + 16 * t, 16)
        src = '0' if (cq == 0 and s == 0) else acc
        return f"v_mfma_f32_32x32x16_bf16 {acc}, {k}[{r}:{r+3}], a[{X+16*cq+4*s}:{X+16*cq+4*s+3}], {src}"
    def rd_k(n, s):
        G, hf = n >> 1, n & 1
        return [lds_read(lambda sl: f"ds_read_b128 v[{KF+4*s}:{KF+4*s+3}], v{KA+s} offset:{sl + hf*8192}", f"k{G}")]
    def rd_v(n, f, order):
        G, hf = n >> 1, n & 1
        t, s2 = order[f]
        return [lds_read(lambda sl, jj=jj: f"ds_read_b64_tr_b16 a[{VF+4*f+2*jj}:{VF+4*f+2*jj+1}], v{VA+t} offset:{sl - VB + hf*8192 + (16*s2+8*jj)*256}", f"v{G}") for jj in range(2)]
    STD = [(f % 4, f // 4) for f in range(8)]
    LAST = [(f // 2, f % 2) for f in range(8)]
    def pv_order(n): return LAST if n % 16 == 15 else STD
    def mf_qk(n, s):
        d = R('v', S[n % 2], 16)
        src = d if s else ('0' if n % 16 == 0 else R('v', NEG, 16))
        return f"v_mfma_f32_32x32x16_bf16 {d}, v[{KF+4*s}:{KF+4*s+3}], v[{Q+4*s}:{Q+4*s+3}], {src}"
    def oacc(u, t): return R('a', O1 + 16 * t, 16) if u == 0 else R('v', QACC + 16 * t, 16)
    def mf_pv(n, f):
        t, s2 = pv_order(n)[f]
        d = oacc(n >> 4, t)
        src = '0' if (n % 16 == 0 and s2 == 0) else d
        p = P[n % 2] + 4 * s2
        return f"v_mfma_f32_32x32x16_bf16 {d}, a[{VF+4*f}:{VF+4*f+3}], v[{p}:{p+3}], {src}"
    def cvt_q():
        for i in range(32):
            E(f"v_pk_mul_f32 v[{QACC+2*i}:{QACC+2*i+1}], v[{QACC+2*i}:{QACC+2*i+1}], s[{sSC}:{sSC+1}]")
            if i >= 2: E(f"v_cvt_pk_bf16_f32 v{Q+i-2}, v{QACC+2*i-4}, v{QACC+2*i-3}")
        for i in (30, 31): E(f"v_cvt_pk_bf16_f32 v{Q+i}, v{QACC+2*i}, v{QACC+2*i+1}")
    def max_tree(s, dst, tmp):
        f = [(f"v_max3_f32 v{dst}, v{s}, v{s+1}, v{s+2}", 1), (f"v_max3_f32 v{tmp}, v{s+3}, v{s+4}, v{s+5}", 1)]
        for i in range(6, 16, 4):
            f.append((f"v_max3_f32 v{dst}, v{dst}, v{s+i}, v{s+i+1}", 1))
            if i + 3 < 16: f.append((f"v_max3_f32 v{tmp}, v{tmp}, v{s+i+2}, v{s+i+3}", 1))
        f.append((f"v_max_f32 v{dst}, v{dst}, v{tmp}", 1))
        f.append((f"v_mov_b32 v{tmp}, v{dst}", 1))
        f.append((f"v_permlane32_swap_b32 v{dst}, v{tmp}", 3))
        f.append((f"v_max_f32 v{dst}, v{dst}, v{tmp}", 1))
        return f
    def first_max(n):
        s = S[n % 2]
        f = max_tree(s, LA, LB)
        f.append((f"v_sub_f32 v{NEG}, 0, v{LA}", 1))
        for i in range(1, 16): f.append((f"v_mov_b32 v{NEG+i}, v{NEG}", 1))
        g = [(f"v_sub_f32 v{s+i}, v{s+i}, v{LA}", 1) for i in range(16)]
        return f, g
    rare = {}
    stubs = []
    def softmax_items(n):
        s = S[n % 2]; p = P[n % 2]; L = L1 if n < 16 else L2
        ex = [(f"v_exp_f32 v{T+k%8}, v{s+k}", 2) for k in range(16)]
        ad = []
        for k in range(16):
            acc = LA if k % 2 == 0 else LB
            if k < 2: ad.append(None)
            elif k < 4: ad.append((f"v_add_f32 v{acc}, v{T+(k-2)%8}, v{T+k%8}", 1))
            else: ad.append((f"v_add_f32 v{acc}, v{acc}, v{T+k%8}", 1))
        cv = [(f"v_cvt_pk_bf16_f32 v{p+e}, v{T+(2*e)%8}, v{T+(2*e+1)%8}", 1) for e in range(8)]
        tail = []
        if n % 16 == 0:
            tail.append((f"v_add_f32 v{L}, v{LA}, v{LB}", 1))
        else:
            key = (n % 2, n >> 4, n % 16 != 15)
            rare[key] = f"K1_RARE_{key[0]}{key[1]}{int(key[2])}"
            tail.append((f"v_add_f32 v{LA}, v{LA}, v{LB}", 1))
            tail.append((f"v_cmp_nge_f32 vcc, s{sTH}, v{LA}", 1))
            def br(n=n, key=key):
                nm = f"{n}{cur['var']}"
                E(f"s_cbranch_vccnz K1_STUB_{nm}")
                E.label(f"K1_BACK_{nm}")
                stubs.append((nm, rare[key]))
            tail.append((br, 1))
            tail.append((f"v_add_f32 v{L}, v{L}, v{LA}", 1))
        return ex, ad, cv, tail
    def softmax_stream(n):
        ex, ad, cv, tail = softmax_items(n)
        f = []
        LAG = opt.get('smlag', 2)
        for k in range(16 + LAG):
            if k < 16: f.append(ex[k])
            kk = k - LAG
            if kk >= 0:
                if ad[kk]: f.append(ad[kk])
                if kk % 2 == 1: f.append(cv[kk // 2])
        return f, tail
    opol = opt.get('opol', 'sc1')
    def epi_items(u, fr, pk):
        t, s2 = fr // 2, fr % 2
        D = (XA if fr % 2 == 0 else XD) if u == 0 else Q + 4 * fr
        f = []
        if u == 0:
            for i in range(8): f.append((f"v_accvgpr_read_b32 v{EP+i}, a{O1+16*t+8*s2+i}", 1))
            src = EP
        else:
            src = QACC + 16 * t + 8 * s2
        if pk:
            for i in range(4): f.append((f"v_pk_mul_f32 v[{src+2*i}:{src+2*i+1}], v[{src+2*i}:{src+2*i+1}], v[{RL}:{RL+1}] op_sel_hi:[1,0]", 1))
        else:
            for i in range(8): f.append((f"v_mul_f32 v{src+i}, v{src+i}, v{RL}", 1))
        for i in range(4): f.append((f"v_cvt_pk_bf16_f32 v{D+i}, v{src+2*i}, v{src+2*i+1}", 1))
        f.append((f"s_mov_b32 s{sTMP}, {u*16*32768 + (fr//4)*4096}", 1))
        f.append((f"buffer_store_dwordx4 v[{D}:{D+3}], v{OD}, s[{SO}:{SO+3}], s{sTMP} offen offset:{(fr%4)*1024} {opol}", DC, f"o{u}"))
        return f
    def rl_items(L):
        return [(f"v_mov_b32 v{RL+1}, v{L}", 1), (f"v_mov_b32 v{RL}, v{L}", 1), (f"v_permlane32_swap_b32 v{RL}, v{RL+1}", 3),
                (f"v_add_f32 v{RL}, v{RL}, v{RL+1}", 1), (f"v_rcp_f32 v{RL}, v{RL}", 2)]
    def items(l): return [f for it in l for f in dma(it)]

    class Strm:
        def __init__(self, its, g0=0, g1=None, lo=None, asap=False, hard=False, hi=None):
            self.its = list(its); self.g0 = g0; self.g1 = g1; self.lo = lo; self.asap = asap; self.hard = hard; self.hi = hi
    def schedule(mf, streams, fixed=None):
        n = len(mf)
        fixed = fixed or {}
        Q_ = []
        total = sum(f[1] for v in fixed.values() for f in v)
        for sm in streams:
            g1 = n if sm.g1 is None else min(sm.g1, n)
            g0 = min(sm.g0, g1 - 1)
            tot = sum(f[1] for f in sm.its); acc = 0; l = []
            total += tot
            prev = 0
            hi = list(sm.hi) if sm.hi else [n] * len(sm.its)
            for i in range(len(hi) - 2, -1, -1): hi[i] = min(hi[i], hi[i + 1])
            for i, f in enumerate(sm.its):
                lo = max(g0, sm.lo[i] if sm.lo else 0, prev); prev = lo
                due = lo if sm.asap else max(lo, g0 + (acc + f[1] * 0.5) * (g1 - g0) / max(tot, 1) - 0.5)
                acc += f[1]
                assert lo <= hi[i], (f, lo, hi[i])
                l.append((f, min(lo, n - 1), due, min(hi[i], max(g1 - 1, min(lo, n - 1))), sm.hard))
            Q_.append(l)
        cap = max(opt.get('cap', 6), total / n)
        carry = 0.0
        for g in range(n):
            m = mf[g]
            if callable(m): m()
            else: E(m)
            used = 0
            for f in fixed.get(g, []): put([f]); used += f[1]
            lim = cap + carry
            while True:
                best = None
                for l in Q_:
                    if not l or l[0][1] > g: continue
                    f, lo, due, hi, hard = l[0]
                    forced = hi <= g or (hard and due <= g)
                    if not forced:
                        if due > g + opt.get('early', 1.5): continue
                        if used + f[1] > lim + 0.01 and not (used == 0): continue
                    key = (0 if forced else 1, due)
                    if best is None or key < best[0]: best = (key, l)
                if best is None: break
                f = best[1].pop(0)[0]
                put([f]); used += f[1]
            carry = max(0.0, min(lim - used, cap - int(cap)))
        for l in Q_: assert not l

    CS = dict(fr=[], nm=0, nr=0)
    def cs_tiles(upto):
        return sorted({d[0] for d in CS['fr'][CS['nr']:upto]}, key=lambda x: int(x[1:]))
    def cs_take(cm, ra):
        m0 = CS['nm']; CS['nm'] = m0 + cm; CS['m0'] = m0
        assert CS['nm'] <= len(CS['fr'])
        mf = [CS['fr'][i][2](i) for i in range(m0, m0 + cm)]
        r1 = min(m0 + cm + ra, len(CS['fr']))
        rd = []
        for i in range(CS['nr'], r1):
            rd.append((i, CS['fr'][i][1](i), i - NWF - m0, CS['fr'][i][0]))
        CS['nr'] = max(CS['nr'], r1)
        return mf, rd, m0
    def q_frags(qs): return [(f"w{q}", (lambda i, q=q, f=f: rd_w(q, f, i)), (lambda i, q=q, f=f: mf_q(q, f, i))) for q in qs for f in range(16)]

    UBASE = 5 * US
    UB = dict(ok=False, first=True)
    def oproj_setup():
        a, b, cc = EP, EP + 1, EP + 2
        f = []
        def sc():
            E(f"""
            s_mul_i32 s{sW5K}, s35, 5120
            s_lshr_b32 s{sA}, s{sM}, 1
            s_mul_i32 s{sA}, s{sA}, 576
            s_and_b32 s{sB}, s{sM}, 1
            s_lshl_b32 s{sN}, s{sB}, 8
            s_add_u32 s{sA}, s{sA}, s{sN}
            s_cmp_eq_u32 s{sB}, 0
            s_cselect_b32 s{sMK}, 0x40000000, 0
            """)
        f.append((sc, 11))
        def srd1():
            E(f"""
            s_cmp_eq_u32 s38, 0
            s_cselect_b32 s{SWO}, s84, s86
            s_cselect_b32 s{SWO+1}, s85, s87
            s_mul_i32 s{sN}, s{sHG}, {512*1152}
            s_add_u32 s{sN}, s{sN}, s{sA}
            s_add_u32 s{SWO}, s{SWO}, s{sN}
            s_addc_u32 s{SWO+1}, s{SWO+1}, 0
            s_sub_u32 s{SWO+2}, {4096*1152}, s{sN}
            """)
        f.append((srd1, 8))
        def srd2():
            E(f"""
            s_lshl_b32 s{sN}, s{sM}, 15
            s_sub_u32 s{SOR}, s{SO}, s{sN}
            s_subb_u32 s{SOR+1}, s{SO+1}, 0
            s_mov_b32 s{SOR+2}, {20*32768}
            s_mul_i32 s{sB}, s35, {16*1152}
            """)
        f.append((srd2, 5))
        for n in range(5):
            io = 1024 * n if n < 4 else 0
            txt = f"""
            v_bfe_u32 v{a}, v{OD}, 4, 6
            v_add_u32 v{a}, {64*n}, v{a}
            v_mul_u32_u24 v{b}, 3277, v{a}
            v_lshrrev_b32 v{b}, 16, v{b}
            v_mul_u32_u24 v{cc}, 20, v{b}
            v_sub_u32 v{a}, v{a}, v{cc}
            v_mul_u32_u24 v{b}, 1152, v{b}
            v_lshlrev_b32 v{cc}, 4, v{a}
            v_lshlrev_b32 v{a}, 26, v{a}
            v_and_b32 v{a}, s{sMK}, v{a}
            v_add3_u32 v{b}, v{b}, v{cc}, v{a}
            v_add_u32 v{b}, s{sB}, v{b}
            v_subrev_u32 v{UD[n]}, {io}, v{b}
            """
            f += [(l.strip(), 1) for l in txt.strip().split('\n')]
        txt = f"""
        v_bfe_u32 v{a}, v{OD}, 6, 2
        v_mul_u32_u24 v{a}, 320, v{a}
        v_bfe_u32 v{b}, v{OD}, 9, 1
        v_mul_u32_u24 v{b}, 2560, v{b}
        v_and_b32 v{cc}, 0x10, v{OD}
        v_add3_u32 v{a}, v{a}, v{b}, v{cc}
        v_and_b32 v{b}, 0x20, v{OD}
        v_lshrrev_b32 v{b}, 2, v{b}
        v_and_b32 v{cc}, 0x100, v{OD}
        v_lshrrev_b32 v{cc}, 3, v{cc}
        v_add3_u32 v{a}, v{a}, v{b}, v{cc}
        v_add_u32 v{UA}, {UBASE}, v{a}
        v_and_b32 v{PV_}, 0x30, v{OD}
        v_lshrrev_b32 v{PV_}, 2, v{PV_}
        """
        f += [(l.strip(), 1) for l in txt.strip().split('\n')]
        return f
    def ubase_setup():
        UB['ok'] = True
        return [(f"v_subrev_u32 v{KA}, {UBASE}, v{UA}", 1), (f"v_subrev_u32 v{KA+1}, {UBASE-3*US}, v{UA}", 1)]
    def publish(u):
        def g():
            fl_off(u, True)
            E(f"v_mov_b32 v{PD}, {3 if u == 1 else 1}")
            E(f"v_lshlrev_b32 v{RL+1}, 8, v{OD}")
            E(f"buffer_store_dword v{PD}, v{RL+1}, s[{SPL}:{SPL+3}], s{sB} offen {opt.get('fpol', 'sc1') if u < 2 else 'sc1'}", f"fl{u}")
            stamp(f'pb{u}', 3)
        return [(g, DC + 4)]
    def poll_ld(u):
        if u == 3: return f"buffer_load_dword v{PD}, v{PV_}, s[{SFL}:{SFL+3}], 0 offen sc1"
        return f"buffer_load_dword v{PD}, v{PV_}, s[{SPL}:{SPL+3}], s{sB} offen sc1"
    def poll_issue(u):
        def g():
            assert u == 3 or 3 in polls
            assert all(f'z{k}' in st['issued'] for k in range(opt.get('nz', 8)))
            if u < 3: fl_off(u, False)
            E(poll_ld(u), f"pl{u}")
        return [(g, DC)]
    polls = []
    def poll_check(u):
        def g():
            stamp(f'pw{u}', 3)
            E(f"s_mov_b32 s{sN}, {hex([1, 2, 1, 0x01010101][u])}")
            if u < 3: fl_off(u, False)
            E(f"v_and_b32 v{PD}, s{sN}, v{PD}")
            E(f"v_cmp_ne_u32_e64 s[100:101], s{sN}, v{PD}")
            E(f"s_cmp_lg_u64 s[100:101], 0")
            E(f"s_cbranch_scc1 K1_POLL_{u}")
            E.label(f"K1_PBACK_{u}")
            polls.append(u)
            stamp(f'pc{u}', 3)
        return [(g, 6)]
    def rot(hs):
        E(f"s_add_u32 s{sN}, s{sM}, {hs & 3}")
        E(f"s_and_b32 s{sN}, s{sN}, 3")
    def ld_u(c):
        A = {}
        def first():
            A['a'] = on_issue(f"u{c}")
            rot(c >> 1)
            E(f"s_mul_i32 s{sOFF}, s{sN}, {128*1152}")
            E(f"s_add_u32 s{sOFF}, s{sOFF}, {(c >> 3)*2048*1152 + (c & 1)*64*1152}")
            E(f"s_add_u32 m0, s{sW5K}, {A['a']}")
        f = [(first, 5)] + [(f"buffer_load_dwordx4 v{UD[i]}, s[{SWO}:{SWO+3}], s{sOFF} offen offset:{1024*i} lds", DC, f"u{c}") for i in range(4)]
        f.append((lambda: E(f"s_add_u32 m0, s{sW5K}, {A['a'] + 4096}"), 1))
        f.append((f"buffer_load_dwordx4 v{UD[4]}, s[{SWO}:{SWO+3}], s{sOFF} offen lds", DC, f"u{c}"))
        return f
    def ld_a(hs):
        k, r = OF[hs]
        def first():
            for h2 in range(hs):
                if OF[h2] == OF[hs]:
                    assert not any(d[0] in (f"u{2*h2}", f"u{2*h2+1}") for d in CS['fr'][CS['m0']:]), (hs, h2)
            if hs == 0:
                stamp('a0a', 3); E.wait_tag("o0"); stamp('a0b', 3)
            else: assert (hs >> 2) in polls
            rot(hs)
            E(f"s_lshl_b32 s{sA}, s{sN}, 15")
            if hs >= 4: E(f"s_add_u32 s{sA}, s{sA}, {16*32768}")
        f = [(first, 4)]
        for fr in range(8):
            if fr == 4: f.append((f"s_add_u32 s{sA}, s{sA}, 4096", 1))
            f.append((f"buffer_load_dwordx4 {k}[{r+4*fr}:{r+4*fr+3}], v{OD}, s[{SOR}:{SOR+3}], s{sA} offen offset:{(fr%4)*1024} sc1", DC, f"a{hs}"))
        return f
    def ust(c, f):
        if c in opt.get('utmajor', (15,)): return f % 4, f // 4
        return f // 5, f % 5
    def rd_u(c, f, ri):
        s, t = ust(c, f)
        k, r = WF[ri % NWF]
        def fn(a, jj):
            if a >= UBASE: b, o = UA, UBASE
            else:
                assert UB['ok']
                b, o = (KA, 0) if a < 3 * US else (KA + 1, 3 * US)
            return f"ds_read_b64_tr_b16 {k}[{r+2*jj}:{r+2*jj+1}], v{b} offset:{a - o + (16*s+4*jj)*320 + t*64}"
        return [lds_read(lambda a, jj=jj: fn(a, jj), f"u{c}") for jj in range(2)]
    def mf_u(c, f, ri, first):
        s, t = ust(c, f)
        k, r = WF[ri % NWF]
        kb, rb = OF[c >> 1]; rb += 4 * (4 * (c & 1) + s)
        acc = R('a', ACC + 16 * t, 16)
        return f"v_mfma_f32_32x32x16_bf16 {acc}, {k}[{r}:{r+3}], {kb}[{rb}:{rb+3}], {'0' if first and s == 0 else acc}"
    def u_frags(cs): return [(f"u{c}", (lambda i, c=c, f=f: rd_u(c, f, i)), (lambda i, c=c, f=f: mf_u(c, f, i, c == cs[0]))) for c in cs for f in range(20)]

    def merge(att, cm):
        na, nc = len(att), cm
        seq = []; ia = ic = 0
        while ia < na or ic < nc:
            if ic < nc and (ia >= na or (ic + 1) * na <= ia * nc + opt.get('cbias', 0) * nc): seq.append(('c', ic)); ic += 1
            else: seq.append(att[ia]); ia += 1
        return seq
    def cread_stream(rd, cpos, bpos, newt, m0):
        its = []; lo = []; hi = []
        for i, reads, after, tile in rd:
            g = cpos[after] if after >= 0 else 0
            if tile in newt: g = max(g, bpos)
            assert i - m0 >= len(cpos) or cpos[i - m0] > g, "fragment read after its use"
            h = 10**6 if i - m0 >= len(cpos) else max(g, cpos[i - m0] - 3)
            for x in reads: its.append(x); lo.append(g); hi.append(h)
        return Strm(its, lo=lo, asap=True, hi=hi)

    def p0(plan):
        PREF.update(plan.get('pref0', {}))
        stamp('i0', 3)
        for it in plan['init']: put(dma(it))
        stamp('i1', 3)
        setup_rest()
        stamp('i2', 3)
        for it in plan.get('init2', []): put(dma(it))
        stamp('iss')
        xr = plan.get('xread', {q - 1: [q] for q in range(9)})
        for q in xr.get(-1, []): put(rd_x(q))
        put(items(plan['ld'].get(('q', -1), [])))
        CS.update(fr=q_frags(range(9)), nm=0, nr=0)
        LAGP = plan.get('lagp', 8)
        for q in range(10):
            cm = 16 - LAGP if q == 0 else (16 if q < 9 else LAGP)
            if cm == 0: continue
            tags = [f"w{q}"] if q < 9 else ["k0"] + plan['prew']
            fixed = {}; bp = 0
            if q == 0 or LAGP == 0:
                barrier(*tags)
                if q == 0: stamp('b0')
                _, rd, _ = cs_take(0, NWF)
                for r in rd: put(r[1])
            else:
                bp = plan.get('bposp', 2)
                fixed[bp] = [(lambda tags=tags: barrier(*tags), 2)]
            mf, rd, m0 = cs_take(cm, LAGP)
            cpos = list(range(cm))
            sts = [cread_stream(rd, cpos, bp, tags, m0), Strm(items(plan['ld'].get(('q', q), [])), g0=bp, g1=plan.get('pspan', 16))]
            if q < 9: sts.append(Strm([x for qq in xr.get(q, []) for x in rd_x(qq)], g0=cm - 2))
            if q == 9:
                sts.append(Strm([x for s in range(8) for x in rd_k(0, s)] + items(plan['ld'].get('pre', [])), g0=bp))
            schedule(mf, sts, fixed)
            stamp(f'c{q}', 2)
        stamp('p0')
        if LAGP == 0:
            barrier("k0", *plan['prew'])
            for s in range(8): put(rd_k(0, s))
            put(items(plan['ld'].get('pre', [])))
        CS.update(fr=q_frags(range(9, 18)), nm=0, nr=0)
        _, rd, _ = cs_take(0, NWF)
        cvt_q()
        schedule([mf_qk(0, s) for s in range(8)], [Strm([rd_k(1, s)[0] for s in range(8)], lo=list(range(8)), asap=True),
                                                   Strm([x for r in rd for x in r[1]])])
        f, g = first_max(0)
        cm = plan['cm'][-1]
        mf, rd, m0 = cs_take(cm, plan.get('ra', 8))
        schedule(mf, [cread_stream(rd, list(range(cm)), 0, (), m0), Strm(f + g, g0=1), Strm(items(plan['ld'].get('pre2', [])))])
        stamp('pre')
    PUB = opt.get('pub', 18)
    def step(j, plan):
        hasqk = j + 1 < 32; haspv = j >= 1; hassm = j < 32
        if j == 16:
            att = [('pv', f) for f in range(8)] + [('qk', s) for s in range(8)]
        elif hasqk and haspv:
            att = [('qk', 0)]
            for s in range(1, 8): att += [('qk', s), ('pv', s - 1)]
            att += [('pv', 7)]
        elif hasqk: att = [('qk', s) for s in range(8)]
        else: att = [('pv', f) for f in range(8)]
        if j == plan.get('ustart'):
            assert CS['nm'] == len(CS['fr']) and j >= 18 and opt['uorder'][-1] == 15
            CS.update(fr=u_frags(opt['uorder']), nm=0, nr=0)
        cmd = plan.get('cm', {}); ra = plan.get('ra', 8)
        cm = cmd.get(j, 0)
        bpos = -1; newt = ()
        fixed = {}
        if j % 2 == 0 and j <= opt.get('lastbar', 30):
            G = j // 2
            bpos = opt.get('bpos', 2)
            newt = cs_tiles(CS['nm'] + cm + cmd.get(j + 1, 0) + ra)
            newt = [t for t in newt if t not in st['visible']]
            tags = [f"k{G+1}", f"v{G}"] + newt
            if j == PUB: tags.append("o0")
            fixed[bpos] = [(lambda tags=tags: barrier(*tags), 2)]
            if j == PUB: fixed[bpos] += publish(0)
        if j in plan.get('pref', {}): PREF.update(plan['pref'][j])
        while ra > 0 and any(t not in st['visible'] and t not in newt for t in cs_tiles(CS['nm'] + cm + ra)): ra -= 1
        cmf, rd, m0 = cs_take(cm, ra)
        seq = merge(att, cm)
        n = len(seq)
        mf = [mf_qk(j + 1, i) if k == 'qk' else mf_pv(j - 1, i) if k == 'pv' else cmf[i] for k, i in seq]
        cpos = [g for g, (k, i) in enumerate(seq) if k == 'c']
        lastatt = max(g for g, (k, i) in enumerate(seq) if k != 'c')
        sts = []
        if hassm:
            sm, tail = softmax_stream(j)
            if j == 16:
                f, g = first_max(16)
                q0 = min(gi for gi, (k, i) in enumerate(seq) if k == 'qk')
                a_ = rl_items(L1) + f; b_ = g + sm + tail
                sts.append(Strm(a_ + b_, 0, n, hi=[q0 - 2] * len(a_) + [n] * len(b_)))
            else:
                lo = [0] * (len(sm) + len(tail))
                if len(tail) > 1:
                    lo[-2] = lastatt
                sts.append(Strm(sm + tail, 0, n, lo=lo))
        its = []; lo = []
        for gi, (k, i) in enumerate(seq):
            g = max(gi, bpos)
            r = []
            if k == 'qk' and j + 2 < 32: r = rd_k(j + 2, i)
            if k == 'pv' and j < 32: r = rd_v(j, i, pv_order(j))
            its += r; lo += [g] * len(r)
        sts.append(Strm(its, lo=lo, asap=True))
        if j == 0:
            sts.append(Strm([x for f in range(8) for x in rd_v(0, f, STD)], bpos, n))
        sts.append(cread_stream(rd, cpos, bpos, newt, m0))
        if j == 16:
            sts.append(Strm(epi_items(0, 0, False) + epi_items(0, 1, False), 8, n))
        if j == 17:
            sts.append(Strm([x for fr in range(2, 8) for x in epi_items(0, fr, False)], 0, n - 2))
        if j == 15:
            sts.append(Strm(oproj_setup(), 0, n))
        if j == 30:
            fixed.setdefault(0, []).extend(ubase_setup())
        g0, g1 = plan.get('span', {}).get(j, (bpos + 1, n))
        sts.append(Strm(items(plan['ld'].get(('s', j), [])), max(g0, bpos + 1), min(g1, n)))
        if j == 32:
            put(rl_items(L2))
            pv = [g for g, (k, i) in enumerate(seq) if k == 'pv']
            its = []; lo = []
            for t in range(4):
                e = epi_items(1, 2*t, False) + epi_items(1, 2*t+1, False)
                its += e; lo += [min(pv[2*t+1] + 2, n - 1)] * len(e)
            sts.append(Strm(its, lo=lo, asap=True))
        schedule(mf, sts, fixed)
        if j == 14: cvt_q()
        stamp(f's{j}', 1 if j in (15, 31) else 2)
    import copy
    fronts = opt['fronts']; JOIN = opt.get('join', 15); back = opt['back']
    def front(plan, var):
        cur['plan'] = plan; cur['var'] = var
        p0(plan)
        for j in range(JOIN): step(j, plan)
        cur['plan'] = None; cur['var'] = ''
    if len(fronts) == 1:
        front(fronts[0], '')
    else:
        E(f"s_bitcmp1_b32 s2, {opt.get('pbit', 3)}")
        E("s_cbranch_scc1 K1_P0B")
        save = (copy.deepcopy(st), list(E.vm), list(E.lgkm), nst[0], list(stn))
        front(fronts[0], 'a')
        endA = (copy.deepcopy(st), [t for t, d in E.vm], list(stn))
        E.wait_lgkm(0)
        E("s_branch K1_P0J")
        E.label("K1_P0B")
        st.clear(); st.update(copy.deepcopy(save[0])); E.vm = list(save[1]); E.lgkm = list(save[2]); nst[0] = save[3]; stn[:] = save[4]
        front(fronts[1], 'b')
        E.wait_lgkm(0)
        E.label("K1_P0J")
        E.nop(12)
        A_, B_ = endA[1], [t for t, d in E.vm]
        n = min(len(A_), len(B_))
        assert A_[len(A_)-n:] == B_[len(B_)-n:], (A_, B_)
        if len(A_) > len(B_): E.vm = [(t, set()) for t in A_]
        assert endA[2] == stn
        SA = endA[0]
        assert SA['issued'] == st['issued'], (SA['issued'] ^ st['issued'])
        assert SA['epoch'] == st['epoch']
        for p in set(SA['live']) | set(st['live']):
            full = lambda s_: s_['nread'].get(p, 0) == NREADS[p[0]]
            assert SA['nread'].get(p, 0) == st['nread'].get(p, 0), p
            if not full(st) or SA['lastread'][p] == SA['epoch'] or st['lastread'][p] == st['epoch']:
                assert p in SA['live'] and p in st['live'] and SA['addr'][p] == st['addr'][p], p
                if p in st['lastread']: st['lastread'][p] = max(st['lastread'][p], SA['lastread'][p])
        st['visible'] &= SA['visible']
    cur['plan'] = back
    for j in range(JOIN, 33): step(j, back)
    PREF['u'] = opt.get('tailu', [5, 6, 7, 0, 1, 2, 3, 4])
    PS = 10240
    PT = [S[0], S[1]]
    def pstore(t):
        f = []
        tm = PT[t % 2]
        for h in range(2):
            for i in range(8): f.append((f"v_accvgpr_read_b32 v{tm+8*h+i}, a{ACC+16*t+8*h+i}", 1))
            for i in range(4): f.append((f"v_cvt_pk_bf16_f32 v{tm+8*h+i}, v{tm+8*h+2*i}, v{tm+8*h+2*i+1}", 1))
            so = {0: '0', 1: '0', 2: f's{sOFF}', 3: f's{sOFF}', 4: f's{sA}'}[t]
            f.append((f"buffer_store_dwordx4 v[{tm+8*h}:{tm+8*h+3}], v{KA+2}, s[{SPW}:{SPW+3}], {so} offen offset:{((2*t+h)%4)*1024} {opt.get('ppol', 'sc1')}", DC, "ps"))
        return f
    def tail_setup():
        def g1():
            E(f"""
            s_mul_i32 s{sN}, s{sM}, {16*PS}
            s_add_u32 s{sN}, s{sN}, {1<<20}
            s_add_u32 s{SPW}, s82, s{sN}
            s_addc_u32 s{SPW+1}, s83, 0
            s_mul_i32 s{sN}, s{sHG}, {4*PS}
            s_add_u32 s{SPR}, s{SPW}, s{sN}
            s_addc_u32 s{SPR+1}, s{SPW+1}, 0
            s_mov_b32 s{SPR+2}, {4*PS}
            s_mul_i32 s{sN}, s{sHG}, {PS}
            s_add_u32 s{SPW}, s{SPW}, s{sN}
            s_addc_u32 s{SPW+1}, s{SPW+1}, 0
            s_sub_u32 s{SPW+2}, {16*PS}, s{sN}
            """)
        def g2():
            E(f"""
            v_and_b32 v{KA+3}, 0x3f0, v{OD}
            s_mul_i32 s{sN}, s35, {4*PS}
            s_cmp_eq_u32 s35, s{sHG}
            s_cselect_b32 s{sN}, 0x20000000, s{sN}
            v_add_u32 v{KA+2}, s{sN}, v{KA+3}
            s_lshl_b32 s{sN}, s35, 11
            v_add_u32 v{KA+7}, s{sN}, v{KA+3}
            s_lshl_b32 s{sN}, s35, 10
            v_add_u32 v{KA+3}, s{sN}, v{KA+3}
            s_cmp_ge_u32 s35, 2
            s_cselect_b32 s{sR1}, 0x40000000, s{sMK}
            v_add_u32 v{KA+4}, s{sR1}, v{KA+3}
            v_bfe_u32 v{KA+5}, v{OD}, 4, 5
            v_mul_u32_u24 v{KA+5}, 2304, v{KA+5}
            v_and_b32 v{KA+6}, 0x200, v{OD}
            v_lshrrev_b32 v{KA+6}, 5, v{KA+6}
            s_lshl_b32 s{sN}, s35, 5
            v_add3_u32 v{KA+5}, v{KA+5}, v{KA+6}, s{sN}
            v_and_b32 v{KA+6}, 0x3f0, v{OD}
            """)
        def g3():
            E(f"""
            s_lshl_b32 s{sN}, s37, 2
            s_add_u32 s{sN}, s{sN}, s{sHG}
            s_mul_i32 s{sN}, s{sN}, {32*2304}
            s_mul_i32 s{sTMP}, s38, 1152
            s_add_u32 s{sN}, s{sN}, s{sTMP}
            s_lshr_b32 s{sTMP}, s{sM}, 1
            s_mul_i32 s{sTMP}, s{sTMP}, 576
            s_add_u32 s{sN}, s{sN}, s{sTMP}
            s_and_b32 s{sTMP}, s{sM}, 1
            s_lshl_b32 s{sTMP}, s{sTMP}, 8
            s_add_u32 s{sN}, s{sN}, s{sTMP}
            s_add_u32 s{SD}, s88, s{sN}
            s_addc_u32 s{SD+1}, s89, 0
            s_sub_u32 s{SD+2}, {1024*2304}, s{sN}
            """)
        return [(g1, 6), (g2, 6), (g3, 6)]
    ops = opt['tail']
    for oi, op in enumerate(ops):
        if op[0] == 'mf':
            cm = op[1] if op[1] >= 0 else len(CS['fr']) - CS['nm']
            ra = 8
            while ra > 0 and any(t not in st['visible'] for t in cs_tiles(CS['nm'] + cm + ra)): ra -= 1
            if CS['nr'] < min(CS['nm'] + 2, len(CS['fr'])):
                _, rd, _ = cs_take(0, NWF)
                for r in rd: put(r[1])
            mf, rd, m0 = cs_take(cm, ra)
            sts = [cread_stream(rd, list(range(cm)), 0, (), m0), Strm(items(op[2]) if len(op) > 2 else [])]
            if len(op) > 3 and op[3] == 'setup':
                assert all(f"u{c}" in st['issued'] for c in range(8)) and CS['nm'] < len(CS['fr'])
                sts.append(Strm(tail_setup()))
            if CS['nm'] == len(CS['fr']):
                assert len(op) <= 2
                E(f"s_mov_b32 s{sOFF}, 4096")
                E(f"s_add_u32 s{sA}, s{sMK}, 8192")
                its = []; lo = []
                for t in range(4):
                    e = pstore(t); its += e; lo += [cm - 20 + 4 * t + 3 + 2] * len(e)
                sts.append(Strm(its, lo=lo, asap=True))
            schedule(mf, sts)
            if CS['nm'] == len(CS['fr']): put(pstore(4))
        elif op[0] == 'bar': barrier(*op[1:])
        elif op[0] == 'pub': put(publish(op[1]))
        elif op[0] == 'ld': put(items(op[1]))
        elif op[0] == 'st': stamp(op[1])
        else: raise ValueError(op)
    stamp('oend')
    LP = [a for a in range(0, 65536 - 24576 + 1, 4096) if all(dead(p, 'u') for p in overl(a, 24576))][0]
    E(f"s_cmp_lg_u32 s35, s{sHG}")
    E("s_cbranch_scc1 K1_NOLP")
    for k in range(20):
        E(f"ds_write_b128 v{KA+6}, a[{ACC+4*k}:{ACC+4*k+3}] offset:{LP + k*1024}")
    E.label("K1_NOLP")
    barrier("ps")
    put(publish(2))
    stamp('pub2')
    put(poll_issue(2))
    RB_ = QACC
    for r in range(3):
        for h in range(2):
            d = RB_ + r * 8 + 4 * h
            E(f"ds_read_b128 v[{d}:{d+3}], v{KA+7} offset:{LP + r*8192 + h*1024}")
    for i in range(3):
        E(f"""
        s_add_u32 s{sTMP}, s{sHG}, {i+1}
        s_and_b32 s{sTMP}, s{sTMP}, 3
        s_mul_i32 s{[sOFF, sA, sXC][i]}, s{sTMP}, {PS}
        """)
    E(f"v_add_u32 v{KA+2}, 4096, v{KA+3}")
    E(f"v_add_u32 v{KA+4}, 8192, v{KA+4}")
    put(poll_check(2))
    stamp('poll3')
    LB_ = RB_ + 24
    for r in range(3):
        for i in range(3):
            d = LB_ + (r * 3 + i) * 4
            E(f"buffer_load_dwordx4 v[{d}:{d+3}], v{[KA+3, KA+2, KA+4][r]}, s[{SPR}:{SPR+3}], s{[sOFF, sA, sXC][i]} offen sc1", "pr")
    for r in range(3):
        base = RB_ + r * 8
        for i in range(3):
            d = LB_ + (r * 3 + i) * 4
            for e in range(4):
                E(f"v_lshlrev_b32 v{T+2*e}, 16, v{d+e}")
                E(f"v_and_b32 v{T+2*e+1}, 0xffff0000, v{d+e}")
            for e in range(8):
                E(f"v_add_f32 v{base+e}, v{base+e}, v{T+e}")
        for i in range(4):
            E(f"v_cvt_pk_bf16_f32 v{base+i}, v{base+2*i}, v{base+2*i+1}")
        E(f"buffer_store_dwordx4 v[{base}:{base+3}], v{KA+5}, s[{SD}:{SD+3}], {'0' if r < 2 else f's{sR1}'} offen offset:{r*128} {opt.get('dpol', '')}")
    E.label("K1_FIN")
    if stamps:
        E.wait_vm(0, force=True)
        stamp('fin')
        E(f"""
        s_cmp_lg_u32 s35, 0
        s_cbranch_scc1 K1_END
        s_lshl_b32 s{sTMP}, s2, 7
        s_add_u32 s{sTMP}, s{sTMP}, 65536
        s_add_u32 s{SO}, s80, s{sTMP}
        s_addc_u32 s{SO+1}, s81, 0
        s_mov_b32 s{SO+2}, 128
        v_mov_b32 v1, 0
        """)
        for i in range(nst[0]):
            E(f"v_mov_b32 v2, s{STR[i]}")
            E(f"buffer_store_dword v2, v1, s[{SO}:{SO+3}], 0 offen offset:{4*i}")
            E.wait_vm(0)
    E.label("K1_END")
    E("s_endpgm")
    for u in polls:
        E.raw(f"""K1_POLL_{u}:
    s_mov_b32 s{sRET}, 0
K1_PLOOP_{u}:
    {poll_ld(u)}
    s_add_u32 s{sRET}, s{sRET}, 1
    s_waitcnt vmcnt(0)
    v_and_b32 v{PD}, s{sN}, v{PD}
    v_cmp_ne_u32_e64 s[100:101], s{sN}, v{PD}
    s_cmp_gt_u32 s{sRET}, 0x30000
    s_cbranch_scc1 K1_PBACK_{u}
    s_cmp_lg_u64 s[100:101], 0
    s_cbranch_scc1 K1_PLOOP_{u}
    s_branch K1_PBACK_{u}""")
    for n, lab in stubs:
        E.label(f"K1_STUB_{n}")
        E.raw(f"    s_call_b64 s[{sRET}:{sRET+1}], {lab}")
        E.raw(f"    s_branch K1_BACK_{n}")
    for key, lab in rare.items():
        par, u, fix = key
        s = S[par]; sn = S[1 - par]; p = P[par]; L = L1 if u == 0 else L2
        Rr = Emit()
        Rr.label(lab)
        Rr.nop(16)
        for f in max_tree(s, LA, LB): Rr(f[0])
        Rr(f"v_max_f32 v{LA}, 0, v{LA}")
        Rr(f"v_sub_f32 v{LB}, 0, v{LA}")
        Rr(f"v_exp_f32 v{LB}, v{LB}")
        for i in range(16):
            Rr(f"v_sub_f32 v{s+i}, v{s+i}, v{LA}")
            Rr(f"v_sub_f32 v{NEG+i}, v{NEG+i}, v{LA}")
            if fix: Rr(f"v_sub_f32 v{sn+i}, v{sn+i}, v{LA}")
        Rr(f"v_mul_f32 v{L}, v{L}, v{LB}")
        for i in range(64):
            if u == 0:
                Rr(f"v_accvgpr_read_b32 v{T}, a{O1+i}")
                Rr(f"v_mul_f32 v{T}, v{T}, v{LB}")
                Rr(f"v_accvgpr_write_b32 a{O1+i}, v{T}")
            else:
                Rr(f"v_mul_f32 v{QACC+i}, v{QACC+i}, v{LB}")
        Rr(f"v_mov_b32 v{LA}, 0")
        for e in range(8):
            Rr(f"v_exp_f32 v{T}, v{s+2*e}")
            Rr(f"v_exp_f32 v{T+1}, v{s+2*e+1}")
            Rr(f"v_add_f32 v{LA}, v{LA}, v{T}")
            Rr(f"v_add_f32 v{LA}, v{LA}, v{T+1}")
            Rr(f"v_cvt_pk_bf16_f32 v{p+e}, v{T}, v{T+1}")
        Rr.nop(4)
        Rr(f"s_setpc_b64 s[{sRET}:{sRET+1}]")
        E.lines += Rr.lines
    return E, dict(nops=E.nops, waits=E.nwait, count=E.count, vgpr=va.n, nst=nst[0], stn=stn)

if __name__ == '__main__':
    pass
```

```python
from emit import *
import math, struct

def f32bits(x):
    return struct.unpack('<I', struct.pack('<f', x))[0]

O_BASE = 1 << 20
SL = 16384

class Alloc:
    def __init__(self, start): self.n = start
    def get(self, k=1, al=1):
        self.n = (self.n + al - 1) // al * al
        r = self.n; self.n += k; return r

def gen(opt):
    stamps = opt.get('stamps', False)
    kvpol = opt.get('kvpol', 'nt')
    qpol = opt.get('qpol', '')
    thresh = opt.get('thresh', 4096.0)
    DC = opt.get('dmacost', 5)
    E = Emit()
    va = Alloc(1)
    KA = va.get(8); VA = va.get(4); WA = va.get(4); KD = va.get(4); VD = va.get(1); WD = va.get(4); OD = 0
    RL = va.get(2, 2)
    L1 = va.get(1); L2 = va.get(1); LA = va.get(1); LB = va.get(1)
    XA = va.get(4, 4); XD = va.get(4, 4)
    S = [va.get(16, 4), va.get(16, 4)]
    NEG = va.get(16, 4)
    P = [va.get(8, 4), va.get(8, 4)]
    T = va.get(8, 4)
    WFV = va.get(8, 4)
    EP = va.get(8, 4)
    QACC = va.get(64, 4)
    Q = va.get(32, 4)
    KF = va.get(32, 4)
    assert va.n <= 256, va.n
    X = 0; O1 = 144; VF = 208; WFA = 240
    WF = [('a', WFA + 4 * i) for i in range(4)] + [('v', WFV), ('v', WFV + 4), ('v', EP), ('v', EP + 4)]
    NWF = len(WF)
    ACC = 0
    assert Q == QACC + 64
    O2 = QACC + 32
    OF = {0: ('a', 80), 1: ('a', 112), 2: ('a', 144), 3: ('a', 176), 4: ('v', QACC), 5: ('a', 80), 6: ('v', KF), 7: ('a', VF)}
    OF.update(opt.get('of2', {}))
    UD = WD; PV_ = XD; PD = XD + 1; ED = XD + 2; EA = XD + 3
    SX, SW, SK, SV, SO = 4, 8, 12, 16, 20
    SWO, SOR, SPL = SX, SW, 68
    SPW, SPR, SD = SK, SV, SO
    sW4K, sXC, sWC, sOFF, sTH, sRET, sSC, sTMP = 24, 25, 26, 27, 28, 30, 32, 34
    sR1, sA, sB, sN, sM, sHG, sE, sMK = 92, 93, 94, 95, 96, 97, 98, 99
    nst = [0]
    STR = list(range(40, 64)) + list(range(72, 80))
    stn = []
    def stamp(name='', lvl=1):
        if stamps and (lvl <= stamps or name in opt.get('stl', ())):
            E(f"{opt.get('clk', 's_memrealtime')} s[100:101]")
            E.raw("    s_waitcnt lgkmcnt(0)"); E.lgkm = []
            E(f"s_mov_b32 s{STR[nst[0]]}, s100")
            nst[0] += 1; stn.append(name)
    c = math.log2(math.e) / math.sqrt(128.0)

    PREF = dict(k=[0, 1, 2, 3], v=[4, 5, 6], w=[7, 8, 9, 6], x=[5, 6], u=[7, 8, 9], e=[9, 8, 7])
    PREF.update(opt.get('pref', {}))
    st = dict(epoch=0, live=[], lastread={}, nread={}, visible=set(), issued=set(), addr={})
    NREADS = {'x': 4, 'w': 32, 'k': 16, 'v': 32, 'u': 32, 'e': 32}
    cur = dict(plan=None, var='')
    def size(item): return SL
    def overl(a, sz): return [p for p in st['live'] if st['addr'][p] < a + sz and a < st['addr'][p] + size(p)]
    def dead(p, item):
        if st['nread'].get(p, 0) != NREADS[p[0]]: return False
        if p[0] == 'x': return True
        return st['epoch'] > st['lastread'][p]
    def on_issue(item):
        ov = dict(opt.get('slotmap', {})); ov.update((cur['plan'] or {}).get('slotmap', {}))
        cands = [ov[item]] if item in ov else PREF[item[0]]
        sz = size(item)
        fr = [c_ for c_ in cands if all(dead(p, item) for p in overl(c_ * sz, sz))]
        assert fr, (item, cands, [(p, st['addr'][p]) for p in st['live']])
        a = fr[0] * sz
        for p in overl(a, sz):
            if p[0] == 'x':
                E.wait_lgkm(len(E.lgkm) - 1 - max([i for i, d in enumerate(E.lgkm) if ('tag', p) in d], default=-1))
            st['live'].remove(p)
        st['live'].append(item); st['issued'].add(item); st['addr'][item] = a
        return a
    def on_read(item):
        assert item in st['live'], item
        if item[0] == 'x':
            E.wait_tag(item)
        else:
            assert item in st['visible'], item
        st['nread'][item] = st['nread'].get(item, 0) + 1
        st['lastread'][item] = st['epoch']
        return st['addr'][item]
    def lds_read(fn, item):
        def f():
            a = on_read(item)
            t = fn(a)
            off = int(t.split('offset:')[1]); assert 0 <= off < 65536, t
            E(t)
            E.lgkm[-1].add(('tag', item))
        return (f, 1)
    def barrier(*tags):
        E.wait_lgkm(0)
        stamp(f"B{st['epoch']}a", 3)
        E.wait_tag(*tags)
        stamp(f"B{st['epoch']}b", 3)
        E("s_barrier")
        stamp(f"B{st['epoch']}c", 3)
        st['epoch'] += 1
        pend = {t for t, d in E.vm}
        for it in st['issued']:
            if it not in pend: st['visible'].add(it)
    def put(fl):
        for f in fl:
            if callable(f[0]): f[0]()
            else: E(f[0], f[2] if len(f) > 2 else None)

    E(f"""
    s_cmp_ge_u32 s2, 256
    s_cbranch_scc1 K1_END
    s_load_dwordx8 s[64:71], s[0:1], 0
    s_load_dwordx8 s[72:79], s[0:1], 40
    s_load_dwordx2 s[80:81], s[0:1], 96
    s_load_dwordx2 s[84:85], s[0:1], 32
    s_load_dwordx2 s[86:87], s[0:1], 72
    s_load_dwordx4 s[88:91], s[0:1], 80
    """)
    stamp('start')
    if opt.get('cpf'):
        E.raw("    s_getpc_b64 s[100:101]")
        E.label("K1_PC")
        E(f"""
        s_lshr_b32 s39, s2, 3
        s_lshl_b32 s39, s39, 11
        v_and_b32 v{EP}, 15, v0
        v_lshlrev_b32 v{EP}, 7, v{EP}
        v_add_u32 v{EP}, s39, v{EP}
        v_min_u32 v{EP}, K1_LAST-K1_PC, v{EP}
        v_mov_b32 v{EP+1}, s101
        v_add_co_u32 v{EP}, vcc, s100, v{EP}
        v_addc_co_u32 v{EP+1}, vcc, 0, v{EP+1}, vcc
        global_load_dword v{T+7}, v[{EP}:{EP+1}], off
        """)
    E(f"""
    v_lshrrev_b32 v{T}, 6, v0
    v_and_b32 v0, 63, v0
    v_readfirstlane_b32 s35, v{T}
    s_and_b32 s36, s2, 7
    s_lshr_b32 s37, s2, 3
    s_lshr_b32 s38, s36, 2
    s_and_b32 s36, s36, 3
    s_lshl_b32 s36, s36, 2
    s_and_b32 s39, s37, 3
    s_add_u32 s36, s36, s39
    s_lshr_b32 s37, s37, 2
    s_lshl_b32 s{sW4K}, s35, 12
    s_lshl_b32 s39, s39, 1
    s_add_u32 s39, s39, s37
    s_cmp_ge_u32 s39, 9
    s_cselect_b32 s{sTMP}, 9, 0
    s_sub_u32 s39, s39, s{sTMP}
    s_mul_i32 s39, s39, {opt.get('rot', 1)}
    s_lshl_b32 s{sXC}, s39, 7
    s_lshl_b32 s{sWC}, s39, 19
    """)
    if opt.get('kvrot'):
        E({1: "s_mov_b32 s29, s37", 2: "s_mov_b32 s29, s36", 3: "s_xor_b32 s29, s36, s37"}[opt['kvrot']])
        E("s_and_b32 s29, s29, 7")
        E("s_lshl_b32 s29, s29, 14")
    t0, t1, t2, t3, t4, t5 = T, T + 1, T + 2, T + 3, T + 4, T + 5
    E(f"""
    v_lshrrev_b32 v{t0}, 3, v0
    s_lshl_b32 s{sTMP}, s35, 5
    v_add_u32 v{t0}, s{sTMP}, v{t0}
    v_mul_u32_u24 v{t0}, 1152, v{t0}
    v_and_b32 v{t1}, 7, v0
    v_lshrrev_b32 v{t2}, 4, v0
    v_xor_b32 v{t3}, v{t1}, v{t2}
    v_xor_b32 v{t4}, 4, v{t3}
    v_lshlrev_b32 v{t3}, 4, v{t3}
    v_lshlrev_b32 v{t4}, 4, v{t4}
    v_add_u32 v{XD}, v{t0}, v{t3}
    v_add_u32 v{XD+1}, v{t0}, v{t4}
    v_add_u32 v{XD+2}, {16*1152-2048}, v{XD}
    v_add_u32 v{XD+3}, {24*1152-3072}, v{XD+1}
    v_add_u32 v{XD+1}, {8*1152-1024}, v{XD+1}
    v_and_b32 v{t1}, 15, v0
    v_lshlrev_b32 v{t3}, 2, v{t2}
    v_xor_b32 v{t3}, v{t1}, v{t3}
    v_lshlrev_b32 v{t3}, 4, v{t3}
    s_lshl_b32 s{sTMP}, s35, 4
    v_add_u32 v{t0}, s{sTMP}, v{t2}
    v_lshlrev_b32 v{t4}, 13, v{t0}
    v_add_u32 v{WD}, v{t4}, v{t3}
    v_add_u32 v{WD+1}, {4*8192-1024}, v{WD}
    v_add_u32 v{WD+2}, {8*8192-2048}, v{WD}
    v_add_u32 v{WD+3}, {12*8192-3072}, v{WD}
    v_lshlrev_b32 v{t4}, 8, v{t0}
    v_add_u32 v{VD}, v{t4}, v{t3}
    """)
    for n in range(4):
        E(f"""
        v_add_u32 v{t3}, {4*n}, v{t2}
        v_xor_b32 v{t3}, v{t1}, v{t3}
        v_lshlrev_b32 v{t3}, 4, v{t3}
        v_add_u32 v{KD+n}, v{t4}, v{t3}
        """)
    E.raw("    s_waitcnt lgkmcnt(0)")
    E(f"""
    s_cmp_eq_u32 s38, 0
    s_cselect_b32 s{SX}, s64, s72
    s_cselect_b32 s{SX+1}, s65, s73
    s_cselect_b32 s{SK}, s66, s74
    s_cselect_b32 s{SK+1}, s67, s75
    s_cselect_b32 s{SV}, s68, s76
    s_cselect_b32 s{SV+1}, s69, s77
    s_cselect_b32 s{SW}, s70, s78
    s_cselect_b32 s{SW+1}, s71, s79
    s_mul_i32 s{sTMP}, s37, 147456
    s_add_u32 s{SX}, s{SX}, s{sTMP}
    s_addc_u32 s{SX+1}, s{SX+1}, 0
    s_mov_b32 s{SX+2}, 147456
    s_mov_b32 s{SX+3}, 0x20000
    s_lshl_b32 s{sTMP}, s36, 8
    s_add_u32 s{SW}, s{SW}, s{sTMP}
    s_addc_u32 s{SW+1}, s{SW+1}, 0
    s_sub_u32 s{SW+2}, {576*8192}, s{sTMP}
    s_mov_b32 s{SW+3}, 0x20000
    s_lshl_b32 s{sTMP}, s37, 5
    s_add_u32 s{sTMP}, s{sTMP}, s36
    s_lshl_b32 s82, s{sTMP}, 17
    s_add_u32 s{SK}, s{SK}, s82
    s_addc_u32 s{SK+1}, s{SK+1}, 0
    s_mov_b32 s{SK+2}, {17*131072}
    s_mov_b32 s{SK+3}, 0x20000
    s_add_u32 s{SV}, s{SV}, s82
    s_addc_u32 s{SV+1}, s{SV+1}, 0
    s_mov_b32 s{SV+2}, {17*131072}
    s_mov_b32 s{SV+3}, 0x20000
    """)
    def adv(s, step, lim):
        E(f"""
        s_add_u32 s{s}, s{s}, {step}
        s_cmp_eq_u32 s{s}, {lim}
        s_cselect_b32 s{s}, 0, s{s}
        """)
    def dma(item):
        if item[0] == 'o': return st_o(item)
        if item[0] == 'a': return ld_a(item)
        k, i = item[0], int(item[1:])
        if k == 'e': return ld_e(i)
        if k == 't': return touch_u(i)
        if k == 'r': return rd_x(i)
        if k == 'n': return snap(i)
        if k == 'u': return ld_u(i)
        if k == 'p': return poll_issue(i)
        if k == 'c': return poll_check(i)
        def first():
            a = on_issue(item)
            E(f"s_add_u32 m0, s{sW4K}, {a}")
        f = [(first, 1)]
        if k == 'x':
            for n in range(4):
                f.append((f"buffer_load_dwordx4 v{XD+n}, s[{SX}:{SX+3}], s{sXC} offen offset:{1024*n} {qpol} lds", DC, item))
            f.append((lambda: adv(sXC, 128, 1152), 3))
        elif k == 'w':
            f.append((f"s_add_u32 s{sOFF}, s{sWC}, {(i//9)*4096}", 1))
            for n in range(4):
                f.append((f"buffer_load_dwordx4 v{WD+n}, s[{SW}:{SW+3}], s{sOFF} offen offset:{1024*n} {qpol} lds", DC, item))
            f.append((lambda: adv(sWC, 1 << 19, 9 << 19), 3))
        else:
            if opt.get('kvrot'): f.append((f"s_xor_b32 s{sOFF}, s29, {(i>>3)*16*131072 + (i&7)*16384}", 1))
            else: f.append((f"s_mov_b32 s{sOFF}, {(i>>3)*16*131072 + (i&7)*16384}", 1))
            for n in range(4):
                if k == 'k': f.append((f"buffer_load_dwordx4 v{KD+n}, s[{SK}:{SK+3}], s{sOFF} offen offset:{1024*n} {kvpol} lds", DC, item))
                else: f.append((f"buffer_load_dwordx4 v{VD}, s[{SV}:{SV+3}], s{sOFF} offen offset:{1024*n} {kvpol} lds", DC, item))
        return f
    XB, VB, WB = 3 * SL, 3 * SL, 6 * SL
    F_BASE = 0x1c0000
    sSN = [64, 64, 65]
    def fl_off(u):
        if u < 2:
            E(f"s_lshl_b32 s{sB}, s{sHG}, 8")
        else:
            E(f"s_and_b32 s{sB}, s{sM}, 1")
            E(f"s_lshl_b32 s{sB}, s{sB}, 8")
            E(f"s_add_u32 s{sB}, s{sB}, 1024")
    def snap(k):
        def g0():
            assert 'x8' in st['issued']
            E(f"v_and_b32 v{PV_}, 0x70, v{OD}")
            E(f"v_lshrrev_b32 v{PV_}, 2, v{PV_}")
            for u in (0, 2):
                fl_off(u)
                E(f"buffer_load_dword v{RL+u//2}, v{PV_}, s[{SPL}:{SPL+3}], s{sB} offen sc1", "sn")
            st['issued'].add('n0')
        def g1():
            assert 'n0' in st['issued'] and cur['j'] < 16
            for u in (0, 2):
                E(f"v_and_b32 v{RL+u//2}, 1, v{RL+u//2}")
                E(f"v_cmp_eq_u32_e64 s[100:101], 0, v{RL+u//2}")
                E(f"s_mov_b32 s{sSN[u]}, s100")
            st['issued'].add('n1')
        return [(g0, 2 * DC + 4)] if k == 0 else [(g1, 7)]
    def setup_rest():
        E(f"""
        s_mov_b32 s{sTH}, {hex(f32bits(thresh))}
        s_mov_b32 s{sSC}, {hex(f32bits(c))}
        s_mov_b32 s{sSC+1}, {hex(f32bits(c))}
        s_lshl_b32 s{sTMP}, s38, 3
        s_add_u32 s{sTMP}, s{sTMP}, s37
        s_add_u32 s{sTMP}, s{sTMP}, 1
        s_lshl_b32 s{sTMP}, s{sTMP}, 21
        s_add_u32 s82, s80, s{sTMP}
        s_addc_u32 s83, s81, 0
        s_lshl_b32 s{sTMP}, s36, 15
        s_add_u32 s{SO}, s82, s{sTMP}
        s_addc_u32 s{SO+1}, s83, 0
        s_mov_b32 s{SO+2}, {17*32768}
        s_mov_b32 s{SO+3}, 0x20000
        v_and_b32 v{t0}, 31, v0
        v_lshrrev_b32 v{t3}, 5, v0
        v_lshlrev_b32 v{t4}, 8, v{t0}
        v_xor_b32 v{t5}, v{t3}, v{t1}
        """)
        for s in range(8):
            E(f"""
            v_xor_b32 v{KA+s}, {2*s}, v{t5}
            v_lshlrev_b32 v{KA+s}, 4, v{KA+s}
            v_add_u32 v{KA+s}, v{KA+s}, v{t4}
            """)
        E(f"""
        v_lshrrev_b32 v{t5}, 1, v{t1}
        v_xor_b32 v{t5}, v{t3}, v{t5}
        v_lshlrev_b32 v{t4}, 7, v{t0}
        s_add_u32 s{sTMP}, s{sW4K}, {XB}
        v_add_u32 v{t4}, s{sTMP}, v{t4}
        """)
        for s in range(4):
            E(f"""
            v_xor_b32 v{XA+s}, {2*s}, v{t5}
            v_lshlrev_b32 v{XA+s}, 4, v{XA+s}
            v_add_u32 v{XA+s}, v{XA+s}, v{t4}
            """)
        E(f"""
        v_lshrrev_b32 v{t0}, 2, v{t1}
        v_and_b32 v{t4}, 1, v0
        v_lshlrev_b32 v{t4}, 4, v{t4}
        v_and_b32 v{t5}, 2, v0
        v_lshlrev_b32 v{t5}, 2, v{t5}
        v_add_u32 v{t4}, v{t4}, v{t5}
        v_and_b32 v{t5}, 16, v0
        v_lshlrev_b32 v{t5}, 1, v{t5}
        v_add_u32 v{t4}, v{t4}, v{t5}
        v_lshlrev_b32 v{t5}, 8, v{t0}
        v_add_u32 v{t4}, v{t4}, v{t5}
        v_lshlrev_b32 v{t3}, 10, v{t3}
        """)
        for t in range(4):
            E(f"""
            v_xor_b32 v{t5}, {t}, v{t0}
            v_lshlrev_b32 v{t5}, 6, v{t5}
            v_add_u32 v{t5}, v{t5}, v{t4}
            v_add_u32 v{t5}, v{t5}, v{t3}
            v_add_u32 v{VA+t}, {VB}, v{t5}
            v_add_u32 v{t5}, v{t5}, v{t3}
            v_add_u32 v{WA+t}, {WB}, v{t5}
            """)
        E(f"""
        v_lshlrev_b32 v{OD}, 4, v0
        s_lshl_b32 s{sTMP}, s35, 13
        v_add_u32 v{OD}, s{sTMP}, v{OD}
        s_and_b32 s{sM}, s36, 3
        s_lshr_b32 s{sHG}, s36, 2
        s_add_u32 s{SPL}, s82, {F_BASE}
        s_addc_u32 s{SPL+1}, s83, 0
        s_mov_b32 s{SPL+2}, 2048
        s_mov_b32 s{SPL+3}, 0x20000
        """)

    def rd_x(q):
        return [lds_read(lambda sl, s=s: f"ds_read_b128 a[{X+16*q+4*s}:{X+16*q+4*s+3}], v{XA+s} offset:{sl - XB}", f"x{q}") for s in range(4)]
    def wst(q, f):
        if q in opt.get('tmajor', ()): return f % 4, f // 4
        return f // 4, f % 4
    def rd_w(q, f, ri):
        s, t = wst(q, f)
        k, r = WF[ri % NWF]
        return [lds_read(lambda sl, jj=jj: f"ds_read_b64_tr_b16 {k}[{r+2*jj}:{r+2*jj+1}], v{WA+t} offset:{sl - WB + (16*s+4*jj)*256}", f"w{q}") for jj in range(2)]
    def mf_q(q, f, ri):
        s, t = wst(q, f)
        k, r = WF[ri % NWF]
        cq = q % 9
        acc = R('v', QACC + 16 * t, 16)
        src = '0' if (cq == 0 and s == 0) else acc
        return f"v_mfma_f32_32x32x16_bf16 {acc}, {k}[{r}:{r+3}], a[{X+16*cq+4*s}:{X+16*cq+4*s+3}], {src}"
    def rd_k(n, s):
        G, hf = n >> 1, n & 1
        return [lds_read(lambda sl: f"ds_read_b128 v[{KF+4*s}:{KF+4*s+3}], v{KA+s} offset:{sl + hf*8192}", f"k{G}")]
    def rd_v(n, f, order):
        G, hf = n >> 1, n & 1
        t, s2 = order[f]
        return [lds_read(lambda sl, jj=jj: f"ds_read_b64_tr_b16 a[{VF+4*f+2*jj}:{VF+4*f+2*jj+1}], v{VA+t} offset:{sl - VB + hf*8192 + (16*s2+8*jj)*256}", f"v{G}") for jj in range(2)]
    STD = [(f % 4, f // 4) for f in range(8)]
    LAST = [(f // 2, f % 2) for f in range(8)]
    def pv_order(n): return LAST if n % 16 == 15 else STD
    def mf_qk(n, s):
        d = R('v', S[n % 2], 16)
        src = d if s else ('0' if n % 16 == 0 else R('v', NEG, 16))
        return f"v_mfma_f32_32x32x16_bf16 {d}, v[{KF+4*s}:{KF+4*s+3}], {R('v', (Q if n < 16 else QACC) + 4*s, 4)}, {src}"
    def oacc(u, t): return R('a', O1 + 16 * t, 16) if u == 0 else R('v', O2 + 16 * t, 16)
    def mf_pv(n, f):
        t, s2 = pv_order(n)[f]
        d = oacc(n >> 4, t)
        src = '0' if (n % 16 == 0 and s2 == 0) else d
        p = P[n % 2] + 4 * s2
        return f"v_mfma_f32_32x32x16_bf16 {d}, a[{VF+4*f}:{VF+4*f+3}], v[{p}:{p+3}], {src}"
    def cvt_q(D):
        f = []
        for i in range(32):
            f.append((f"v_pk_mul_f32 v[{QACC+2*i}:{QACC+2*i+1}], v[{QACC+2*i}:{QACC+2*i+1}], s[{sSC}:{sSC+1}]", 1))
            if i >= 2: f.append((f"v_cvt_pk_bf16_f32 v{D+i-2}, v{QACC+2*i-4}, v{QACC+2*i-3}", 1))
        for i in (30, 31): f.append((f"v_cvt_pk_bf16_f32 v{D+i}, v{QACC+2*i}, v{QACC+2*i+1}", 1))
        return f
    def max_tree(s, dst, tmp):
        f = [(f"v_max3_f32 v{dst}, v{s}, v{s+1}, v{s+2}", 1), (f"v_max3_f32 v{tmp}, v{s+3}, v{s+4}, v{s+5}", 1)]
        for i in range(6, 16, 4):
            f.append((f"v_max3_f32 v{dst}, v{dst}, v{s+i}, v{s+i+1}", 1))
            if i + 3 < 16: f.append((f"v_max3_f32 v{tmp}, v{tmp}, v{s+i+2}, v{s+i+3}", 1))
        f.append((f"v_max_f32 v{dst}, v{dst}, v{tmp}", 1))
        f.append((f"v_mov_b32 v{tmp}, v{dst}", 1))
        f.append((f"v_permlane32_swap_b32 v{dst}, v{tmp}", 3))
        f.append((f"v_max_f32 v{dst}, v{dst}, v{tmp}", 1))
        return f
    def first_max(n):
        s = S[n % 2]
        f = max_tree(s, LA, LB)
        f.append((f"v_sub_f32 v{NEG}, 0, v{LA}", 1))
        for i in range(1, 16): f.append((f"v_mov_b32 v{NEG+i}, v{NEG}", 1))
        g = [(f"v_sub_f32 v{s+i}, v{s+i}, v{LA}", 1) for i in range(16)]
        return f, g
    rare = {}
    stubs = []
    def softmax_items(n):
        s = S[n % 2]; p = P[n % 2]; L = L1 if n < 16 else L2
        ex = [(f"v_exp_f32 v{T+k%8}, v{s+k}", 2) for k in range(16)]
        ad = []
        for k in range(16):
            acc = LA if k % 2 == 0 else LB
            if k < 2: ad.append(None)
            elif k < 4: ad.append((f"v_add_f32 v{acc}, v{T+(k-2)%8}, v{T+k%8}", 1))
            else: ad.append((f"v_add_f32 v{acc}, v{acc}, v{T+k%8}", 1))
        cv = [(f"v_cvt_pk_bf16_f32 v{p+e}, v{T+(2*e)%8}, v{T+(2*e+1)%8}", 1) for e in range(8)]
        tail = []
        if n % 16 == 0:
            tail.append((f"v_add_f32 v{L}, v{LA}, v{LB}", 1))
        else:
            key = (n % 2, n >> 4, n % 16 != 15)
            rare[key] = f"K1_RARE_{key[0]}{key[1]}{int(key[2])}"
            tail.append((f"v_add_f32 v{LA}, v{LA}, v{LB}", 1))
            tail.append((f"v_cmp_nge_f32 vcc, s{sTH}, v{LA}", 1))
            def br(n=n, key=key):
                nm = f"{n}{cur['var']}"
                E(f"s_cbranch_vccnz K1_STUB_{nm}")
                E.label(f"K1_BACK_{nm}")
                stubs.append((nm, rare[key]))
            tail.append((br, 1))
            tail.append((f"v_add_f32 v{L}, v{L}, v{LA}", 1))
        return ex, ad, cv, tail
    def softmax_stream(n):
        ex, ad, cv, tail = softmax_items(n)
        f = []
        LAG = opt.get('smlag', 2)
        for k in range(16 + LAG):
            if k < 16: f.append(ex[k])
            kk = k - LAG
            if kk >= 0:
                if ad[kk]: f.append(ad[kk])
                if kk % 2 == 1: f.append(cv[kk // 2])
        return f, tail
    opol = opt.get('opol', 'sc1')
    epi_done = set()
    def o_store(u, fr):
        k, r = OF[4 * u]; r += 4 * fr
        def chk(): assert (u, fr) in epi_done; E(f"s_mov_b32 s{sTMP}, {u*16*32768 + (fr//4)*4096}"); st['issued'].add(f"o{u}.{fr}")
        return [(chk, 1), (f"buffer_store_dwordx4 {k}[{r}:{r+3}], v{OD}, s[{SO}:{SO+3}], s{sTMP} offen offset:{(fr%4)*1024} {opol}", DC, f"o{u}")]
    def st_o(item): return o_store(0, int(item[1:]))
    def epi_items(u, fr, pk):
        t, s2 = fr // 2, fr % 2
        D = EP if u == 0 else QACC + 4 * fr
        f = []
        if u == 0:
            for i in range(8): f.append((f"v_accvgpr_read_b32 v{EP+i}, a{O1+16*t+8*s2+i}", 1))
            src = EP
        else:
            src = O2 + 16 * t + 8 * s2
        if pk:
            for i in range(4): f.append((f"v_pk_mul_f32 v[{src+2*i}:{src+2*i+1}], v[{src+2*i}:{src+2*i+1}], v[{RL}:{RL+1}] op_sel_hi:[1,0]", 1))
        else:
            for i in range(8): f.append((f"v_mul_f32 v{src+i}, v{src+i}, v{RL}", 1))
        for i in range(4): f.append((f"v_cvt_pk_bf16_f32 v{D+i}, v{src+2*i}, v{src+2*i+1}", 1))
        if u == 0:
            for i in range(4): f.append((f"v_accvgpr_write_b32 a{OF[0][1]+4*fr+i}, v{D+i}", 1))
        f.append((lambda: epi_done.add((u, fr)), 0))
        if u == 1: f += o_store(1, fr)
        return f
    def rl_items(L):
        return [(f"v_mov_b32 v{RL+1}, v{L}", 1), (f"v_mov_b32 v{RL}, v{L}", 1), (f"v_permlane32_swap_b32 v{RL}, v{RL+1}", 3),
                (f"v_add_f32 v{RL}, v{RL}, v{RL+1}", 1), (f"v_rcp_f32 v{RL}, v{RL}", 2)]
    def items(l): return [f for it in l for f in dma(it)]
    def items_lo(l):
        its = []; lo = []
        for it in l:
            nm, _, g = it.partition('@')
            f = dma(nm); its += f; lo += [int(g or 0)] * len(f)
        return its, lo

    class Strm:
        def __init__(self, its, g0=0, g1=None, lo=None, asap=False, hard=False, hi=None):
            self.its = list(its); self.g0 = g0; self.g1 = g1; self.lo = lo; self.asap = asap; self.hard = hard; self.hi = hi
    def schedule(mf, streams, fixed=None):
        n = len(mf)
        fixed = fixed or {}
        Q_ = []
        total = sum(f[1] for v in fixed.values() for f in v)
        for sm in streams:
            g1 = n if sm.g1 is None else min(sm.g1, n)
            g0 = min(sm.g0, g1 - 1)
            tot = sum(f[1] for f in sm.its); acc = 0; l = []
            total += tot
            prev = 0
            hi = list(sm.hi) if sm.hi else [n] * len(sm.its)
            for i in range(len(hi) - 2, -1, -1): hi[i] = min(hi[i], hi[i + 1])
            for i, f in enumerate(sm.its):
                lo = max(g0, sm.lo[i] if sm.lo else 0, prev); prev = lo
                due = lo if sm.asap else max(lo, g0 + (acc + f[1] * 0.5) * (g1 - g0) / max(tot, 1) - 0.5)
                acc += f[1]
                assert lo <= hi[i], (f, lo, hi[i])
                l.append((f, min(lo, n - 1), due, min(hi[i], max(g1 - 1, min(lo, n - 1))), sm.hard))
            Q_.append(l)
        cap = max(opt.get('cap', 6), total / n)
        carry = 0.0
        for g in range(n):
            m = mf[g]
            if callable(m): m()
            else: E(m)
            used = 0
            for f in fixed.get(g, []): put([f]); used += f[1]
            lim = cap + carry
            while True:
                best = None
                for l in Q_:
                    if not l or l[0][1] > g: continue
                    f, lo, due, hi, hard = l[0]
                    forced = hi <= g or (hard and due <= g)
                    if not forced:
                        if due > g + opt.get('early', 1.5): continue
                        if used + f[1] > lim + 0.01 and not (used == 0): continue
                    key = (0 if forced else 1, due)
                    if best is None or key < best[0]: best = (key, l)
                if best is None: break
                f = best[1].pop(0)[0]
                put([f]); used += f[1]
            carry = max(0.0, min(lim - used, cap - int(cap)))
        for l in Q_: assert not l

    CS = dict(fr=[], nm=0, nr=0, u=False, m0=0)
    def cs_tiles(upto):
        return sorted({d[0] for d in CS['fr'][CS['nr']:upto]}, key=lambda x: int(x[1:]))
    def cs_take(cm, ra):
        m0 = CS['nm']; CS['nm'] = m0 + cm; CS['m0'] = m0
        assert CS['nm'] <= len(CS['fr'])
        mf = [CS['fr'][i][2](i) for i in range(m0, m0 + cm)]
        r1 = min(m0 + cm + ra, len(CS['fr']))
        rd = []
        for i in range(CS['nr'], r1):
            rd.append((i, CS['fr'][i][1](i), i - NWF - m0, CS['fr'][i][0]))
        CS['nr'] = max(CS['nr'], r1)
        return mf, rd, m0
    def q_frags(qs): return [(f"w{q}", (lambda i, q=q, f=f: rd_w(q, f, i)), (lambda i, q=q, f=f: mf_q(q, f, i))) for q in qs for f in range(16)]

    UB = dict(ok=False, set=False)
    def oproj_setup():
        f = []
        def srd1():
            assert 'w17' in st['issued']
            E(f"""
            s_cmp_eq_u32 s38, 0
            s_cselect_b32 s{SWO}, s84, s86
            s_cselect_b32 s{SWO+1}, s85, s87
            s_mul_i32 s{sN}, s{sHG}, {512*1152}
            s_add_u32 s{SWO}, s{SWO}, s{sN}
            s_addc_u32 s{SWO+1}, s{SWO+1}, 0
            s_sub_u32 s{SWO+2}, {4096*1152}, s{sN}
            """)
        f.append((srd1, 7))
        def srd2():
            E(f"""
            s_lshl_b32 s{sN}, s{sM}, 15
            s_sub_u32 s{SOR}, s{SO}, s{sN}
            s_subb_u32 s{SOR+1}, s{SO+1}, 0
            s_mov_b32 s{SOR+2}, {20*32768}
            """)
        f.append((srd2, 4))
        def se():
            E(f"""
            s_lshr_b32 s{sN}, s35, 1
            s_add_u32 s{sN}, s{sN}, s{sM}
            s_and_b32 s{sN}, s{sN}, 3
            s_lshl_b32 s{sN}, s{sN}, 1
            s_and_b32 s{sE}, s35, 1
            s_add_u32 s{sN}, s{sN}, s{sE}
            s_mul_i32 s{sN}, s{sN}, {64*1152}
            s_and_b32 s{sE}, s{sM}, 1
            s_lshl_b32 s{sE}, s{sE}, 6
            s_add_u32 s{sE}, s{sE}, s{sN}
            s_add_u32 s{sE}, s{sE}, 1024
            s_lshl_b32 s{sMK}, s{sM}, 8
            """)
        f.append((se, 12))
        txt = f"""
        v_lshrrev_b32 v{UD+1}, 13, v{WD}
        v_and_b32 v{UD}, 0xff, v{WD}
        v_mul_u32_u24 v{UD+1}, 1152, v{UD+1}
        v_add3_u32 v{UD}, v{UD}, v{UD+1}, s{sMK}
        v_add_u32 v{UD+1}, {4*1152-1024}, v{UD}
        v_add_u32 v{UD+2}, {8*1152-2048}, v{UD}
        v_add_u32 v{UD+3}, {12*1152-3072}, v{UD}
        v_bfe_u32 v{ED}, v{OD}, 6, 4
        v_mul_u32_u24 v{ED}, 1152, v{ED}
        v_and_b32 v{PD}, 0x30, v{OD}
        v_add_u32 v{ED}, v{ED}, v{PD}
        v_and_b32 v{EA}, 0x2d0, v{OD}
        v_and_b32 v{PD}, 0x20, v{OD}
        v_lshrrev_b32 v{PD}, 2, v{PD}
        v_add_u32 v{EA}, v{EA}, v{PD}
        v_and_b32 v{PD}, 0x100, v{OD}
        v_lshrrev_b32 v{PD}, 3, v{PD}
        v_add_u32 v{EA}, v{EA}, v{PD}
        v_add_u32 v{EA}, {WB}, v{EA}
        """
        f += [(l.strip(), 1) for l in txt.strip().split('\n')]
        f += [(f"v_subrev_u32 v{XA+t}, {WB}, v{WA+t}", 1) for t in range(4)]
        f.append((lambda: UB.update(set=True), 0))
        return f
    def ubase_setup():
        UB['ok'] = True
        return [(f"v_subrev_u32 v{KA+t}, {WB - 3*SL}, v{WA+t}", 1) for t in range(4)] + [(f"v_subrev_u32 v{KA+4}, {WB - 2*SL}, v{EA}", 1)]
    def publish(u):
        def g():
            assert 'n1' in st['issued']
            fl_off(u)
            if u < 2: E(f"s_add_u32 s100, s{sM}, {4*u}")
            else:
                E(f"s_and_b32 s100, s{sM}, 2")
                E(f"s_lshl1_add_u32 s100, s100, s{sHG}")
            E(f"s_lshl2_add_u32 s{sB}, s100, s{sB}")
            E(f"s_lshr_b32 s100, s{sSN[u]}, s100")
            E(f"v_mov_b32 v{PD}, s100")
            E(f"v_lshlrev_b32 v{RL+1}, 8, v{OD}")
            E(f"buffer_store_dword v{PD}, v{RL+1}, s[{SPL}:{SPL+3}], s{sB} offen {opt.get('fpol', 'sc1') if u < 2 else 'sc1'}", f"fl{u}")
            stamp(f'pb{u}', 3)
        return [(g, DC + 6)]
    def poll_ld(u):
        return f"buffer_load_dword v{PD}, v{PV_}, s[{SPL}:{SPL+3}], s{sB} offen sc1"
    def poll_issue(u):
        def g():
            fl_off(u)
            E(poll_ld(u), f"pl{u}")
        return [(g, DC)]
    polls = []
    def poll_test(u):
        return f"""
            v_and_b32 v{PD}, 1, v{PD}
            v_cmp_ne_u32_e64 s[100:101], 0, v{PD}
            s_nop 0
            s_xor_b32 s100, s100, s{sSN[u]}
            s_and_b32 s100, s100, {[0x0f, 0xf0, 0xff][u]}
            """
    def poll_check(u):
        def g():
            stamp(f'pw{u}', 3)
            fl_off(u)
            E(poll_test(u))
            E(f"s_cbranch_scc1 K1_POLL_{u}")
            E.label(f"K1_PBACK_{u}")
            polls.append(u)
            stamp(f'pc{u}', 3)
        return [(g, 7)]
    def rot(hs):
        E(f"s_add_u32 s{sN}, s{sM}, {hs & 3}")
        E(f"s_and_b32 s{sN}, s{sN}, 3")
    upol = opt.get('upol', '')
    def ld_u(c):
        def first():
            assert UB['set']
            a = on_issue(f"u{c}")
            rot(c >> 1)
            E(f"s_mul_i32 s{sOFF}, s{sN}, {128*1152}")
            E(f"s_add_u32 s{sOFF}, s{sOFF}, {(c >> 3)*2048*1152 + (c & 1)*64*1152}")
            E(f"s_add_u32 m0, s{sW4K}, {a}")
        return [(first, 5)] + [(f"buffer_load_dwordx4 v{UD+i}, s[{SWO}:{SWO+3}], s{sOFF} offen offset:{1024*i} {upol} lds", DC, f"u{c}") for i in range(4)]
    def touch_u(c):
        def g():
            early = not UB['set']
            assert cur.get('j', -1) != 16
            D = L1 if cur.get('j', -1) > 16 or (early and c == 1) else L2
            S_ = SWO
            if early:
                assert 'n1' not in st['issued'] and 'j' not in cur
                S_ = 64
                E(f"""
                s_cmp_eq_u32 s38, 0
                s_cselect_b32 s64, s84, s86
                s_cselect_b32 s65, s85, s87
                s_mov_b32 s66, {4096*1152}
                s_mov_b32 s67, 0x20000
                s_lshl_b32 s{sN}, s36, 3
                """)
            else: E(f"s_lshl_b32 s{sN}, s{sM}, 3")
            E(f"""
            s_add_u32 s{sN}, s{sN}, s37
            s_lshl2_add_u32 s{sN}, s{sN}, s35
            s_mul_i32 s{sOFF}, s{sN}, {4*1152}
            s_add_u32 s{sOFF}, s{sOFF}, {c*2048*1152}
            v_and_b32 v{D}, 0x3f0, v{OD}
            v_min_u32 v{D}, {35*16}, v{D}
            v_lshlrev_b32 v{D}, 3, v{D}
            """)
            E(f"buffer_load_dword v{D}, v{D}, s[{S_}:{S_+3}], s{sOFF} offen", f"t{c}")
        return [(g, 8 + DC)]
    def ld_e(c):
        def first():
            assert UB['set']
            a = on_issue(f"e{c}")
            E(f"s_add_u32 m0, s{sW4K}, {a}")
        f = [(first, 1)]
        for i in range(4):
            f.append((f"s_add_u32 s{sOFF}, s{sE}, {c*2048*1152 + i*(16*1152-1024)}", 1))
            f.append((f"buffer_load_dwordx4 v{ED}, s[{SWO}:{SWO+3}], s{sOFF} offen offset:{1024*i} {upol} lds", DC, f"e{c}"))
        return f
    def ld_a(item):
        hs, _, part = item[1:].partition('.')
        hs = int(hs)
        frs = range(8) if part == '' else range(4 * int(part), 4 * int(part) + 4)
        k, r = OF[hs]
        def first():
            for h2 in range(hs):
                if OF[h2] == OF[hs]:
                    assert CS['u'] and not any(d[3] == h2 for d in CS['fr'][CS['m0']:]), (hs, h2)
                    if h2 == 0: assert all(f"o0.{fr}" in st['issued'] for fr in range(8))
            if k == 'a' and O1 <= r < O1 + 64: assert all((0, fr) in epi_done for fr in range(8))
            if (k, r) == ('a', VF): assert cur['plan'] is None
            if (k, r) == ('v', KF): assert cur.get('j', 0) >= 31
            assert (hs >> 2) in polls and hs % 4
            rot(hs)
            E(f"s_lshl_b32 s{sA}, s{sN}, 15")
            off = (hs >> 2) * 16 * 32768 + (4096 if frs[0] == 4 else 0)
            if off: E(f"s_add_u32 s{sA}, s{sA}, {off}")
        f = [(first, 4)]
        for fr in frs:
            if fr == 4 and frs[0] == 0: f.append((f"s_add_u32 s{sA}, s{sA}, 4096", 1))
            f.append((f"buffer_load_dwordx4 {k}[{r+4*fr}:{r+4*fr+3}], v{OD}, s[{SOR}:{SOR+3}], s{sA} offen offset:{(fr%4)*1024} sc1", DC, f"a{hs}"))
            f.append((lambda fr=fr: st['issued'].add(f"a{hs}.{fr}"), 0))
        return f
    def rd_u(c, s, t, ri):
        k, r = WF[ri % NWF]
        def fn(a, jj):
            if t == 4:
                if a >= WB: b, o = EA, WB
                else:
                    assert UB['ok'] and a >= 2 * SL
                    b, o = KA + 4, 2 * SL
                return f"ds_read_b64_tr_b16 {k}[{r+2*jj}:{r+2*jj+1}], v{b} offset:{a - o + (c & 3)*4096 + (16*s+4*jj)*64}"
            if a >= WB: b, o = WA, WB
            elif a < 4 * SL: b, o = XA, 0
            else:
                assert UB['ok']
                b, o = KA, 3 * SL
            return f"ds_read_b64_tr_b16 {k}[{r+2*jj}:{r+2*jj+1}], v{b+t} offset:{a - o + (16*s+4*jj)*256}"
        return [lds_read(lambda a, jj=jj: fn(a, jj), f"e{c>>3}" if t == 4 else f"u{c}") for jj in range(2)]
    def mf_u(c, s, t, ri, first):
        k, r = WF[ri % NWF]
        hs = c >> 1; fr = 4 * (c & 1) + s
        kb, rb = OF[hs]; rb += 4 * fr
        acc = R('a', ACC + 16 * t, 16)
        def g():
            assert ((hs >> 2, fr) in epi_done) if hs % 4 == 0 else (f"a{hs}.{fr}" in st['issued']), (c, s, t)
            E(f"v_mfma_f32_32x32x16_bf16 {acc}, {k}[{r}:{r+3}], {kb}[{rb}:{rb+3}], {'0' if first else acc}")
        return g
    def u_frags(cs):
        l = []; seen = set()
        for c in cs:
            nt = 5 if (c & 7) < 4 else 4
            o = [(s, t) for t in range(nt) for s in range(4)] if c == cs[-1] else [(s, t) for s in range(4) for t in range(nt)]
            for s, t in o:
                l.append((f"e{c>>3}" if t == 4 else f"u{c}", (lambda i, c=c, s=s, t=t: rd_u(c, s, t, i)),
                          (lambda i, c=c, s=s, t=t, fi=(t not in seen): mf_u(c, s, t, i, fi)), c >> 1, t))
                seen.add(t)
        return l

    def merge(att, cm):
        na, nc = len(att), cm
        seq = []; ia = ic = 0
        while ia < na or ic < nc:
            if ic < nc and (ia >= na or (ic + 1) * na <= ia * nc + opt.get('cbias', 0) * nc): seq.append(('c', ic)); ic += 1
            else: seq.append(att[ia]); ia += 1
        return seq
    def cread_stream(rd, cpos, bpos, newt, m0):
        its = []; lo = []; hi = []
        for i, reads, after, tile in rd:
            g = cpos[after] if after >= 0 else 0
            if tile in newt: g = max(g, bpos)
            assert i - m0 >= len(cpos) or cpos[i - m0] > g, "fragment read after its use"
            h = 10**6 if i - m0 >= len(cpos) else max(g, cpos[i - m0] - 3)
            for x in reads: its.append(x); lo.append(g); hi.append(h)
        return Strm(its, lo=lo, asap=True, hi=hi)

    def p0(plan):
        PREF.update(plan.get('pref0', {}))
        stamp('i0', 3)
        for it in plan['init']: put(dma(it))
        stamp('i1', 3)
        setup_rest()
        stamp('i2', 3)
        for it in plan.get('init2', []): put(dma(it))
        stamp('iss')
        xr = plan.get('xread', {q - 1: [q] for q in range(9)})
        for q in xr.get(-1, []): put(rd_x(q))
        put(items(plan['ld'].get(('q', -1), [])))
        CS.update(fr=q_frags(range(9)), nm=0, nr=0)
        LAGP = plan.get('lagp', 8)
        for q in range(10):
            cm = 16 - LAGP if q == 0 else (16 if q < 9 else LAGP)
            if cm == 0: continue
            tags = [f"w{q}"] if q < 9 else ["k0"] + plan['prew']
            fixed = {}; bp = 0
            if q == 0 or LAGP == 0:
                barrier(*tags)
                if q == 0: stamp('b0')
                _, rd, _ = cs_take(0, NWF)
                for r in rd: put(r[1])
            else:
                bp = plan.get('bposp', 2)
                fixed[bp] = [(lambda tags=tags: barrier(*tags), 2)]
            mf, rd, m0 = cs_take(cm, LAGP)
            cpos = list(range(cm))
            sts = [cread_stream(rd, cpos, bp, tags, m0), Strm(items(plan['ld'].get(('q', q), [])), g0=bp, g1=plan.get('pspan', 16))]
            if q < 9: sts.append(Strm([x for qq in xr.get(q, []) for x in rd_x(qq)], g0=cm - 2))
            if q == 9:
                sts.append(Strm([x for s in range(8) for x in rd_k(0, s)] + items(plan['ld'].get('pre', [])), g0=bp))
            schedule(mf, sts, fixed)
            stamp(f'c{q}', 2)
        stamp('p0')
        if LAGP == 0:
            barrier("k0", *plan['prew'])
            for s in range(8): put(rd_k(0, s))
            put(items(plan['ld'].get('pre', [])))
        CS.update(fr=q_frags(range(9, 18)), nm=0, nr=0)
        _, rd, _ = cs_take(0, NWF)
        put(cvt_q(Q))
        schedule([mf_qk(0, s) for s in range(8)], [Strm([rd_k(1, s)[0] for s in range(8)], lo=list(range(8)), asap=True),
                                                   Strm([x for r in rd for x in r[1]])])
        f, g = first_max(0)
        cm = plan['cm'][-1]
        mf, rd, m0 = cs_take(cm, plan.get('ra', 8))
        schedule(mf, [cread_stream(rd, list(range(cm)), 0, (), m0), Strm(f + g, g0=1), Strm(items(plan['ld'].get('pre2', [])))])
        stamp('pre')
    PUB = opt.get('pub', 18)
    EPI = opt.get('epi', {16: [0], 17: [1, 2, 3], 18: [4, 5], 19: [6, 7]})
    def step(j, plan):
        cur['j'] = j
        hasqk = j + 1 < 32; haspv = j >= 1; hassm = j < 32
        if j == 16:
            att = [('pv', f) for f in range(8)] + [('qk', s) for s in range(8)]
        elif hasqk and haspv:
            att = [('qk', 0)]
            for s in range(1, 8): att += [('qk', s), ('pv', s - 1)]
            att += [('pv', 7)]
        elif hasqk: att = [('qk', s) for s in range(8)]
        else: att = [('pv', f) for f in range(8)]
        if j == plan.get('ustart'):
            assert CS['nm'] == len(CS['fr']) and j > max(EPI) and (opt['uorder'][-1] & 7) >= 4
            CS.update(fr=u_frags(opt['uorder']), nm=0, nr=0, u=True)
        cmd = plan.get('cm', {}); ra = plan.get('ra', 8)
        cm = cmd.get(j, 0)
        bpos = -1; newt = ()
        fixed = {}
        if j % 2 == 0 and j <= opt.get('lastbar', 30):
            G = j // 2
            bpos = opt.get('bpos', 2)
            newt = cs_tiles(CS['nm'] + cm + cmd.get(j + 1, 0) + ra)
            newt = [t for t in newt if t not in st['visible'] and t in st['issued']]
            newt += [t for t in plan.get('btag', {}).get(j, []) if t not in newt]
            tags = [f"k{G+1}", f"v{G}"] + newt
            if j == PUB:
                assert all(f"o0.{fr}" in st['issued'] for fr in range(8))
                tags.append("o0")
            fixed[bpos] = [(lambda tags=tags: barrier(*tags), 2)]
            if j == PUB: fixed[bpos] += publish(0)
        if j in plan.get('pref', {}): PREF.update(plan['pref'][j])
        while ra > 0 and any(t not in st['visible'] and t not in newt for t in cs_tiles(CS['nm'] + cm + ra)): ra -= 1
        ahead = CS['nr'] - CS['nm']
        cmf, rd, m0 = cs_take(cm, ra)
        sk = min(len(att) - 1, max(bpos, 0) + 3) if ahead < 2 else 0
        seq = att[:sk] + merge(att[sk:], cm)
        n = len(seq)
        mf = [mf_qk(j + 1, i) if k == 'qk' else mf_pv(j - 1, i) if k == 'pv' else cmf[i] for k, i in seq]
        cpos = [g for g, (k, i) in enumerate(seq) if k == 'c']
        lastatt = max(g for g, (k, i) in enumerate(seq) if k != 'c')
        sts = []
        if hassm:
            sm, tail = softmax_stream(j)
            if j == 16:
                f, g = first_max(16)
                q0 = min(gi for gi, (k, i) in enumerate(seq) if k == 'qk')
                a_ = rl_items(L1) + f; b_ = g + sm + tail
                sts.append(Strm(a_ + b_, 0, n, hi=[q0 - 2] * len(a_) + [n] * len(b_)))
            else:
                lo = [0] * (len(sm) + len(tail))
                if len(tail) > 1:
                    lo[-2] = lastatt
                sts.append(Strm(sm + tail, 0, n, lo=lo))
        its = []; lo = []
        for gi, (k, i) in enumerate(seq):
            g = max(gi, bpos)
            r = []
            if k == 'qk' and j + 2 < 32: r = rd_k(j + 2, i)
            if k == 'pv' and j < 32: r = rd_v(j, i, pv_order(j))
            its += r; lo += [g] * len(r)
        sts.append(Strm(its, lo=lo, asap=True))
        if j == 0:
            sts.append(Strm([x for f in range(8) for x in rd_v(0, f, STD)], bpos, n))
        sts.append(cread_stream(rd, cpos, bpos, newt, m0))
        if j in EPI:
            sts.append(Strm([x for fr in EPI[j] for x in epi_items(0, fr, opt.get('epk', True))], 8 if j == 16 else 0, n))
        if j == opt.get('osetup', 15):
            assert not [x for x in plan['ld'].get(('s', j), []) if x[0] in 'ueapcyz']
            sts.append(Strm(oproj_setup(), 0, n))
        if j == 14:
            assert CS['nm'] == len(CS['fr'])
            sts.append(Strm(cvt_q(QACC), (cpos[-1] if cpos else -1) + 3, n))
        if j == 30:
            fixed.setdefault(0, []).extend(ubase_setup())
        g0, g1 = plan.get('span', {}).get(j, (bpos + 1, n))
        its, lo = items_lo(plan['ld'].get(('s', j), []))
        sts.append(Strm(its, max(g0, bpos + 1), min(g1, n), lo=lo))
        if j == 32:
            put(rl_items(L2))
            pv = [g for g, (k, i) in enumerate(seq) if k == 'pv']
            its = []; lo = []
            for t in range(4):
                e = epi_items(1, 2*t, opt.get('epk', True)) + epi_items(1, 2*t+1, opt.get('epk', True))
                its += e; lo += [min(pv[2*t+1] + 2, n - 1)] * len(e)
            sts.append(Strm(its, lo=lo, asap=True))
        schedule(mf, sts, fixed)
        stamp(f's{j}', 1 if j in (15, 31) else 2)
    import copy
    fronts = opt['fronts']; JOIN = opt.get('join', 15); back = opt['back']
    def front(plan, var):
        cur['plan'] = plan; cur['var'] = var
        p0(plan)
        for j in range(JOIN): step(j, plan)
        cur['plan'] = None; cur['var'] = ''
    if len(fronts) == 1:
        front(fronts[0], '')
    else:
        E(f"s_bitcmp1_b32 s2, {opt.get('pbit', 3)}")
        E("s_cbranch_scc1 K1_P0B")
        save = (copy.deepcopy(st), list(E.vm), list(E.lgkm), nst[0], list(stn))
        front(fronts[0], 'a')
        endA = (copy.deepcopy(st), [t for t, d in E.vm], list(stn))
        E.wait_lgkm(0)
        E("s_branch K1_P0J")
        E.label("K1_P0B")
        st.clear(); st.update(copy.deepcopy(save[0])); E.vm = list(save[1]); E.lgkm = list(save[2]); nst[0] = save[3]; stn[:] = save[4]
        front(fronts[1], 'b')
        E.wait_lgkm(0)
        E.label("K1_P0J")
        E.nop(12)
        A_, B_ = endA[1], [t for t, d in E.vm]
        n = min(len(A_), len(B_))
        assert A_[len(A_)-n:] == B_[len(B_)-n:], (A_, B_)
        if len(A_) > len(B_): E.vm = [(t, set()) for t in A_]
        assert endA[2] == stn
        SA = endA[0]
        assert SA['issued'] == st['issued'], (SA['issued'] ^ st['issued'])
        assert SA['epoch'] == st['epoch']
        for p in set(SA['live']) | set(st['live']):
            full = lambda s_: s_['nread'].get(p, 0) == NREADS[p[0]]
            assert SA['nread'].get(p, 0) == st['nread'].get(p, 0), p
            if not full(st) or SA['lastread'][p] == SA['epoch'] or st['lastread'][p] == st['epoch']:
                assert p in SA['live'] and p in st['live'] and SA['addr'][p] == st['addr'][p], p
                if p in st['lastread']: st['lastread'][p] = max(st['lastread'][p], SA['lastread'][p])
        st['visible'] &= SA['visible']
    cur['plan'] = back
    for j in range(JOIN, 33): step(j, back)
    cur['plan'] = None; cur['j'] = 33
    PREF['u'] = opt.get('tailu', [7, 8, 9, 0, 1, 2, 3, 4, 5, 6]); PREF['e'] = opt.get('taile', [4, 5, 6, 7, 8, 9, 2, 3])
    PS = 10240
    PT = [S[0], S[1]]
    TA = NEG
    TS = dict(ok=False, ps4=False)
    def pstore(t):
        f = [(lambda: TS['ok'] or 1 / 0, 0)]
        tm = PT[t % 2]
        for h in range(2):
            for i in range(8): f.append((f"v_accvgpr_read_b32 v{tm+8*h+i}, a{ACC+16*t+8*h+i}", 1))
            for i in range(4): f.append((f"v_cvt_pk_bf16_f32 v{tm+8*h+i}, v{tm+8*h+2*i}, v{tm+8*h+2*i+1}", 1))
            f.append((f"buffer_store_dwordx4 v[{tm+8*h}:{tm+8*h+3}], v{[TA, TA+9, TA+1][t//2]}, s[{SPW}:{SPW+3}], 0 offen offset:{((2*t+h)%4)*1024} {opt.get('ppol', 'sc1')}", DC, "ps"))
        return f
    def tail_setup():
        def g1():
            E(f"""
            s_mul_i32 s{sN}, s{sHG}, {4*PS}
            s_sub_u32 s{SPR+2}, {64*PS}, s{sN}
            s_add_u32 s{sN}, s{sN}, {1<<20}
            s_add_u32 s{SPR}, s82, s{sN}
            s_addc_u32 s{SPR+1}, s83, 0
            s_lshl4_add_u32 s{sN}, s{sM}, s{sHG}
            s_mul_i32 s{sN}, s{sN}, {PS}
            s_add_u32 s{sN}, s{sN}, {1<<20}
            s_add_u32 s{SPW}, s82, s{sN}
            s_addc_u32 s{SPW+1}, s83, 0
            s_mov_b32 s{SPW+2}, {13*PS}
            """)
        def g2():
            E(f"""
            v_and_b32 v{TA+6}, 0x3f0, v{OD}
            s_mul_i32 s{sN}, s35, {4*PS}
            s_add_u32 s{sTMP}, s{sN}, 8192
            v_add_u32 v{TA+1}, s{sTMP}, v{TA+6}
            s_cmp_eq_u32 s35, s{sHG}
            s_cselect_b32 s{sN}, 0x20000000, s{sN}
            v_add_u32 v{TA}, s{sN}, v{TA+6}
            v_add_u32 v{TA+9}, 4096, v{TA}
            s_lshl_b32 s{sN}, s35, 11
            v_add_u32 v{TA+7}, s{sN}, v{TA+6}
            s_lshl_b32 s{sN}, s35, 10
            v_add_u32 v{TA+2}, s{sN}, v{TA+6}
            v_add_u32 v{TA+3}, 4096, v{TA+2}
            """)
        def g2b():
            E(f"""
            s_and_b32 s{sN}, s{sM}, 2
            s_lshl_b32 s{sTMP}, s{sN}, 10
            v_add_u32 v{TA+8}, s{sTMP}, v{TA+6}
            s_lshl_b32 s{sTMP}, s{sN}, 9
            s_add_u32 s{sTMP}, s{sTMP}, 8192
            s_cmp_lg_u32 s35, 0
            s_cselect_b32 s{sTMP}, 0x40000000, s{sTMP}
            v_add_u32 v{TA+4}, s{sTMP}, v{TA+6}
            s_lshl_b32 s{sN}, s{sN}, 4
            s_and_b32 s{sTMP}, s{sM}, 1
            s_lshl_b32 s{sTMP}, s{sTMP}, 6
            s_add_u32 s{sN}, s{sN}, s{sTMP}
            s_add_u32 s{sN}, s{sN}, 1024
            s_lshl_b32 s{sTMP}, s{sM}, 8
            s_sub_u32 s{sN}, s{sN}, s{sTMP}
            s_cmp_lg_u32 s35, 0
            s_cselect_b32 s{sR1}, 0x40000000, s{sN}
            """)
        def g2c():
            E(f"""
            v_bfe_u32 v{TA+5}, v{OD}, 4, 5
            v_mul_u32_u24 v{TA+5}, 2304, v{TA+5}
            v_and_b32 v{TA+10}, 0x200, v{OD}
            v_lshrrev_b32 v{TA+10}, 5, v{TA+10}
            s_lshl_b32 s{sN}, s35, 5
            v_add3_u32 v{TA+5}, v{TA+5}, v{TA+10}, s{sN}
            """)
        def g3():
            E(f"""
            s_lshl_b32 s{sN}, s37, 2
            s_add_u32 s{sN}, s{sN}, s{sHG}
            s_mul_i32 s{sN}, s{sN}, {32*2304}
            s_mul_i32 s{sTMP}, s38, 1152
            s_add_u32 s{sN}, s{sN}, s{sTMP}
            s_lshl_b32 s{sTMP}, s{sM}, 8
            s_add_u32 s{sN}, s{sN}, s{sTMP}
            s_add_u32 s{SD}, s88, s{sN}
            s_addc_u32 s{SD+1}, s89, 0
            s_sub_u32 s{SD+2}, {1024*2304}, s{sN}
            """)
            TS['ok'] = True
        return [(g1, 6), (g2, 6), (g2b, 6), (g2c, 6), (g3, 6)]
    ops = opt['tail']
    for oi, op in enumerate(ops):
        if op[0] == 'mf':
            cm = op[1] if op[1] >= 0 else len(CS['fr']) - CS['nm']
            ra = 8
            while ra > 0 and any(t not in st['visible'] for t in cs_tiles(CS['nm'] + cm + ra)): ra -= 1
            if CS['nr'] < min(CS['nm'] + 2, len(CS['fr'])):
                _, rd, _ = cs_take(0, NWF)
                for r in rd: put(r[1])
            mf, rd, m0 = cs_take(cm, ra)
            its, lo = items_lo(op[2] if len(op) > 2 else [])
            sts = [cread_stream(rd, list(range(cm)), 0, (), m0), Strm(its, lo=lo)]
            if 'setup' in op[3:]:
                assert all(f"o{u}.{fr}" in st['issued'] for u in range(2) for fr in range(8))
                sts.append(Strm(tail_setup()))
            if 'ps4' in op[3:]:
                l4 = [i - m0 for i in range(m0, len(CS['fr'])) if CS['fr'][i][4] == 4]
                assert max(l4, default=0) < cm - 8
                sts.append(Strm(pstore(4), max(l4, default=-1) + 4, min(cm, max(l4, default=-1) + 14)))
                TS['ps4'] = True
            if CS['nm'] == len(CS['fr']):
                assert TS['ps4']
                its = []; lo = []
                for t in range(3):
                    e = pstore(t); its += e; lo += [cm - 16 + 4 * t + 3 + 2] * len(e)
                sts.append(Strm(its, lo=lo, asap=True))
            schedule(mf, sts)
            if CS['nm'] == len(CS['fr']): put(pstore(3))
        elif op[0] == 'bar': barrier(*op[1:])
        elif op[0] == 'pub': put(publish(op[1]))
        elif op[0] == 'ld': put(items(op[1]))
        elif op[0] == 'st': stamp(op[1])
        else: raise ValueError(op)
    stamp('oend')
    LP = [a for a in range(0, 163840 - 20480 + 1, 4096) if all(dead(p, 'u') for p in overl(a, 20480))][0]
    if LP + 20480 > 65536:
        for r in (6, 7, 8): E(f"v_add_u32 v{TA+r}, {LP}, v{TA+r}")
        LP = 0
    E(f"s_cmp_lg_u32 s35, s{sHG}")
    E("s_cbranch_scc1 K1_NOLP")
    for k in range(20):
        E(f"ds_write_b128 v{TA+6}, a[{ACC+4*k}:{ACC+4*k+3}] offset:{LP + k*1024}")
    E.label("K1_NOLP")
    barrier("ps")
    put(publish(2))
    stamp('pub2')
    put(poll_issue(2))
    RB_ = QACC
    for r in range(3):
        for h in range(2):
            d = RB_ + r * 8 + 4 * h
            E(f"ds_read_b128 v[{d}:{d+3}], v{TA+7 if r < 2 else TA+8} offset:{LP + r*8192 + h*1024}")
    SO1 = [sOFF, sA, sXC]; SO2 = [sWC, sE, sMK, 39]
    for i in range(3):
        E(f"""
        s_add_u32 s{sTMP}, s{sHG}, {i+1}
        s_and_b32 s{sTMP}, s{sTMP}, 3
        s_lshl4_add_u32 s{sTMP}, s{sM}, s{sTMP}
        s_mul_i32 s{SO1[i]}, s{sTMP}, {PS}
        """)
    E(f"s_xor_b32 s{sTMP}, s{sM}, 2")
    E(f"s_mul_i32 s{SO2[0]}, s{sTMP}, {16*PS}")
    for i in range(1, 4): E(f"s_add_u32 s{SO2[i]}, s{SO2[0]}, {i*PS}")
    put(poll_check(2))
    stamp('poll3')
    LB_ = RB_ + 24
    src = [[(r * 3 + i, SO1[i]) for i in range(3)] for r in range(3)]
    src[2] += [(9 + i, SO2[i]) for i in range(4)]
    for r in range(3):
        for n_, so in src[r]:
            d = LB_ + n_ * 4
            E(f"buffer_load_dwordx4 v[{d}:{d+3}], v{TA+2+r}, s[{SPR}:{SPR+3}], s{so} offen sc1", "pr")
    for r in range(3):
        base = RB_ + r * 8
        for n_, so in src[r]:
            d = LB_ + n_ * 4
            for e in range(4):
                E(f"v_lshlrev_b32 v{T+2*e}, 16, v{d+e}")
                E(f"v_and_b32 v{T+2*e+1}, 0xffff0000, v{d+e}")
            for e in range(4):
                E(f"v_pk_add_f32 v[{base+2*e}:{base+2*e+1}], v[{base+2*e}:{base+2*e+1}], v[{T+2*e}:{T+2*e+1}]")
        for i in range(4):
            E(f"v_cvt_pk_bf16_f32 v{base+i}, v{base+2*i}, v{base+2*i+1}")
        E(f"buffer_store_dwordx4 v[{base}:{base+3}], v{TA+5}, s[{SD}:{SD+3}], {'0' if r < 2 else f's{sR1}'} offen offset:{r*128 if r < 2 else 0} {opt.get('dpol', '')}")
    E.label("K1_FIN")
    if stamps:
        E.wait_vm(0, force=True)
        stamp('fin')
        E(f"""
        s_cmp_lg_u32 s35, 0
        s_cbranch_scc1 K1_END
        s_lshl_b32 s{sTMP}, s2, 7
        s_add_u32 s{sTMP}, s{sTMP}, 65536
        s_add_u32 s{SO}, s80, s{sTMP}
        s_addc_u32 s{SO+1}, s81, 0
        s_mov_b32 s{SO+2}, 128
        v_mov_b32 v1, 0
        """)
        for i in range(nst[0]):
            E(f"v_mov_b32 v2, s{STR[i]}")
            E(f"buffer_store_dword v2, v1, s[{SO}:{SO+3}], 0 offen offset:{4*i}")
            E.wait_vm(0)
    E.label("K1_END")
    E.label("K1_LAST")
    E("s_endpgm")
    for u in polls:
        E.raw(f"""K1_POLL_{u}:
    s_mov_b32 s{sRET}, 0
K1_PLOOP_{u}:
    {poll_ld(u)}
    s_add_u32 s{sRET}, s{sRET}, 1
    s_waitcnt vmcnt(0)
    s_cmp_gt_u32 s{sRET}, 0x30000
    s_cbranch_scc1 K1_PBACK_{u}
    {poll_test(u).strip()}
    s_cbranch_scc1 K1_PLOOP_{u}
    s_branch K1_PBACK_{u}""")
    for n, lab in stubs:
        E.label(f"K1_STUB_{n}")
        E.raw(f"    s_call_b64 s[{sRET}:{sRET+1}], {lab}")
        E.raw(f"    s_branch K1_BACK_{n}")
    for key, lab in rare.items():
        par, u, fix = key
        s = S[par]; sn = S[1 - par]; p = P[par]; L = L1 if u == 0 else L2
        Rr = Emit()
        Rr.label(lab)
        Rr.nop(16)
        for f in max_tree(s, LA, LB): Rr(f[0])
        Rr(f"v_max_f32 v{LA}, 0, v{LA}")
        Rr(f"v_sub_f32 v{LB}, 0, v{LA}")
        Rr(f"v_exp_f32 v{LB}, v{LB}")
        for i in range(16):
            Rr(f"v_sub_f32 v{s+i}, v{s+i}, v{LA}")
            Rr(f"v_sub_f32 v{NEG+i}, v{NEG+i}, v{LA}")
            if fix: Rr(f"v_sub_f32 v{sn+i}, v{sn+i}, v{LA}")
        Rr(f"v_mul_f32 v{L}, v{L}, v{LB}")
        for i in range(64):
            if u == 0:
                Rr(f"v_accvgpr_read_b32 v{T}, a{O1+i}")
                Rr(f"v_mul_f32 v{T}, v{T}, v{LB}")
                Rr(f"v_accvgpr_write_b32 a{O1+i}, v{T}")
            else:
                Rr(f"v_mul_f32 v{O2+i}, v{O2+i}, v{LB}")
        Rr(f"v_mov_b32 v{LA}, 0")
        for e in range(8):
            Rr(f"v_exp_f32 v{T}, v{s+2*e}")
            Rr(f"v_exp_f32 v{T+1}, v{s+2*e+1}")
            Rr(f"v_add_f32 v{LA}, v{LA}, v{T}")
            Rr(f"v_add_f32 v{LA}, v{LA}, v{T+1}")
            Rr(f"v_cvt_pk_bf16_f32 v{p+e}, v{T}, v{T+1}")
        Rr.nop(4)
        Rr(f"s_setpc_b64 s[{sRET}:{sRET+1}]")
        E.lines += Rr.lines
    return E, dict(nops=E.nops, waits=E.nwait, count=E.count, vgpr=va.n, nst=nst[0], stn=stn)

if __name__ == '__main__':
    pass
```

```python
from genj import *
ST = dict(stamps=1, stl=['s3','s7','s11','s19','s23','s27','pb1','pc1'])
def cfg(kv=kvA, early=(), ost=21, pub=26, t0=None, t1=None, osetup=13):
    ld = back_kv(kv, early)
    fr = front_std(kv)
    A = lambda j, l: (ld if j >= 15 else fr['ld'])[('s', j)].extend(l)
    if t0: A(t0, ['t0'])
    A(16, ['u0']); A(17, ['e0']); A(18, ['u1'])
    for i in range(8): A(ost + i // 2, [f'o{i}'])
    if t1: A(t1, ['t1'])
    cm = {20: 10, 21: 10, 22: 10, 23: 10}
    cm[20] = 4; cm[24] = 6
    A(24, ['u2']); A(26, ['u3', 'u4']); A(27, ['p0'])
    A(28, ['u5', 'u6']); A(29, ['c0', 'a1']); A(30, ['u8', 'u9']); A(31, ['a2']); A(32, [])
    back = dict(ld=ld, cm=cm, ustart=20, pref={24: dict(u=[7, 8, 0, 1, 2, 3]), 30: dict(u=[7, 8, 0, 1, 2, 3, 4, 5, 6])})
    cm.update({30: 4, 31: 10, 32: 8})
    tail = [('ld', ['e1', 'a3']), ('mf', 18), ('bar', 'u8', 'u9', 'e1', 'o1'), ('pub', 1),
            ('mf', 40, ['u7', 'u10', 'u11', 'p1@30']), ('mf', 16, ['c1@8', 'a5']), ('bar', 'u7', 'u10', 'u11'), ('mf', 48, ['u12', 'u13', 'a6', 'a7'], 'setup'),
            ('bar', 'u12', 'u13'), ('mf', 56, ['u14', 'u15'], 'ps4'), ('bar', 'u14', 'u15'), ('mf', -1)]
    return dict(fronts=[fr], back=back, uorder=[0, 1, 2, 3, 8, 9, 4, 5, 6, 7, 10, 11, 12, 13, 14, 15], tail=tail, pub=pub, osetup=osetup)
if __name__ == '__main__':
    build('j_b.s', dict(cfg(), cpf=1, **ST))
    build('j_c.s', dict(cfg(t0=14, t1=19), cpf=1, **ST))
    build('j_d.s', dict(cfg(t0=14, t1=25), cpf=1, **ST))
    ST2 = dict(stamps=0.5, stl=['start'] + [f's{j}' for j in range(14, 33)] + ['pb1', 'pc1', 'oend', 'pub2', 'poll3', 'fin'])
    build('j_e.s', dict(cfg(t0=14, t1=19), cpf=1, **ST2))
```

```python
from genj import *
import j1
ST2 = dict(stamps=0.5, stl=['start'] + [f's{j}' for j in range(14, 33)] + ['pb1', 'pc1', 'm1', 'm2', 'm3', 'oend', 'pub2', 'poll3', 'fin'])
def cfg(kv=kvA, early=(), ost=(17, 18, 18, 19, 19, 20, 20, 20), pub=22, t0=14, t1=25, osetup=13, pc=24):
    ld = back_kv(kv, early)
    fr = front_std(kv)
    A = lambda j, l: (ld if j >= 15 else fr['ld'])[('s', j)].extend(l)
    A(t0, ['t0'])
    A(16, ['u0']); A(17, ['e0']); A(18, ['u1'])
    for i in range(8): A(ost[i], [f'o{i}'])
    A(t1, ['t1'])
    cm = {20: 4, 21: 10, 22: 10, 23: 10, 24: 6, 25: 0, 26: 10, 27: 10, 28: 10, 29: 10, 30: 12, 31: 12, 32: 8}
    back = dict(ld=ld, cm=cm, ustart=20, pref={24: dict(u=[7, 8, 0, 1, 2, 3]), 30: dict(u=[7, 8, 0, 1, 2, 3, 4, 5, 6], e=[4, 5, 6])},
                btag={30: ['u5', 'u6']})
    A(pc - 1, ['p0']); A(pc, ['u2', 'c0', 'a1.0']); A(pc + 1, ['a1.1', 'u3'])
    A(26, ['u4']); A(27, ['a2.0', 'u5']); A(28, ['a2.1', 'u6']); A(29, ['a3']); A(30, ['u8', 'u9', 'e1']); A(31, ['u7'])
    uorder = [0, 1, 2, 3, 4, 5, 6, 8, 9, 7, 10, 11, 12, 13, 14, 15]
    tail = [('mf', 16, ['u10', 'u11']), ('bar', 'u8', 'u9', 'e1', 'u7', 'o1'), ('pub', 1),
            ('mf', 30, ['u12', 'u13', 'p1@22'], 'setup'), ('mf', 26, ['c1@4', 'a5', 'a6']), ('st', 'm1'), ('bar', 'u10', 'u11', 'u12', 'u13'),
            ('mf', 56, ['a7', 'u14', 'u15'], 'ps4'), ('st', 'm2'), ('st', 'm3'), ('bar', 'u14', 'u15'), ('mf', -1)]
    return dict(fronts=[fr], back=back, uorder=uorder, tail=tail, pub=pub, osetup=osetup, cpf=1)
if __name__ == '__main__':
    o = j1.cfg(t0=14, t1=19); t = o['tail']; t.insert(10, ('st', 'm3')); t.insert(8, ('st', 'm2')); t.insert(6, ('st', 'm1'))
    build('j_e.s', dict(o, cpf=1, **ST2))
    build('j_l.s', dict(cfg(), **ST2))
    build('j_m.s', dict(cfg(), opol='', fpol='', **ST2))
    kvL = kv_lead([1]+[2]*7+[1,1,2,2,2,1,1], REM)
    build('j_n.s', dict(cfg(kv=kvL, t1=27), **ST2))
```

```python
from genj import *
import j1, j4
ST = dict(stamps=0.5, stl=['start', 'b0'] + [f'c{q}' for q in (0,2,4,6,8)] + ['p0', 'pre'] + [f's{j}' for j in range(1, 32, 2)] + ['oend', 'poll3', 'fin'])
ALLKV = ['k0', 'k1', 'v0', 'k2', 'v1', 'k3', 'v2'] + REM
def front_qf(var=0):
    ld = {}
    for q in range(6): ld[('q', q)] = [f'w{q+3}', f'x{q+3}']
    f = dict(init=['x0', 'w0', 'x1', 'w1'], init2=['x2', 'w2'], pspan=8, pref0=dict(w=[6, 7, 8, 9], x=[3, 4, 5]), pref={0: dict(w=[7, 8, 9])})
    ld[('q', 6)] = ['k0', 'k1']; ld[('q', 7)] = ['w9', 'v0']; ld[('q', 8)] = ['w10', 'k2']; ld['pre'] = ['v1', 'k3']; ld['pre2'] = ['w11']
    f['slotmap'] = dict(w9=7, w10=8, w11=9)
    kv = kv_lead([2] * 12 + [1, 1], ['v2'] + REM)
    cm = {-1: 10}
    for j in range(14): cm[j] = 10 if j % 2 == 0 or j == 13 else 9
    for G in range(8):
        l = ([f"w{12+G}"] if 12 + G < 18 else []) + kv.get(G, [])
        ld[('s', 2 * G)] = l[:2] if G < 7 else l
        if G < 7: ld[('s', 2 * G + 1)] = l[2:]
    ld[('s', 1)] = ld[('s', 1)] + ['n0']; ld[('s', 7)] = ld[('s', 7)] + ['n1']
    ld[('s', 14)] += ['t0']
    f.update(ld=ld, cm=cm, prew=['w9', 'w10'])
    return f
if __name__ == '__main__':
    o = j1.cfg(t0=14, t1=19)
    build('j_e.s', dict(o, cpf=1, **ST))
    build('j_o.s', dict(o, fronts=[front_qf()], cpf=1, **ST))
    o = j4.cfg()
    build('j_p.s', dict(o, fronts=[front_qf()], cpf=1, **ST))
```

```python
from emit import *
import math, struct

def f32bits(x):
    return struct.unpack('<I', struct.pack('<f', x))[0]

O_BASE = 1 << 20
SL = 16384

class Alloc:
    def __init__(self, start): self.n = start
    def get(self, k=1, al=1):
        self.n = (self.n + al - 1) // al * al
        r = self.n; self.n += k; return r

def gen(opt):
    stamps = opt.get('stamps', False)
    kvpol = opt.get('kvpol', 'nt')
    qpol = opt.get('qpol', '')
    thresh = opt.get('thresh', 4096.0)
    DC = opt.get('dmacost', 5)
    E = Emit()
    va = Alloc(1)
    KA = va.get(8); VA = va.get(4); WA = va.get(4); KD = va.get(4); VD = va.get(1); WD = va.get(4); OD = 0
    RL = va.get(2, 2)
    L1 = va.get(1); L2 = va.get(1); LA = va.get(1); LB = va.get(1)
    XA = va.get(4, 4); XD = va.get(4, 4)
    S = [va.get(16, 4), va.get(16, 4)]
    NEG = va.get(16, 4)
    P = [va.get(8, 4), va.get(8, 4)]
    T = va.get(8, 4)
    WFV = va.get(8, 4)
    EP = va.get(8, 4)
    QACC = va.get(64, 4)
    Q = va.get(32, 4)
    KF = va.get(32, 4)
    assert va.n <= 256, va.n
    X = 0; O1 = 144; VF = 208; WFA = 240
    WF = [('a', WFA + 4 * i) for i in range(4)] + [('v', WFV), ('v', WFV + 4), ('v', EP), ('v', EP + 4)]
    NWF = len(WF)
    ACC = 0
    assert Q == QACC + 64
    O2 = QACC + 32
    OF = {0: ('a', 80), 1: ('a', 112), 2: ('a', 144), 3: ('a', 176), 4: ('v', QACC), 5: ('a', 80), 6: ('v', KF), 7: ('a', VF)}
    OF.update(opt.get('of2', {}))
    UD = WD; PV_ = XD; PD = XD + 1; ED = XD + 2; EA = XD + 3
    SX, SW, SK, SV, SO = 4, 8, 12, 16, 20
    SWO, SOR, SPL = SX, SW, 68
    SPW, SPR, SD = SK, SV, SO
    sW4K, sXC, sWC, sOFF, sTH, sRET, sSC, sTMP = 24, 25, 26, 27, 28, 30, 32, 34
    sR1, sA, sB, sN, sM, sHG, sE, sMK = 92, 93, 94, 95, 96, 97, 98, 99
    nst = [0]
    STR = list(range(40, 64)) + list(range(72, 80))
    stn = []
    def stamp(name='', lvl=1):
        E.raw(f"    ;@ {name}")
        if stamps and (lvl <= stamps or name in opt.get('stl', ())):
            for ck in (['s_memtime', 's_memrealtime'] if opt.get('clk') == 'both' else [opt.get('clk', 's_memrealtime')]):
                E(f"{ck} s[100:101]")
                E.raw("    s_waitcnt lgkmcnt(0)"); E.lgkm = []
                E(f"s_mov_b32 s{STR[nst[0]]}, s100")
                nst[0] += 1; stn.append(name)
    c = math.log2(math.e) / math.sqrt(128.0)

    PREF = dict(k=[0, 1, 2, 3], v=[4, 5, 6], w=[7, 8, 9, 6], x=[5, 6], u=[7, 8, 9], e=[9, 8, 7])
    PREF.update(opt.get('pref', {}))
    st = dict(epoch=0, live=[], lastread={}, nread={}, visible=set(), issued=set(), addr={})
    NREADS = {'x': 4, 'w': 32, 'k': 16, 'v': 32, 'u': 32, 'e': 32}
    cur = dict(plan=None, var='')
    def size(item): return SL
    def overl(a, sz): return [p for p in st['live'] if st['addr'][p] < a + sz and a < st['addr'][p] + size(p)]
    def dead(p, item):
        if st['nread'].get(p, 0) != NREADS[p[0]]: return False
        if p[0] == 'x': return True
        return st['epoch'] > st['lastread'][p]
    def on_issue(item):
        ov = dict(opt.get('slotmap', {})); ov.update((cur['plan'] or {}).get('slotmap', {}))
        cands = [ov[item]] if item in ov else PREF[item[0]]
        sz = size(item)
        fr = [c_ for c_ in cands if all(dead(p, item) for p in overl(c_ * sz, sz))]
        assert fr, (item, cands, [(p, st['addr'][p]) for p in st['live']])
        a = fr[0] * sz
        for p in overl(a, sz):
            if p[0] == 'x':
                E.wait_lgkm(len(E.lgkm) - 1 - max([i for i, d in enumerate(E.lgkm) if ('tag', p) in d], default=-1))
            st['live'].remove(p)
        st['live'].append(item); st['issued'].add(item); st['addr'][item] = a
        return a
    def on_read(item):
        assert item in st['live'], item
        if item[0] == 'x':
            E.wait_tag(item)
        else:
            assert item in st['visible'], item
        st['nread'][item] = st['nread'].get(item, 0) + 1
        st['lastread'][item] = st['epoch']
        return st['addr'][item]
    def lds_read(fn, item):
        def f():
            a = on_read(item)
            t = fn(a)
            off = int(t.split('offset:')[1]); assert 0 <= off < 65536, t
            E(t)
            E.lgkm[-1].add(('tag', item))
        return (f, opt.get('dscost', 1))
    def barrier(*tags):
        E.wait_lgkm(0)
        stamp(f"B{st['epoch']}a", 3)
        E.wait_tag(*tags)
        stamp(f"B{st['epoch']}b", 3)
        E("s_barrier")
        stamp(f"B{st['epoch']}c", 3)
        st['epoch'] += 1
        pend = {t for t, d in E.vm}
        for it in st['issued']:
            if it not in pend: st['visible'].add(it)
    def put(fl):
        for f in fl:
            if callable(f[0]): f[0]()
            else: E(f[0], f[2] if len(f) > 2 else None)

    E(f"""
    s_cmp_ge_u32 s2, 256
    s_cbranch_scc1 K1_END
    s_load_dwordx8 s[64:71], s[0:1], 0
    s_load_dwordx8 s[72:79], s[0:1], 40
    s_load_dwordx2 s[80:81], s[0:1], 96
    s_load_dwordx2 s[84:85], s[0:1], 32
    s_load_dwordx2 s[86:87], s[0:1], 72
    s_load_dwordx4 s[88:91], s[0:1], 80
    """)
    stamp('start')
    if opt.get('cpf'):
        E.raw("    s_getpc_b64 s[100:101]")
        E.label("K1_PC")
        E(f"""
        s_lshr_b32 s39, s2, 3
        s_lshl_b32 s39, s39, 11
        v_and_b32 v{EP}, 15, v0
        v_lshlrev_b32 v{EP}, 7, v{EP}
        v_add_u32 v{EP}, s39, v{EP}
        v_min_u32 v{EP}, K1_LAST-K1_PC, v{EP}
        v_mov_b32 v{EP+1}, s101
        v_add_co_u32 v{EP}, vcc, s100, v{EP}
        v_addc_co_u32 v{EP+1}, vcc, 0, v{EP+1}, vcc
        global_load_dword v{T+7}, v[{EP}:{EP+1}], off
        """)
    E(f"""
    v_lshrrev_b32 v{T}, 6, v0
    v_and_b32 v0, 63, v0
    v_readfirstlane_b32 s35, v{T}
    s_and_b32 s36, s2, 7
    s_lshr_b32 s37, s2, 3
    s_lshr_b32 s38, s36, 2
    s_and_b32 s36, s36, 3
    s_lshl_b32 s36, s36, 2
    s_and_b32 s39, s37, 3
    s_add_u32 s36, s36, s39
    s_lshr_b32 s37, s37, 2
    s_lshl_b32 s{sW4K}, s35, 12
    s_lshl_b32 s39, s39, 1
    s_add_u32 s39, s39, s37
    s_cmp_ge_u32 s39, 9
    s_cselect_b32 s{sTMP}, 9, 0
    s_sub_u32 s39, s39, s{sTMP}
    s_mul_i32 s39, s39, {opt.get('rot', 1)}
    s_lshl_b32 s{sXC}, s39, 7
    s_lshl_b32 s{sWC}, s39, 19
    """)
    if opt.get('kvrot'):
        E({1: "s_mov_b32 s29, s37", 2: "s_mov_b32 s29, s36", 3: "s_xor_b32 s29, s36, s37"}[opt['kvrot']])
        E("s_and_b32 s29, s29, 7")
        E("s_lshl_b32 s29, s29, 14")
    t0, t1, t2, t3, t4, t5 = T, T + 1, T + 2, T + 3, T + 4, T + 5
    E(f"""
    v_lshrrev_b32 v{t0}, 3, v0
    s_lshl_b32 s{sTMP}, s35, 5
    v_add_u32 v{t0}, s{sTMP}, v{t0}
    v_mul_u32_u24 v{t0}, 1152, v{t0}
    v_and_b32 v{t1}, 7, v0
    v_lshrrev_b32 v{t2}, 4, v0
    v_xor_b32 v{t3}, v{t1}, v{t2}
    v_xor_b32 v{t4}, 4, v{t3}
    v_lshlrev_b32 v{t3}, 4, v{t3}
    v_lshlrev_b32 v{t4}, 4, v{t4}
    v_add_u32 v{XD}, v{t0}, v{t3}
    v_add_u32 v{XD+1}, v{t0}, v{t4}
    v_add_u32 v{XD+2}, {16*1152-2048}, v{XD}
    v_add_u32 v{XD+3}, {24*1152-3072}, v{XD+1}
    v_add_u32 v{XD+1}, {8*1152-1024}, v{XD+1}
    v_and_b32 v{t1}, 15, v0
    v_lshlrev_b32 v{t3}, 2, v{t2}
    v_xor_b32 v{t3}, v{t1}, v{t3}
    v_lshlrev_b32 v{t3}, 4, v{t3}
    s_lshl_b32 s{sTMP}, s35, 4
    v_add_u32 v{t0}, s{sTMP}, v{t2}
    v_lshlrev_b32 v{t4}, 13, v{t0}
    v_add_u32 v{WD}, v{t4}, v{t3}
    v_add_u32 v{WD+1}, {4*8192-1024}, v{WD}
    v_add_u32 v{WD+2}, {8*8192-2048}, v{WD}
    v_add_u32 v{WD+3}, {12*8192-3072}, v{WD}
    v_lshlrev_b32 v{t4}, 8, v{t0}
    v_add_u32 v{VD}, v{t4}, v{t3}
    """)
    for n in range(4):
        E(f"""
        v_add_u32 v{t3}, {4*n}, v{t2}
        v_xor_b32 v{t3}, v{t1}, v{t3}
        v_lshlrev_b32 v{t3}, 4, v{t3}
        v_add_u32 v{KD+n}, v{t4}, v{t3}
        """)
    E.raw("    s_waitcnt lgkmcnt(0)")
    E(f"""
    s_cmp_eq_u32 s38, 0
    s_cselect_b32 s{SX}, s64, s72
    s_cselect_b32 s{SX+1}, s65, s73
    s_cselect_b32 s{SK}, s66, s74
    s_cselect_b32 s{SK+1}, s67, s75
    s_cselect_b32 s{SV}, s68, s76
    s_cselect_b32 s{SV+1}, s69, s77
    s_cselect_b32 s{SW}, s70, s78
    s_cselect_b32 s{SW+1}, s71, s79
    s_mul_i32 s{sTMP}, s37, 147456
    s_add_u32 s{SX}, s{SX}, s{sTMP}
    s_addc_u32 s{SX+1}, s{SX+1}, 0
    s_mov_b32 s{SX+2}, 147456
    s_mov_b32 s{SX+3}, 0x20000
    s_lshl_b32 s{sTMP}, s36, 8
    s_add_u32 s{SW}, s{SW}, s{sTMP}
    s_addc_u32 s{SW+1}, s{SW+1}, 0
    s_sub_u32 s{SW+2}, {576*8192}, s{sTMP}
    s_mov_b32 s{SW+3}, 0x20000
    s_lshl_b32 s{sTMP}, s37, 5
    s_add_u32 s{sTMP}, s{sTMP}, s36
    s_lshl_b32 s82, s{sTMP}, 17
    s_add_u32 s{SK}, s{SK}, s82
    s_addc_u32 s{SK+1}, s{SK+1}, 0
    s_mov_b32 s{SK+2}, {17*131072}
    s_mov_b32 s{SK+3}, 0x20000
    s_add_u32 s{SV}, s{SV}, s82
    s_addc_u32 s{SV+1}, s{SV+1}, 0
    s_mov_b32 s{SV+2}, {17*131072}
    s_mov_b32 s{SV+3}, 0x20000
    """)
    def adv(s, step, lim):
        E(f"""
        s_add_u32 s{s}, s{s}, {step}
        s_cmp_eq_u32 s{s}, {lim}
        s_cselect_b32 s{s}, 0, s{s}
        """)
    def dma(item):
        if item[0] == 'o': return st_o(item)
        if item[0] == 'a': return ld_a(item)
        k, i = item[0], int(item[1:])
        if k == 'e': return ld_e(i)
        if k == 't': return touch_u(i)
        if k == 'r': return rd_x(i)
        if k == 'n': return snap(i)
        if k == 'u': return ld_u(i)
        if k == 'p': return poll_issue(i)
        if k == 'c': return poll_check(i)
        def first():
            a = on_issue(item)
            E(f"s_add_u32 m0, s{sW4K}, {a}")
        f = [(first, 1)]
        if k == 'x':
            for n in range(4):
                f.append((f"buffer_load_dwordx4 v{XD+n}, s[{SX}:{SX+3}], s{sXC} offen offset:{1024*n} {qpol} lds", DC, item))
            f.append((lambda: adv(sXC, 128, 1152), 3))
        elif k == 'w':
            f.append((f"s_add_u32 s{sOFF}, s{sWC}, {(i//9)*4096}", 1))
            for n in range(4):
                f.append((f"buffer_load_dwordx4 v{WD+n}, s[{SW}:{SW+3}], s{sOFF} offen offset:{1024*n} {qpol} lds", DC, item))
            f.append((lambda: adv(sWC, 1 << 19, 9 << 19), 3))
        else:
            if opt.get('kvrot'): f.append((f"s_xor_b32 s{sOFF}, s29, {(i>>3)*16*131072 + (i&7)*16384}", 1))
            else: f.append((f"s_mov_b32 s{sOFF}, {(i>>3)*16*131072 + (i&7)*16384}", 1))
            for n in range(4):
                if k == 'k': f.append((f"buffer_load_dwordx4 v{KD+n}, s[{SK}:{SK+3}], s{sOFF} offen offset:{1024*n} {kvpol} lds", DC, item))
                else: f.append((f"buffer_load_dwordx4 v{VD}, s[{SV}:{SV+3}], s{sOFF} offen offset:{1024*n} {kvpol} lds", DC, item))
        return f
    XB, VB, WB = 3 * SL, 3 * SL, 6 * SL
    F_BASE = 0x1c0000
    sSN = [64, 64, 65]
    def fl_off(u):
        if u < 2:
            E(f"s_lshl_b32 s{sB}, s{sHG}, 8")
        else:
            E(f"s_and_b32 s{sB}, s{sM}, 1")
            E(f"s_lshl_b32 s{sB}, s{sB}, 8")
            E(f"s_add_u32 s{sB}, s{sB}, 1024")
    def snap(k):
        def g0():
            assert 'x8' in st['issued']
            E(f"v_and_b32 v{PV_}, 0x70, v{OD}")
            E(f"v_lshrrev_b32 v{PV_}, 2, v{PV_}")
            for u in (0, 2):
                fl_off(u)
                E(f"buffer_load_dword v{RL+u//2}, v{PV_}, s[{SPL}:{SPL+3}], s{sB} offen sc1", "sn")
            st['issued'].add('n0')
        def g1():
            assert 'n0' in st['issued'] and cur['j'] < 16
            for u in (0, 2):
                E(f"v_and_b32 v{RL+u//2}, 1, v{RL+u//2}")
                E(f"v_cmp_eq_u32_e64 s[100:101], 0, v{RL+u//2}")
                E(f"s_mov_b32 s{sSN[u]}, s100")
            st['issued'].add('n1')
        return [(g0, 2 * DC + 4)] if k == 0 else [(g1, 7)]
    def setup_rest():
        E(f"""
        s_mov_b32 s{sTH}, {hex(f32bits(thresh))}
        s_mov_b32 s{sSC}, {hex(f32bits(c))}
        s_mov_b32 s{sSC+1}, {hex(f32bits(c))}
        s_lshl_b32 s{sTMP}, s38, 3
        s_add_u32 s{sTMP}, s{sTMP}, s37
        s_add_u32 s{sTMP}, s{sTMP}, 1
        s_lshl_b32 s{sTMP}, s{sTMP}, 21
        s_add_u32 s82, s80, s{sTMP}
        s_addc_u32 s83, s81, 0
        s_lshl_b32 s{sTMP}, s36, 15
        s_add_u32 s{SO}, s82, s{sTMP}
        s_addc_u32 s{SO+1}, s83, 0
        s_mov_b32 s{SO+2}, {17*32768}
        s_mov_b32 s{SO+3}, 0x20000
        v_and_b32 v{t0}, 31, v0
        v_lshrrev_b32 v{t3}, 5, v0
        v_lshlrev_b32 v{t4}, 8, v{t0}
        v_xor_b32 v{t5}, v{t3}, v{t1}
        """)
        for s in range(8):
            E(f"""
            v_xor_b32 v{KA+s}, {2*s}, v{t5}
            v_lshlrev_b32 v{KA+s}, 4, v{KA+s}
            v_add_u32 v{KA+s}, v{KA+s}, v{t4}
            """)
        E(f"""
        v_lshrrev_b32 v{t5}, 1, v{t1}
        v_xor_b32 v{t5}, v{t3}, v{t5}
        v_lshlrev_b32 v{t4}, 7, v{t0}
        s_add_u32 s{sTMP}, s{sW4K}, {XB}
        v_add_u32 v{t4}, s{sTMP}, v{t4}
        """)
        for s in range(4):
            E(f"""
            v_xor_b32 v{XA+s}, {2*s}, v{t5}
            v_lshlrev_b32 v{XA+s}, 4, v{XA+s}
            v_add_u32 v{XA+s}, v{XA+s}, v{t4}
            """)
        E(f"""
        v_lshrrev_b32 v{t0}, 2, v{t1}
        v_and_b32 v{t4}, 1, v0
        v_lshlrev_b32 v{t4}, 4, v{t4}
        v_and_b32 v{t5}, 2, v0
        v_lshlrev_b32 v{t5}, 2, v{t5}
        v_add_u32 v{t4}, v{t4}, v{t5}
        v_and_b32 v{t5}, 16, v0
        v_lshlrev_b32 v{t5}, 1, v{t5}
        v_add_u32 v{t4}, v{t4}, v{t5}
        v_lshlrev_b32 v{t5}, 8, v{t0}
        v_add_u32 v{t4}, v{t4}, v{t5}
        v_lshlrev_b32 v{t3}, 10, v{t3}
        """)
        for t in range(4):
            E(f"""
            v_xor_b32 v{t5}, {t}, v{t0}
            v_lshlrev_b32 v{t5}, 6, v{t5}
            v_add_u32 v{t5}, v{t5}, v{t4}
            v_add_u32 v{t5}, v{t5}, v{t3}
            v_add_u32 v{VA+t}, {VB}, v{t5}
            v_add_u32 v{t5}, v{t5}, v{t3}
            v_add_u32 v{WA+t}, {WB}, v{t5}
            """)
        E(f"""
        v_lshlrev_b32 v{OD}, 4, v0
        s_lshl_b32 s{sTMP}, s35, 13
        v_add_u32 v{OD}, s{sTMP}, v{OD}
        s_and_b32 s{sM}, s36, 3
        s_lshr_b32 s{sHG}, s36, 2
        s_add_u32 s{SPL}, s82, {F_BASE}
        s_addc_u32 s{SPL+1}, s83, 0
        s_mov_b32 s{SPL+2}, 2048
        s_mov_b32 s{SPL+3}, 0x20000
        """)

    def rd_x(q):
        return [lds_read(lambda sl, s=s: f"ds_read_b128 a[{X+16*q+4*s}:{X+16*q+4*s+3}], v{XA+s} offset:{sl - XB}", f"x{q}") for s in range(4)]
    def wst(q, f):
        if q in opt.get('tmajor', ()): return f % 4, f // 4
        return f // 4, f % 4
    def rd_w(q, f, ri):
        s, t = wst(q, f)
        k, r = WF[ri % NWF]
        return [lds_read(lambda sl, jj=jj: f"ds_read_b64_tr_b16 {k}[{r+2*jj}:{r+2*jj+1}], v{WA+t} offset:{sl - WB + (16*s+4*jj)*256}", f"w{q}") for jj in range(2)]
    def mf_q(q, f, ri):
        s, t = wst(q, f)
        k, r = WF[ri % NWF]
        cq = q % 9
        acc = R('v', QACC + 16 * t, 16)
        src = '0' if (cq == 0 and s == 0) else acc
        return f"v_mfma_f32_32x32x16_bf16 {acc}, {k}[{r}:{r+3}], a[{X+16*cq+4*s}:{X+16*cq+4*s+3}], {src}"
    def rd_k(n, s):
        G, hf = n >> 1, n & 1
        return [lds_read(lambda sl: f"ds_read_b128 v[{KF+4*s}:{KF+4*s+3}], v{KA+s} offset:{sl + hf*8192}", f"k{G}")]
    def rd_v(n, f, order):
        G, hf = n >> 1, n & 1
        t, s2 = order[f]
        return [lds_read(lambda sl, jj=jj: f"ds_read_b64_tr_b16 a[{VF+4*f+2*jj}:{VF+4*f+2*jj+1}], v{VA+t} offset:{sl - VB + hf*8192 + (16*s2+8*jj)*256}", f"v{G}") for jj in range(2)]
    STD = [(f % 4, f // 4) for f in range(8)]
    LAST = [(f // 2, f % 2) for f in range(8)]
    def pv_order(n): return LAST if n % 16 == 15 else STD
    def mf_qk(n, s):
        d = R('v', S[n % 2], 16)
        src = d if s else ('0' if n % 16 == 0 else R('v', NEG, 16))
        return f"v_mfma_f32_32x32x16_bf16 {d}, v[{KF+4*s}:{KF+4*s+3}], {R('v', (Q if n < 16 else QACC) + 4*s, 4)}, {src}"
    def oacc(u, t): return R('a', O1 + 16 * t, 16) if u == 0 else R('v', O2 + 16 * t, 16)
    def mf_pv(n, f):
        t, s2 = pv_order(n)[f]
        d = oacc(n >> 4, t)
        src = '0' if (n % 16 == 0 and s2 == 0) else d
        p = P[n % 2] + 4 * s2
        return f"v_mfma_f32_32x32x16_bf16 {d}, a[{VF+4*f}:{VF+4*f+3}], v[{p}:{p+3}], {src}"
    def cvt_q(D):
        f = []
        for i in range(32):
            if D == Q or opt.get('epk'): f.append((f"v_pk_mul_f32 v[{QACC+2*i}:{QACC+2*i+1}], v[{QACC+2*i}:{QACC+2*i+1}], s[{sSC}:{sSC+1}]", 1))
            else: f += [(f"v_mul_f32 v{QACC+2*i+e}, s{sSC}, v{QACC+2*i+e}", 1) for e in range(2)]
            if i >= 2: f.append((f"v_cvt_pk_bf16_f32 v{D+i-2}, v{QACC+2*i-4}, v{QACC+2*i-3}", 1))
        for i in (30, 31): f.append((f"v_cvt_pk_bf16_f32 v{D+i}, v{QACC+2*i}, v{QACC+2*i+1}", 1))
        return f
    def max_tree(s, dst, tmp):
        f = [(f"v_max3_f32 v{dst}, v{s}, v{s+1}, v{s+2}", 1), (f"v_max3_f32 v{tmp}, v{s+3}, v{s+4}, v{s+5}", 1)]
        for i in range(6, 16, 4):
            f.append((f"v_max3_f32 v{dst}, v{dst}, v{s+i}, v{s+i+1}", 1))
            if i + 3 < 16: f.append((f"v_max3_f32 v{tmp}, v{tmp}, v{s+i+2}, v{s+i+3}", 1))
        f.append((f"v_max_f32 v{dst}, v{dst}, v{tmp}", 1))
        f.append((f"v_mov_b32 v{tmp}, v{dst}", 1))
        f.append((f"v_permlane32_swap_b32 v{dst}, v{tmp}", 3))
        f.append((f"v_max_f32 v{dst}, v{dst}, v{tmp}", 1))
        return f
    def first_max(n):
        s = S[n % 2]
        f = max_tree(s, LA, LB)
        f.append((f"v_sub_f32 v{NEG}, 0, v{LA}", 1))
        for i in range(1, 16): f.append((f"v_mov_b32 v{NEG+i}, v{NEG}", 1))
        g = [(f"v_sub_f32 v{s+i}, v{s+i}, v{LA}", 1) for i in range(16)]
        return f, g
    rare = {}
    stubs = []
    def softmax_items(n):
        s = S[n % 2]; p = P[n % 2]; L = L1 if n < 16 else L2
        ex = [(f"v_exp_f32 v{T+k%8}, v{s+k}", 2) for k in range(16)]
        ad = []
        for k in range(16):
            acc = LA if k % 2 == 0 else LB
            if k < 2: ad.append(None)
            elif k < 4: ad.append((f"v_add_f32 v{acc}, v{T+(k-2)%8}, v{T+k%8}", 1))
            else: ad.append((f"v_add_f32 v{acc}, v{acc}, v{T+k%8}", 1))
        cv = [(f"v_cvt_pk_bf16_f32 v{p+e}, v{T+(2*e)%8}, v{T+(2*e+1)%8}", 1) for e in range(8)]
        tail = []
        if n % 16 == 0:
            tail.append((f"v_add_f32 v{L}, v{LA}, v{LB}", 1))
        else:
            key = (n % 2, n >> 4, n % 16 != 15)
            rare[key] = f"K1_RARE_{key[0]}{key[1]}{int(key[2])}"
            tail.append((f"v_add_f32 v{LA}, v{LA}, v{LB}", 1))
            tail.append((f"v_cmp_nge_f32 vcc, s{sTH}, v{LA}", 1))
            def br(n=n, key=key):
                nm = f"{n}{cur['var']}"
                E(f"s_cbranch_vccnz K1_STUB_{nm}")
                E.label(f"K1_BACK_{nm}")
                stubs.append((nm, rare[key]))
            tail.append((br, 1))
            tail.append((f"v_add_f32 v{L}, v{L}, v{LA}", 1))
        return ex, ad, cv, tail
    def softmax_stream(n):
        ex, ad, cv, tail = softmax_items(n)
        f = []
        LAG = opt.get('smlag', 2)
        for k in range(16 + LAG):
            if k < 16: f.append(ex[k])
            kk = k - LAG
            if kk >= 0:
                if ad[kk]: f.append(ad[kk])
                if kk % 2 == 1: f.append(cv[kk // 2])
        return f, tail
    opol = opt.get('opol', 'sc1')
    epi_done = set()
    def o_store(u, fr):
        k, r = OF[4 * u]; r += 4 * fr
        def chk(): assert (u, fr) in epi_done; E(f"s_mov_b32 s{sTMP}, {u*16*32768 + (fr//4)*4096}"); st['issued'].add(f"o{u}.{fr}")
        return [(chk, 1), (f"buffer_store_dwordx4 {k}[{r}:{r+3}], v{OD}, s[{SO}:{SO+3}], s{sTMP} offen offset:{(fr%4)*1024} {opol}", DC, f"o{u}")]
    def st_o(item): return o_store(0, int(item[1:]))
    def epi_items(u, fr, pk):
        t, s2 = fr // 2, fr % 2
        D = EP if u == 0 else QACC + 4 * fr
        f = []
        if u == 0:
            for i in range(8): f.append((f"v_accvgpr_read_b32 v{EP+i}, a{O1+16*t+8*s2+i}", 1))
            src = EP
        else:
            src = O2 + 16 * t + 8 * s2
        if pk:
            for i in range(4): f.append((f"v_pk_mul_f32 v[{src+2*i}:{src+2*i+1}], v[{src+2*i}:{src+2*i+1}], v[{RL}:{RL+1}] op_sel_hi:[1,0]", 1))
        else:
            for i in range(8): f.append((f"v_mul_f32 v{src+i}, v{src+i}, v{RL}", 1))
        for i in range(4): f.append((f"v_cvt_pk_bf16_f32 v{D+i}, v{src+2*i}, v{src+2*i+1}", 1))
        if u == 0:
            for i in range(4): f.append((f"v_accvgpr_write_b32 a{OF[0][1]+4*fr+i}, v{D+i}", 1))
        f.append((lambda: epi_done.add((u, fr)), 0))
        if u == 1: f += o_store(1, fr)
        return f
    def rl_items(L):
        return [(f"v_mov_b32 v{RL+1}, v{L}", 1), (f"v_mov_b32 v{RL}, v{L}", 1), (f"v_permlane32_swap_b32 v{RL}, v{RL+1}", 3),
                (f"v_add_f32 v{RL}, v{RL}, v{RL+1}", 1), (f"v_rcp_f32 v{RL}, v{RL}", 2)]
    def items(l): return [f for it in l for f in dma(it)]
    def items_lo(l):
        its = []; lo = []
        for it in l:
            nm, _, g = it.partition('@')
            f = dma(nm); its += f; lo += [int(g or 0)] * len(f)
        return its, lo

    class Strm:
        def __init__(self, its, g0=0, g1=None, lo=None, asap=False, hard=False, hi=None):
            self.its = list(its); self.g0 = g0; self.g1 = g1; self.lo = lo; self.asap = asap; self.hard = hard; self.hi = hi
    def schedule(mf, streams, fixed=None):
        n = len(mf)
        fixed = fixed or {}
        Q_ = []
        total = sum(f[1] for v in fixed.values() for f in v)
        for sm in streams:
            g1 = n if sm.g1 is None else min(sm.g1, n)
            g0 = min(sm.g0, g1 - 1)
            tot = sum(f[1] for f in sm.its); acc = 0; l = []
            total += tot
            prev = 0
            hi = list(sm.hi) if sm.hi else [n] * len(sm.its)
            for i in range(len(hi) - 2, -1, -1): hi[i] = min(hi[i], hi[i + 1])
            for i, f in enumerate(sm.its):
                lo = max(g0, sm.lo[i] if sm.lo else 0, prev); prev = lo
                due = lo if sm.asap else max(lo, g0 + (acc + f[1] * 0.5) * (g1 - g0) / max(tot, 1) - 0.5)
                acc += f[1]
                assert lo <= hi[i], (f, lo, hi[i])
                l.append((f, min(lo, n - 1), due, min(hi[i], max(g1 - 1, min(lo, n - 1))), sm.hard))
            Q_.append(l)
        cap = max(opt.get('cap', 6), total / n)
        carry = 0.0
        for g in range(n):
            m = mf[g]
            if callable(m): m()
            else: E(m)
            used = 0
            for f in fixed.get(g, []): put([f]); used += f[1]
            lim = cap + carry
            while True:
                best = None
                for l in Q_:
                    if not l or l[0][1] > g: continue
                    f, lo, due, hi, hard = l[0]
                    forced = hi <= g or (hard and due <= g)
                    if not forced:
                        if due > g + opt.get('early', 1.5): continue
                        if used + f[1] > lim + 0.01 and not (used == 0): continue
                    key = (0 if forced else 1, due)
                    if best is None or key < best[0]: best = (key, l)
                if best is None: break
                f = best[1].pop(0)[0]
                put([f]); used += f[1]
            carry = max(0.0, min(lim - used, cap - int(cap)))
        for l in Q_: assert not l

    CS = dict(fr=[], nm=0, nr=0, u=False, m0=0)
    def cs_tiles(upto):
        return sorted({d[0] for d in CS['fr'][CS['nr']:upto]}, key=lambda x: int(x[1:]))
    def cs_take(cm, ra):
        m0 = CS['nm']; CS['nm'] = m0 + cm; CS['m0'] = m0
        assert CS['nm'] <= len(CS['fr'])
        mf = [CS['fr'][i][2](i) for i in range(m0, m0 + cm)]
        r1 = min(m0 + cm + ra, len(CS['fr']))
        rd = []
        for i in range(CS['nr'], r1):
            rd.append((i, CS['fr'][i][1](i), i - NWF - m0, CS['fr'][i][0]))
        CS['nr'] = max(CS['nr'], r1)
        return mf, rd, m0
    def q_frags(qs): return [(f"w{q}", (lambda i, q=q, f=f: rd_w(q, f, i)), (lambda i, q=q, f=f: mf_q(q, f, i))) for q in qs for f in range(16)]

    UB = dict(ok=False, set=False)
    def oproj_setup():
        f = []
        def srd1():
            assert 'w17' in st['issued']
            E(f"""
            s_cmp_eq_u32 s38, 0
            s_cselect_b32 s{SWO}, s84, s86
            s_cselect_b32 s{SWO+1}, s85, s87
            s_mul_i32 s{sN}, s{sHG}, {512*1152}
            s_add_u32 s{SWO}, s{SWO}, s{sN}
            s_addc_u32 s{SWO+1}, s{SWO+1}, 0
            s_sub_u32 s{SWO+2}, {4096*1152}, s{sN}
            """)
        f.append((srd1, 7))
        def srd2():
            E(f"""
            s_lshl_b32 s{sN}, s{sM}, 15
            s_sub_u32 s{SOR}, s{SO}, s{sN}
            s_subb_u32 s{SOR+1}, s{SO+1}, 0
            s_mov_b32 s{SOR+2}, {20*32768}
            """)
        f.append((srd2, 4))
        def se():
            E(f"""
            s_lshr_b32 s{sN}, s35, 1
            s_add_u32 s{sN}, s{sN}, s{sM}
            s_and_b32 s{sN}, s{sN}, 3
            s_lshl_b32 s{sN}, s{sN}, 1
            s_and_b32 s{sE}, s35, 1
            s_add_u32 s{sN}, s{sN}, s{sE}
            s_mul_i32 s{sN}, s{sN}, {64*1152}
            s_and_b32 s{sE}, s{sM}, 1
            s_lshl_b32 s{sE}, s{sE}, 6
            s_add_u32 s{sE}, s{sE}, s{sN}
            s_add_u32 s{sE}, s{sE}, 1024
            s_lshl_b32 s{sMK}, s{sM}, 8
            """)
        f.append((se, 12))
        txt = f"""
        v_lshrrev_b32 v{UD+1}, 13, v{WD}
        v_and_b32 v{UD}, 0xff, v{WD}
        v_mul_u32_u24 v{UD+1}, 1152, v{UD+1}
        v_add3_u32 v{UD}, v{UD}, v{UD+1}, s{sMK}
        v_add_u32 v{UD+1}, {4*1152-1024}, v{UD}
        v_add_u32 v{UD+2}, {8*1152-2048}, v{UD}
        v_add_u32 v{UD+3}, {12*1152-3072}, v{UD}
        v_bfe_u32 v{ED}, v{OD}, 6, 4
        v_mul_u32_u24 v{ED}, 1152, v{ED}
        v_and_b32 v{PD}, 0x30, v{OD}
        v_add_u32 v{ED}, v{ED}, v{PD}
        v_and_b32 v{EA}, 0x2d0, v{OD}
        v_and_b32 v{PD}, 0x20, v{OD}
        v_lshrrev_b32 v{PD}, 2, v{PD}
        v_add_u32 v{EA}, v{EA}, v{PD}
        v_and_b32 v{PD}, 0x100, v{OD}
        v_lshrrev_b32 v{PD}, 3, v{PD}
        v_add_u32 v{EA}, v{EA}, v{PD}
        v_add_u32 v{EA}, {WB}, v{EA}
        """
        f += [(l.strip(), 1) for l in txt.strip().split('\n')]
        f += [(f"v_subrev_u32 v{XA+t}, {WB}, v{WA+t}", 1) for t in range(4)]
        f.append((lambda: UB.update(set=True), 0))
        return f
    def ubase_setup():
        UB['ok'] = True
        return [(f"v_subrev_u32 v{KA+t}, {WB - 3*SL}, v{WA+t}", 1) for t in range(4)] + [(f"v_subrev_u32 v{KA+4}, {WB - 2*SL}, v{EA}", 1)]
    def publish(u):
        def g():
            assert 'n1' in st['issued']
            fl_off(u)
            if u < 2: E(f"s_add_u32 s100, s{sM}, {4*u}")
            else:
                E(f"s_and_b32 s100, s{sM}, 2")
                E(f"s_lshl1_add_u32 s100, s100, s{sHG}")
            E(f"s_lshl2_add_u32 s{sB}, s100, s{sB}")
            E(f"s_lshr_b32 s100, s{sSN[u]}, s100")
            E(f"v_mov_b32 v{PD}, s100")
            E(f"v_lshlrev_b32 v{RL+1}, 8, v{OD}")
            E(f"buffer_store_dword v{PD}, v{RL+1}, s[{SPL}:{SPL+3}], s{sB} offen {opt.get('fpol', 'sc1') if u < 2 else 'sc1'}", f"fl{u}")
            stamp(f'pb{u}', 3)
        return [(g, DC + 6)]
    def poll_ld(u):
        return f"buffer_load_dword v{PD}, v{PV_}, s[{SPL}:{SPL+3}], s{sB} offen sc1"
    def poll_issue(u):
        def g():
            fl_off(u)
            E(poll_ld(u), f"pl{u}")
        return [(g, DC)]
    polls = []
    def poll_test(u):
        return f"""
            v_and_b32 v{PD}, 1, v{PD}
            v_cmp_ne_u32_e64 s[100:101], 0, v{PD}
            s_nop 0
            s_xor_b32 s100, s100, s{sSN[u]}
            s_and_b32 s100, s100, {[0x0f, 0xf0, 0xff][u]}
            """
    def poll_check(u):
        def g():
            stamp(f'pw{u}', 3)
            fl_off(u)
            E(poll_test(u))
            E(f"s_cbranch_scc1 K1_POLL_{u}")
            E.label(f"K1_PBACK_{u}")
            polls.append(u)
            stamp(f'pc{u}', 3)
        return [(g, 7)]
    def rot(hs):
        E(f"s_add_u32 s{sN}, s{sM}, {hs & 3}")
        E(f"s_and_b32 s{sN}, s{sN}, 3")
    upol = opt.get('upol', '')
    def ld_u(c):
        def first():
            assert UB['set']
            a = on_issue(f"u{c}")
            rot(c >> 1)
            E(f"s_mul_i32 s{sOFF}, s{sN}, {128*1152}")
            E(f"s_add_u32 s{sOFF}, s{sOFF}, {(c >> 3)*2048*1152 + (c & 1)*64*1152}")
            E(f"s_add_u32 m0, s{sW4K}, {a}")
        return [(first, 5)] + [(f"buffer_load_dwordx4 v{UD+i}, s[{SWO}:{SWO+3}], s{sOFF} offen offset:{1024*i} {upol} lds", DC, f"u{c}") for i in range(4)]
    def touch_u(c):
        def g():
            early = not UB['set']
            assert cur.get('j', -1) != 16
            D = L1 if cur.get('j', -1) > 16 or (early and c == 1) else L2
            S_ = SWO
            if early:
                assert 'n1' not in st['issued'] and 'j' not in cur
                S_ = 64
                E(f"""
                s_cmp_eq_u32 s38, 0
                s_cselect_b32 s64, s84, s86
                s_cselect_b32 s65, s85, s87
                s_mov_b32 s66, {4096*1152}
                s_mov_b32 s67, 0x20000
                s_lshl_b32 s{sN}, s36, 3
                """)
            else: E(f"s_lshl_b32 s{sN}, s{sM}, 3")
            E(f"""
            s_add_u32 s{sN}, s{sN}, s37
            s_lshl2_add_u32 s{sN}, s{sN}, s35
            s_mul_i32 s{sOFF}, s{sN}, {4*1152}
            s_add_u32 s{sOFF}, s{sOFF}, {c*2048*1152}
            v_and_b32 v{D}, 0x3f0, v{OD}
            v_min_u32 v{D}, {35*16}, v{D}
            v_lshlrev_b32 v{D}, 3, v{D}
            """)
            E(f"buffer_load_dword v{D}, v{D}, s[{S_}:{S_+3}], s{sOFF} offen", f"t{c}")
        return [(g, 8 + DC)]
    def ld_e(c):
        def first():
            assert UB['set']
            a = on_issue(f"e{c}")
            E(f"s_add_u32 m0, s{sW4K}, {a}")
        f = [(first, 1)]
        for i in range(4):
            f.append((f"s_add_u32 s{sOFF}, s{sE}, {c*2048*1152 + i*(16*1152-1024)}", 1))
            f.append((f"buffer_load_dwordx4 v{ED}, s[{SWO}:{SWO+3}], s{sOFF} offen offset:{1024*i} {upol} lds", DC, f"e{c}"))
        return f
    def ld_a(item):
        hs, _, part = item[1:].partition('.')
        hs = int(hs)
        frs = range(8) if part == '' else range(4 * int(part), 4 * int(part) + 4)
        k, r = OF[hs]
        def first():
            for h2 in range(hs):
                if OF[h2] == OF[hs]:
                    assert CS['u'] and not any(d[3] == h2 for d in CS['fr'][CS['m0']:]), (hs, h2)
                    if h2 == 0: assert all(f"o0.{fr}" in st['issued'] for fr in range(8))
            if k == 'a' and O1 <= r < O1 + 64: assert all((0, fr) in epi_done for fr in range(8))
            if (k, r) == ('a', VF): assert cur['plan'] is None
            if (k, r) == ('v', KF): assert cur.get('j', 0) >= 31
            assert (hs >> 2) in polls and hs % 4
            rot(hs)
            E(f"s_lshl_b32 s{sA}, s{sN}, 15")
            off = (hs >> 2) * 16 * 32768 + (4096 if frs[0] == 4 else 0)
            if off: E(f"s_add_u32 s{sA}, s{sA}, {off}")
        f = [(first, 4)]
        for fr in frs:
            if fr == 4 and frs[0] == 0: f.append((f"s_add_u32 s{sA}, s{sA}, 4096", 1))
            f.append((f"buffer_load_dwordx4 {k}[{r+4*fr}:{r+4*fr+3}], v{OD}, s[{SOR}:{SOR+3}], s{sA} offen offset:{(fr%4)*1024} {opt.get('apol', 'sc1')}", DC, f"a{hs}"))
            f.append((lambda fr=fr: st['issued'].add(f"a{hs}.{fr}"), 0))
        return f
    def rd_u(c, s, t, ri):
        k, r = WF[ri % NWF]
        def fn(a, jj):
            if t == 4:
                if a >= WB: b, o = EA, WB
                else:
                    assert UB['ok'] and a >= 2 * SL
                    b, o = KA + 4, 2 * SL
                return f"ds_read_b64_tr_b16 {k}[{r+2*jj}:{r+2*jj+1}], v{b} offset:{a - o + (c & 3)*4096 + (16*s+4*jj)*64}"
            if a >= WB: b, o = WA, WB
            elif a < 4 * SL: b, o = XA, 0
            else:
                assert UB['ok']
                b, o = KA, 3 * SL
            return f"ds_read_b64_tr_b16 {k}[{r+2*jj}:{r+2*jj+1}], v{b+t} offset:{a - o + (16*s+4*jj)*256}"
        return [lds_read(lambda a, jj=jj: fn(a, jj), f"e{c>>3}" if t == 4 else f"u{c}") for jj in range(2)]
    def mf_u(c, s, t, ri, first):
        k, r = WF[ri % NWF]
        hs = c >> 1; fr = 4 * (c & 1) + s
        kb, rb = OF[hs]; rb += 4 * fr
        acc = R('a', ACC + 16 * t, 16)
        def g():
            assert ((hs >> 2, fr) in epi_done) if hs % 4 == 0 else (f"a{hs}.{fr}" in st['issued']), (c, s, t)
            E(f"v_mfma_f32_32x32x16_bf16 {acc}, {k}[{r}:{r+3}], {kb}[{rb}:{rb+3}], {'0' if first else acc}")
        return g
    def u_frags(cs):
        l = []; seen = set()
        for c in cs:
            nt = 5 if (c & 7) < 4 else 4
            o = [(s, t) for t in range(nt) for s in range(4)] if c == cs[-1] else [(s, t) for s in range(4) for t in range(nt)]
            for s, t in o:
                l.append((f"e{c>>3}" if t == 4 else f"u{c}", (lambda i, c=c, s=s, t=t: rd_u(c, s, t, i)),
                          (lambda i, c=c, s=s, t=t, fi=(t not in seen): mf_u(c, s, t, i, fi)), c >> 1, t))
                seen.add(t)
        return l

    RLAG = opt.get('rlag', 0)
    def merge(att, cm):
        na, nc = len(att), cm
        seq = []; ia = ic = 0
        while ia < na or ic < nc:
            if ic < nc and (ia >= na or (ic + 1) * na <= ia * nc + opt.get('cbias', 0) * nc): seq.append(('c', ic)); ic += 1
            else: seq.append(att[ia]); ia += 1
        return seq
    def cread_stream(rd, cpos, bpos, newt, m0):
        its = []; lo = []; hi = []
        for i, reads, after, tile in rd:
            g = cpos[after] + RLAG if after >= 0 else 0
            if tile in newt: g = max(g, bpos)
            assert i - m0 >= len(cpos) or cpos[i - m0] > g, "fragment read after its use"
            h = 10**6 if i - m0 >= len(cpos) else max(g, cpos[i - m0] - 3)
            for x in reads: its.append(x); lo.append(g); hi.append(h)
        return Strm(its, lo=lo, asap=True, hi=hi)

    def p0(plan):
        PREF.update(plan.get('pref0', {}))
        stamp('i0', 3)
        for it in plan['init']: put(dma(it))
        stamp('i1', 3)
        setup_rest()
        stamp('i2', 3)
        for it in plan.get('init2', []): put(dma(it))
        stamp('iss')
        xr = plan.get('xread', {q - 1: [q] for q in range(9)})
        for q in xr.get(-1, []): put(rd_x(q))
        put(items(plan['ld'].get(('q', -1), [])))
        CS.update(fr=q_frags(range(9)), nm=0, nr=0)
        LAGP = plan.get('lagp', 8)
        for q in range(10):
            cm = 16 - LAGP if q == 0 else (16 if q < 9 else LAGP)
            if cm == 0: continue
            tags = [f"w{q}"] if q < 9 else ["k0"] + plan['prew']
            fixed = {}; bp = 0
            if q == 0 or LAGP == 0:
                barrier(*tags)
                if q == 0: stamp('b0')
                _, rd, _ = cs_take(0, NWF)
                for r in rd: put(r[1])
            else:
                bp = plan.get('bposp', 2)
                fixed[bp] = [(lambda tags=tags: barrier(*tags), 2)]
            mf, rd, m0 = cs_take(cm, LAGP)
            cpos = list(range(cm))
            sts = [cread_stream(rd, cpos, bp, tags, m0), Strm(items(plan['ld'].get(('q', q), [])), g0=bp, g1=plan.get('pspan', 16))]
            if q < 9: sts.append(Strm([x for qq in xr.get(q, []) for x in rd_x(qq)], g0=cm - 2))
            if q == 9:
                sts.append(Strm([x for s in range(8) for x in rd_k(0, s)] + items(plan['ld'].get('pre', [])), g0=bp))
            schedule(mf, sts, fixed)
            stamp(f'c{q}', 2)
        stamp('p0')
        if LAGP == 0:
            barrier("k0", *plan['prew'])
            for s in range(8): put(rd_k(0, s))
            put(items(plan['ld'].get('pre', [])))
        CS.update(fr=q_frags(range(9, 18)), nm=0, nr=0)
        _, rd, _ = cs_take(0, NWF)
        put(cvt_q(Q))
        schedule([mf_qk(0, s) for s in range(8)], [Strm([rd_k(1, s)[0] for s in range(8)], lo=list(range(8)), asap=True),
                                                   Strm([x for r in rd for x in r[1]])])
        f, g = first_max(0)
        cm = plan['cm'][-1]
        mf, rd, m0 = cs_take(cm, plan.get('ra', 8))
        schedule(mf, [cread_stream(rd, list(range(cm)), 0, (), m0), Strm(f + g, g0=1), Strm(items(plan['ld'].get('pre2', [])))])
        stamp('pre')
    PUB = opt.get('pub', 18)
    EPI = opt.get('epi', {16: [0], 17: [1, 2, 3], 18: [4, 5], 19: [6, 7]})
    def step(j, plan):
        cur['j'] = j
        hasqk = j + 1 < 32; haspv = j >= 1; hassm = j < 32
        if j == 16:
            att = [('pv', f) for f in range(8)] + [('qk', s) for s in range(8)]
        elif hasqk and haspv:
            att = [('qk', 0)]
            for s in range(1, 8): att += [('qk', s), ('pv', s - 1)]
            att += [('pv', 7)]
        elif hasqk: att = [('qk', s) for s in range(8)]
        else: att = [('pv', f) for f in range(8)]
        if j == plan.get('ustart'):
            assert CS['nm'] == len(CS['fr']) and j > max(EPI) and (opt['uorder'][-1] & 7) >= 4
            CS.update(fr=u_frags(opt['uorder']), nm=0, nr=0, u=True)
        cmd = plan.get('cm', {}); ra = plan.get('ra', 8)
        cm = cmd.get(j, 0)
        bpos = -1; newt = ()
        fixed = {}
        if j % 2 == 0 and j <= opt.get('lastbar', 30):
            G = j // 2
            bpos = opt.get('bpos', 2)
            newt = cs_tiles(CS['nm'] + cm + cmd.get(j + 1, 0) + ra)
            newt = [t for t in newt if t not in st['visible'] and t in st['issued']]
            newt += [t for t in plan.get('btag', {}).get(j, []) if t not in newt]
            tags = [f"k{G+1}", f"v{G}"] + newt
            if j == PUB:
                assert all(f"o0.{fr}" in st['issued'] for fr in range(8))
                tags.append("o0")
            fixed[bpos] = [(lambda tags=tags: barrier(*tags), 2)]
            if j == PUB: fixed[bpos] += publish(0)
        if j in plan.get('pref', {}): PREF.update(plan['pref'][j])
        while ra > 0 and any(t not in st['visible'] and t not in newt for t in cs_tiles(CS['nm'] + cm + ra)): ra -= 1
        ahead = CS['nr'] - CS['nm']
        cmf, rd, m0 = cs_take(cm, ra)
        sk = min(len(att) - 1, max(bpos, 0) + 3) if ahead < 2 else 0
        seq = att[:sk] + merge(att[sk:], cm)
        n = len(seq)
        mf = [mf_qk(j + 1, i) if k == 'qk' else mf_pv(j - 1, i) if k == 'pv' else cmf[i] for k, i in seq]
        cpos = [g for g, (k, i) in enumerate(seq) if k == 'c']
        lastatt = max(g for g, (k, i) in enumerate(seq) if k != 'c')
        sts = []
        if hassm:
            sm, tail = softmax_stream(j)
            if j == 16:
                f, g = first_max(16)
                q0 = min(gi for gi, (k, i) in enumerate(seq) if k == 'qk')
                a_ = rl_items(L1) + f; b_ = g + sm + tail
                sts.append(Strm(a_ + b_, 0, n, hi=[q0 - 2] * len(a_) + [n] * len(b_)))
            else:
                lo = [0] * (len(sm) + len(tail))
                if len(tail) > 1:
                    lo[-2] = lastatt
                sts.append(Strm(sm + tail, 0, n, lo=lo))
        its = []; lo = []
        for gi, (k, i) in enumerate(seq):
            g = min(max(gi + RLAG, bpos), n - 1)
            r = []
            if k == 'qk' and j + 2 < 32: r = rd_k(j + 2, i)
            if k == 'pv' and j < 32: r = rd_v(j, i, pv_order(j))
            its += r; lo += [g] * len(r)
        sts.append(Strm(its, lo=lo, asap=True))
        if j == 0:
            sts.append(Strm([x for f in range(8) for x in rd_v(0, f, STD)], bpos, n))
        sts.append(cread_stream(rd, cpos, bpos, newt, m0))
        if j in EPI:
            sts.append(Strm([x for fr in EPI[j] for x in epi_items(0, fr, opt.get('epk', False))], 8 if j == 16 else 0, n))
        if j == opt.get('osetup', 15):
            assert not [x for x in plan['ld'].get(('s', j), []) if x[0] in 'ueapcyz']
            sts.append(Strm(oproj_setup(), 0, n))
        if j == 14:
            assert CS['nm'] == len(CS['fr'])
            sts.append(Strm(cvt_q(QACC), (cpos[-1] if cpos else -1) + 3, n))
        if j == 30:
            fixed.setdefault(0, []).extend(ubase_setup())
        g0, g1 = plan.get('span', {}).get(j, (bpos + 1, n))
        its, lo = items_lo(plan['ld'].get(('s', j), []))
        sts.append(Strm(its, max(g0, bpos + 1), min(g1, n), lo=lo))
        if j == 32:
            put(rl_items(L2))
            pv = [g for g, (k, i) in enumerate(seq) if k == 'pv']
            its = []; lo = []
            for t in range(4):
                e = epi_items(1, 2*t, opt.get('epk', False)) + epi_items(1, 2*t+1, opt.get('epk', False))
                its += e; lo += [min(pv[2*t+1] + 2, n - 1)] * len(e)
            sts.append(Strm(its, lo=lo, asap=True))
        schedule(mf, sts, fixed)
        stamp(f's{j}', 1 if j in (15, 31) else 2)
    import copy
    fronts = opt['fronts']; JOIN = opt.get('join', 15); back = opt['back']
    def front(plan, var):
        cur['plan'] = plan; cur['var'] = var
        p0(plan)
        for j in range(JOIN): step(j, plan)
        cur['plan'] = None; cur['var'] = ''
    if len(fronts) == 1:
        front(fronts[0], '')
    else:
        E(f"s_bitcmp1_b32 s2, {opt.get('pbit', 3)}")
        E("s_cbranch_scc1 K1_P0B")
        save = (copy.deepcopy(st), list(E.vm), list(E.lgkm), nst[0], list(stn))
        front(fronts[0], 'a')
        endA = (copy.deepcopy(st), [t for t, d in E.vm], list(stn))
        E.wait_lgkm(0)
        E("s_branch K1_P0J")
        E.label("K1_P0B")
        st.clear(); st.update(copy.deepcopy(save[0])); E.vm = list(save[1]); E.lgkm = list(save[2]); nst[0] = save[3]; stn[:] = save[4]
        front(fronts[1], 'b')
        E.wait_lgkm(0)
        E.label("K1_P0J")
        E.nop(12)
        A_, B_ = endA[1], [t for t, d in E.vm]
        n = min(len(A_), len(B_))
        assert A_[len(A_)-n:] == B_[len(B_)-n:], (A_, B_)
        if len(A_) > len(B_): E.vm = [(t, set()) for t in A_]
        assert endA[2] == stn
        SA = endA[0]
        assert SA['issued'] == st['issued'], (SA['issued'] ^ st['issued'])
        assert SA['epoch'] == st['epoch']
        for p in set(SA['live']) | set(st['live']):
            full = lambda s_: s_['nread'].get(p, 0) == NREADS[p[0]]
            assert SA['nread'].get(p, 0) == st['nread'].get(p, 0), p
            if not full(st) or SA['lastread'][p] == SA['epoch'] or st['lastread'][p] == st['epoch']:
                assert p in SA['live'] and p in st['live'] and SA['addr'][p] == st['addr'][p], p
                if p in st['lastread']: st['lastread'][p] = max(st['lastread'][p], SA['lastread'][p])
        st['visible'] &= SA['visible']
    cur['plan'] = back
    for j in range(JOIN, 33): step(j, back)
    cur['plan'] = None; cur['j'] = 33
    PREF['u'] = opt.get('tailu', [7, 8, 9, 0, 1, 2, 3, 4, 5, 6]); PREF['e'] = opt.get('taile', [4, 5, 6, 7, 8, 9, 2, 3])
    PS = 10240
    PT = [S[0], S[1]]
    TA = NEG
    TS = dict(ok=False, ps4=False)
    def pstore(t):
        f = [(lambda: TS['ok'] or 1 / 0, 0)]
        tm = PT[t % 2]
        for h in range(2):
            for i in range(8): f.append((f"v_accvgpr_read_b32 v{tm+8*h+i}, a{ACC+16*t+8*h+i}", 1))
            for i in range(4): f.append((f"v_cvt_pk_bf16_f32 v{tm+8*h+i}, v{tm+8*h+2*i}, v{tm+8*h+2*i+1}", 1))
            f.append((f"buffer_store_dwordx4 v[{tm+8*h}:{tm+8*h+3}], v{[TA, TA+9, TA+1][t//2]}, s[{SPW}:{SPW+3}], 0 offen offset:{((2*t+h)%4)*1024} {opt.get('ppol', 'sc1')}", DC, "ps"))
        return f
    def tail_setup():
        def g1():
            E(f"""
            s_mul_i32 s{sN}, s{sHG}, {4*PS}
            s_sub_u32 s{SPR+2}, {64*PS}, s{sN}
            s_add_u32 s{sN}, s{sN}, {1<<20}
            s_add_u32 s{SPR}, s82, s{sN}
            s_addc_u32 s{SPR+1}, s83, 0
            s_lshl4_add_u32 s{sN}, s{sM}, s{sHG}
            s_mul_i32 s{sN}, s{sN}, {PS}
            s_add_u32 s{sN}, s{sN}, {1<<20}
            s_add_u32 s{SPW}, s82, s{sN}
            s_addc_u32 s{SPW+1}, s83, 0
            s_mov_b32 s{SPW+2}, {13*PS}
            """)
        def g2():
            E(f"""
            v_and_b32 v{TA+6}, 0x3f0, v{OD}
            s_mul_i32 s{sN}, s35, {4*PS}
            s_add_u32 s{sTMP}, s{sN}, 8192
            v_add_u32 v{TA+1}, s{sTMP}, v{TA+6}
            s_cmp_eq_u32 s35, s{sHG}
            s_cselect_b32 s{sN}, 0x20000000, s{sN}
            v_add_u32 v{TA}, s{sN}, v{TA+6}
            v_add_u32 v{TA+9}, 4096, v{TA}
            s_lshl_b32 s{sN}, s35, 11
            v_add_u32 v{TA+7}, s{sN}, v{TA+6}
            s_lshl_b32 s{sN}, s35, 10
            v_add_u32 v{TA+2}, s{sN}, v{TA+6}
            v_add_u32 v{TA+3}, 4096, v{TA+2}
            """)
        def g2b():
            E(f"""
            s_and_b32 s{sN}, s{sM}, 2
            s_lshl_b32 s{sTMP}, s{sN}, 10
            v_add_u32 v{TA+8}, s{sTMP}, v{TA+6}
            s_lshl_b32 s{sTMP}, s{sN}, 9
            s_add_u32 s{sTMP}, s{sTMP}, 8192
            s_cmp_lg_u32 s35, 0
            s_cselect_b32 s{sTMP}, 0x40000000, s{sTMP}
            v_add_u32 v{TA+4}, s{sTMP}, v{TA+6}
            s_lshl_b32 s{sN}, s{sN}, 4
            s_and_b32 s{sTMP}, s{sM}, 1
            s_lshl_b32 s{sTMP}, s{sTMP}, 6
            s_add_u32 s{sN}, s{sN}, s{sTMP}
            s_add_u32 s{sN}, s{sN}, 1024
            s_lshl_b32 s{sTMP}, s{sM}, 8
            s_sub_u32 s{sN}, s{sN}, s{sTMP}
            s_cmp_lg_u32 s35, 0
            s_cselect_b32 s{sR1}, 0x40000000, s{sN}
            """)
        def g2c():
            E(f"""
            v_bfe_u32 v{TA+5}, v{OD}, 4, 5
            v_mul_u32_u24 v{TA+5}, 2304, v{TA+5}
            v_and_b32 v{TA+10}, 0x200, v{OD}
            v_lshrrev_b32 v{TA+10}, 5, v{TA+10}
            s_lshl_b32 s{sN}, s35, 5
            v_add3_u32 v{TA+5}, v{TA+5}, v{TA+10}, s{sN}
            """)
        def g3():
            E(f"""
            s_lshl_b32 s{sN}, s37, 2
            s_add_u32 s{sN}, s{sN}, s{sHG}
            s_mul_i32 s{sN}, s{sN}, {32*2304}
            s_mul_i32 s{sTMP}, s38, 1152
            s_add_u32 s{sN}, s{sN}, s{sTMP}
            s_lshl_b32 s{sTMP}, s{sM}, 8
            s_add_u32 s{sN}, s{sN}, s{sTMP}
            s_add_u32 s{SD}, s88, s{sN}
            s_addc_u32 s{SD+1}, s89, 0
            s_sub_u32 s{SD+2}, {1024*2304}, s{sN}
            """)
            TS['ok'] = True
        return [(g1, 6), (g2, 6), (g2b, 6), (g2c, 6), (g3, 6)]
    ops = opt['tail']
    for oi, op in enumerate(ops):
        if op[0] == 'mf':
            cm = op[1] if op[1] >= 0 else len(CS['fr']) - CS['nm']
            ra = 8
            while ra > 0 and any(t not in st['visible'] for t in cs_tiles(CS['nm'] + cm + ra)): ra -= 1
            if CS['nr'] < min(CS['nm'] + 2, len(CS['fr'])):
                _, rd, _ = cs_take(0, NWF)
                for r in rd: put(r[1])
            mf, rd, m0 = cs_take(cm, ra)
            its, lo = items_lo(op[2] if len(op) > 2 else [])
            sts = [cread_stream(rd, list(range(cm)), 0, (), m0), Strm(its, lo=lo)]
            if 'setup' in op[3:]:
                assert all(f"o{u}.{fr}" in st['issued'] for u in range(2) for fr in range(8))
                sts.append(Strm(tail_setup()))
            if 'ps4' in op[3:]:
                l4 = [i - m0 for i in range(m0, len(CS['fr'])) if CS['fr'][i][4] == 4]
                assert max(l4, default=0) < cm - 8
                sts.append(Strm(pstore(4), max(l4, default=-1) + 4, min(cm, max(l4, default=-1) + 14)))
                TS['ps4'] = True
            if CS['nm'] == len(CS['fr']):
                assert TS['ps4']
                its = []; lo = []
                for t in range(3):
                    e = pstore(t); its += e; lo += [cm - 16 + 4 * t + 3 + 2] * len(e)
                sts.append(Strm(its, lo=lo, asap=True))
            schedule(mf, sts)
            if CS['nm'] == len(CS['fr']): put(pstore(3))
        elif op[0] == 'bar': barrier(*op[1:])
        elif op[0] == 'pub': put(publish(op[1]))
        elif op[0] == 'ld': put(items(op[1]))
        elif op[0] == 'st': stamp(op[1])
        else: raise ValueError(op)
    stamp('oend')
    LP = [a for a in range(0, 163840 - 20480 + 1, 4096) if all(dead(p, 'u') for p in overl(a, 20480))][0]
    if LP + 20480 > 65536:
        for r in (6, 7, 8): E(f"v_add_u32 v{TA+r}, {LP}, v{TA+r}")
        LP = 0
    E(f"s_cmp_lg_u32 s35, s{sHG}")
    E("s_cbranch_scc1 K1_NOLP")
    for k in range(20):
        E(f"ds_write_b128 v{TA+6}, a[{ACC+4*k}:{ACC+4*k+3}] offset:{LP + k*1024}")
    E.label("K1_NOLP")
    barrier("ps")
    put(publish(2))
    stamp('pub2')
    put(poll_issue(2))
    RB_ = QACC
    for r in range(3):
        for h in range(2):
            d = RB_ + r * 8 + 4 * h
            E(f"ds_read_b128 v[{d}:{d+3}], v{TA+7 if r < 2 else TA+8} offset:{LP + r*8192 + h*1024}")
    SO1 = [sOFF, sA, sXC]; SO2 = [sWC, sE, sMK, 39]
    for i in range(3):
        E(f"""
        s_add_u32 s{sTMP}, s{sHG}, {i+1}
        s_and_b32 s{sTMP}, s{sTMP}, 3
        s_lshl4_add_u32 s{sTMP}, s{sM}, s{sTMP}
        s_mul_i32 s{SO1[i]}, s{sTMP}, {PS}
        """)
    E(f"s_xor_b32 s{sTMP}, s{sM}, 2")
    E(f"s_mul_i32 s{SO2[0]}, s{sTMP}, {16*PS}")
    for i in range(1, 4): E(f"s_add_u32 s{SO2[i]}, s{SO2[0]}, {i*PS}")
    put(poll_check(2))
    stamp('poll3')
    LB_ = RB_ + 24
    src = [[(r * 3 + i, SO1[i]) for i in range(3)] for r in range(3)]
    src[2] += [(9 + i, SO2[i]) for i in range(4)]
    for r in range(3):
        for n_, so in src[r]:
            d = LB_ + n_ * 4
            E(f"buffer_load_dwordx4 v[{d}:{d+3}], v{TA+2+r}, s[{SPR}:{SPR+3}], s{so} offen {opt.get('rpol', 'sc1')}", "pr")
    for r in range(3):
        base = RB_ + r * 8
        for n_, so in src[r]:
            d = LB_ + n_ * 4
            for e in range(4):
                E(f"v_lshlrev_b32 v{T+2*e}, 16, v{d+e}")
                E(f"v_and_b32 v{T+2*e+1}, 0xffff0000, v{d+e}")
            for e in range(4):
                E(f"v_pk_add_f32 v[{base+2*e}:{base+2*e+1}], v[{base+2*e}:{base+2*e+1}], v[{T+2*e}:{T+2*e+1}]")
        for i in range(4):
            E(f"v_cvt_pk_bf16_f32 v{base+i}, v{base+2*i}, v{base+2*i+1}")
        E(f"buffer_store_dwordx4 v[{base}:{base+3}], v{TA+5}, s[{SD}:{SD+3}], {'0' if r < 2 else f's{sR1}'} offen offset:{r*128 if r < 2 else 0} {opt.get('dpol', '')}")
    E.label("K1_FIN")
    if stamps:
        E.wait_vm(0, force=True)
        stamp('fin')
        E(f"""
        s_cmp_lg_u32 s35, 0
        s_cbranch_scc1 K1_END
        s_lshl_b32 s{sTMP}, s2, 7
        s_add_u32 s{sTMP}, s{sTMP}, 65536
        s_add_u32 s{SO}, s80, s{sTMP}
        s_addc_u32 s{SO+1}, s81, 0
        s_mov_b32 s{SO+2}, 128
        v_mov_b32 v1, 0
        """)
        for i in range(nst[0]):
            E(f"v_mov_b32 v2, s{STR[i]}")
            E(f"buffer_store_dword v2, v1, s[{SO}:{SO+3}], 0 offen offset:{4*i}")
            E.wait_vm(0)
    E.label("K1_END")
    E.label("K1_LAST")
    E("s_endpgm")
    for u in polls:
        E.raw(f"""K1_POLL_{u}:
    s_mov_b32 s{sRET}, 0
K1_PLOOP_{u}:
    {poll_ld(u)}
    s_add_u32 s{sRET}, s{sRET}, 1
    s_waitcnt vmcnt(0)
    s_cmp_gt_u32 s{sRET}, 0x30000
    s_cbranch_scc1 K1_PBACK_{u}
    {poll_test(u).strip()}
    s_cbranch_scc1 K1_PLOOP_{u}
    s_branch K1_PBACK_{u}""")
    for n, lab in stubs:
        E.label(f"K1_STUB_{n}")
        E.raw(f"    s_call_b64 s[{sRET}:{sRET+1}], {lab}")
        E.raw(f"    s_branch K1_BACK_{n}")
    for key, lab in rare.items():
        par, u, fix = key
        s = S[par]; sn = S[1 - par]; p = P[par]; L = L1 if u == 0 else L2
        Rr = Emit()
        Rr.label(lab)
        Rr.nop(16)
        for f in max_tree(s, LA, LB): Rr(f[0])
        Rr(f"v_max_f32 v{LA}, 0, v{LA}")
        Rr(f"v_sub_f32 v{LB}, 0, v{LA}")
        Rr(f"v_exp_f32 v{LB}, v{LB}")
        for i in range(16):
            Rr(f"v_sub_f32 v{s+i}, v{s+i}, v{LA}")
            Rr(f"v_sub_f32 v{NEG+i}, v{NEG+i}, v{LA}")
            if fix: Rr(f"v_sub_f32 v{sn+i}, v{sn+i}, v{LA}")
        Rr(f"v_mul_f32 v{L}, v{L}, v{LB}")
        for i in range(64):
            if u == 0:
                Rr(f"v_accvgpr_read_b32 v{T}, a{O1+i}")
                Rr(f"v_mul_f32 v{T}, v{T}, v{LB}")
                Rr(f"v_accvgpr_write_b32 a{O1+i}, v{T}")
            else:
                Rr(f"v_mul_f32 v{O2+i}, v{O2+i}, v{LB}")
        Rr(f"v_mov_b32 v{LA}, 0")
        for e in range(8):
            Rr(f"v_exp_f32 v{T}, v{s+2*e}")
            Rr(f"v_exp_f32 v{T+1}, v{s+2*e+1}")
            Rr(f"v_add_f32 v{LA}, v{LA}, v{T}")
            Rr(f"v_add_f32 v{LA}, v{LA}, v{T+1}")
            Rr(f"v_cvt_pk_bf16_f32 v{p+e}, v{T}, v{T+1}")
        Rr.nop(4)
        Rr(f"s_setpc_b64 s[{sRET}:{sRET+1}]")
        E.lines += Rr.lines
    return E, dict(nops=E.nops, waits=E.nwait, count=E.count, vgpr=va.n, nst=nst[0], stn=stn)

if __name__ == '__main__':
    pass
```

```python
from j5 import *
SB = dict(stamps=0.5, clk='both', stl=['start', 'c2', 'c6', 'pre'] + [f's{j}' for j in (1,5,9,13,15,17,19,23,27,31)] + ['oend', 'fin'])
if __name__ == '__main__':
    o = j1.cfg(t0=14, t1=19)
    build('y_0.s', dict(o, cpf=1, epk=True, **SB))
    build('y_1.s', dict(o, cpf=1, **SB))
    build('y_2.s', dict(o, cpf=1, rlag=1, **SB))
    build('y_3.s', dict(o, cpf=1, rlag=2, **SB))
    build('y_4.s', dict(o, cpf=1, dscost=1.5, dmacost=3, **SB))
    build('y_5.s', dict(o, cpf=1, rlag=1, cap=5, dmacost=3, **SB))
```

```python
import re

REG_RE = re.compile(r'^(-|abs\()?\s*([vas])(\d+)\)?$')
RNG_RE = re.compile(r'^(-)?([vas])\[(\d+):(\d+)\]$')

def parse_reg(tok):
    tok = tok.strip()
    m = RNG_RE.match(tok)
    if m:
        return [(m.group(2), i) for i in range(int(m.group(3)), int(m.group(4)) + 1)]
    m = REG_RE.match(tok)
    if m:
        return [(m.group(2), int(m.group(3)))]
    if tok == 'vcc':
        return [('s', 106), ('s', 107)]
    if tok == 'vcc_lo': return [('s', 106)]
    if tok == 'vcc_hi': return [('s', 107)]
    if tok == 'exec':
        return [('s', 126), ('s', 127)]
    if tok == 'm0':
        return [('s', 124)]
    return []

TRANS = ('v_exp_f32', 'v_log_f32', 'v_rcp_f32', 'v_rsq_f32', 'v_sqrt_f32', 'v_sin_f32', 'v_cos_f32')

def R(kind, lo, n=1):
    return f"{kind}{lo}" if n == 1 else f"{kind}[{lo}:{lo+n-1}]"

class Ins:
    __slots__ = ('text', 'op', 'kind', 'dst', 'src', 'srcC', 'srcAB', 'passes', 'pos', 'lds_dma', 'wide_store')

def decode(text):
    t = text.split(';')[0].strip()
    parts = t.split(None, 1)
    op = parts[0]
    rest = parts[1] if len(parts) > 1 else ''
    ops = [x.strip() for x in rest.split(',')] if rest else []
    mods = ''
    if ops:
        lp = ops[-1].split()
        if len(lp) > 1:
            ops[-1] = lp[0]; mods = ' '.join(lp[1:])
    I = Ins(); I.text = text; I.op = op; I.dst = []; I.src = []; I.srcC = []; I.srcAB = []
    I.passes = 0; I.lds_dma = False; I.wide_store = False
    pr = [parse_reg(o) for o in ops]
    flat = lambda l: [r for x in l for r in x]
    if op.startswith('v_mfma'):
        I.kind = 'mfma'; I.dst = pr[0]; I.srcAB = pr[1] + pr[2]; I.srcC = pr[3]; I.src = I.srcAB + I.srcC
        I.passes = 8 if '32x32x16' in op else 4 if '16x16x32' in op else None
        assert I.passes
    elif op.startswith('v_'):
        I.kind = 'valu'
        if op.startswith('v_permlane'):
            I.dst = pr[0] + pr[1]; I.src = pr[0] + pr[1]
        elif op.startswith(('v_add_co', 'v_sub_co', 'v_addc_co', 'v_subb_co')):
            I.dst = pr[0] + pr[1]; I.src = flat(pr[2:])
        elif op.startswith(('v_fmac', 'v_pk_fmac', 'v_dot2c')):
            I.dst = pr[0]; I.src = flat(pr)
        elif op == 'v_nop':
            pass
        else:
            I.dst = pr[0]; I.src = flat(pr[1:])
            if op.startswith('v_cmpx'): I.dst = I.dst + parse_reg('exec')
    elif op.startswith('ds_'):
        I.kind = 'ds'
        if op.startswith(('ds_read', 'ds_bpermute', 'ds_permute', 'ds_swizzle')):
            I.dst = pr[0]; I.src = flat(pr[1:])
        else:
            I.src = flat(pr)
    elif op.startswith(('buffer_', 'global_')):
        I.kind = 'vmem'
        if op.startswith(('buffer_inv', 'buffer_wbl2')):
            pass
        elif ' lds' in (' ' + mods) and 'load' in op:
            I.lds_dma = True; I.src = flat(pr) + parse_reg('m0')
        elif 'load' in op:
            I.dst = pr[0]; I.src = flat(pr[1:])
        elif 'atomic' in op and 'sc0' in mods:
            I.dst = pr[0]; I.src = flat(pr)
        else:
            I.src = flat(pr)
            if op.endswith(('x4', 'x3')):
                I.wide_store = True
                I.srcAB = pr[0] if op.startswith('buffer_') else pr[1]
    elif op.startswith('s_'):
        I.kind = 'salu'
        if op.startswith(('s_load', 's_memtime', 's_memrealtime', 's_buffer_load')):
            I.kind = 'smem'; I.dst = pr[0]; I.src = flat(pr[1:])
        elif op.startswith(('s_cmp', 's_waitcnt', 's_barrier', 's_nop', 's_branch', 's_cbranch', 's_endpgm', 's_setprio', 's_setpc', 's_sleep', 's_bitcmp')):
            I.src = flat(pr)
        else:
            I.dst = pr[0] if pr else []; I.src = flat(pr[1:])
    else:
        raise ValueError(text)
    return I

class Emit:
    def __init__(self):
        self.lines = []
        self.hist = []
        self.pos = 0
        self.lgkm = []
        self.vm = []
        self.nops = 0
        self.nwait = 0
        self.count = 0
    def raw(self, s):
        self.lines.append(s)
    def c(self, s):
        self.lines.append("    ; " + s)
    def label(self, n):
        self.lines.append(n + ":")
    def _put(self, I, states=1):
        self.lines.append("    " + I.text)
        I.pos = self.pos
        self.pos += states
        self.hist.append(I)
        if len(self.hist) > 40: self.hist.pop(0)
        self.count += 1
    def nop(self, n):
        while n > 0:
            k = min(n, 16)
            I = decode(f"s_nop {k-1}")
            self._put(I, k); n -= k; self.nops += 1
    def wait_lgkm(self, n):
        if len(self.lgkm) > n:
            I = decode(f"s_waitcnt lgkmcnt({min(n,14)})")
            self._put(I); self.nwait += 1
            n = min(n, 14)
            self.lgkm = self.lgkm[len(self.lgkm) - n:] if n else []
    def wait_vm(self, n, force=False):
        if len(self.vm) > n or force:
            assert n <= 62
            I = decode(f"s_waitcnt vmcnt({n})")
            self._put(I); self.nwait += 1
            self.vm = self.vm[len(self.vm) - n:] if n else []
    def wait_tag(self, *tags):
        idx = -1
        for i, (t, d) in enumerate(self.vm):
            if t in tags: idx = i
        if idx >= 0:
            self.wait_vm(min(len(self.vm) - idx - 1, 62))
    def fence(self, states=16):
        self.nop(states)
    def __call__(self, text, tag=None):
        for l in text.strip().split('\n'):
            l = l.strip()
            if not l: continue
            if l.startswith(';'):
                self.lines.append("    " + l); continue
            if l.endswith(':'):
                self.lines.append(l); continue
            self.ins(l, tag)
    def ins(self, text, tag=None):
        I = decode(text)
        if tag and I.kind == 'vmem': I.text = text + f" ; {tag}"
        touch = set(I.src) | set(I.dst)
        idx = -1
        for i, d in enumerate(self.lgkm):
            if touch & d: idx = i
        if idx >= 0:
            self.wait_lgkm(len(self.lgkm) - idx - 1)
        idx = -1
        for i, (t, d) in enumerate(self.vm):
            if touch & d: idx = i
        if idx >= 0:
            self.wait_vm(len(self.vm) - idx - 1)
        need = 0
        src = set(I.src); dst = set(I.dst)
        for P in reversed(self.hist):
            dist = self.pos - P.pos - 1
            if dist >= 12: break
            if dist >= 5 and P.kind != 'mfma': continue
            req = 0
            pd = set(P.dst)
            if P.kind == 'mfma':
                big = 12 if P.passes == 8 else 8
                if I.kind == 'mfma':
                    if pd & set(I.srcAB): req = max(req, big)
                    if pd & set(I.srcC):
                        if not (I.srcC == P.dst and I.passes == P.passes): req = max(req, big - 2)
                    if (pd & dst) and I.srcC != P.dst: req = max(req, big - 2)
                elif I.kind in ('valu', 'ds', 'vmem'):
                    if pd & (src | dst): req = max(req, big)
                    if I.kind == 'valu' and (set(P.srcC) & dst): req = max(req, 7 if P.passes == 8 else 3)
                    if I.kind != 'valu' and (set(P.srcC) & dst): req = max(req, 7 if P.passes == 8 else 3)
            elif P.kind == 'valu':
                pv = {r for r in pd if r[0] != 's'}
                ps = {r for r in pd if r[0] == 's'}
                if I.kind == 'mfma':
                    if pv & src: req = max(req, 2)
                    if ('s', 126) in ps: req = max(req, 4)
                elif I.kind == 'valu':
                    if P.op.startswith(TRANS) and (pv & src) and not I.op.startswith(TRANS): req = max(req, 1)
                    if P.op.startswith(TRANS) and (pv & src): req = max(req, 1)
                    if I.op.startswith('v_permlane') and (pv & src): req = max(req, 2)
                    if I.op.startswith(('v_readlane', 'v_readfirstlane')) and (pv & src): req = max(req, 1)
                    if 'dpp' in I.text and (pv & src): req = max(req, 2)
                    if ps & src: req = max(req, 4 if I.op.startswith(('v_readlane', 'v_writelane')) else 2)
                    if I.op.startswith('v_cndmask') and (('s', 106) in ps): req = max(req, 2)
                    if ('s', 126) in ps and I.op.startswith(('v_readlane', 'v_readfirstlane', 'v_writelane', 'v_permlane')): req = max(req, 4)
                elif I.kind == 'vmem':
                    if ps & src: req = max(req, 5)
                elif I.kind in ('salu', 'smem'):
                    if ps & src: req = max(req, 1)
            elif P.kind == 'salu':
                if ('s', 124) in pd and I.lds_dma: req = max(req, 1)
            elif P.kind == 'vmem' and P.wide_store:
                if set(P.srcAB) & dst: req = max(req, 2)
            if req - dist > need: need = req - dist
        if need > 0:
            self.nop(need)
        st = 1
        if I.op == 's_nop': st = int(I.text.split()[1]) + 1
        self._put(I, st)
        if I.kind == 'ds':
            self.lgkm.append(set(I.dst))
        elif I.kind == 'vmem' and not I.op.startswith(('buffer_inv', 'buffer_wbl2')):
            self.vm.append((tag, set(I.dst)))
            assert len(self.vm) <= 62, "too many vmem outstanding for tracking"
        elif I.op == 's_waitcnt':
            m = re.search(r'lgkmcnt\((\d+)\)', I.text)
            if m:
                n = int(m.group(1)); self.lgkm = self.lgkm[len(self.lgkm) - n:] if n else []
            m = re.search(r'vmcnt\((\d+)\)', I.text)
            if m:
                n = int(m.group(1)); self.vm = self.vm[max(0, len(self.vm) - n):] if n else []
    def text(self):
        return "\n".join(self.lines) + "\n"

def interleave(E, mfmas, fillers, lead=0):
    n = len(mfmas)
    total = sum(f[1] for f in fillers if f[0] != '@after')
    per = total / max(n, 1)
    fi = 0; acc = 0.0
    def put(f):
        if callable(f[0]): f[0]()
        else: E(f[0], f[2] if len(f) > 2 else None)
    for k, m in enumerate(mfmas):
        if callable(m): m()
        else: E(m)
        budget = per * (k + 1)
        while fi < len(fillers):
            f = fillers[fi]
            if f[0] == '@after':
                if f[1] <= k: fi += 1; continue
                else: break
            if acc + f[1] * 0.5 > budget and k < n - 1: break
            put(f); acc += f[1]; fi += 1
    while fi < len(fillers):
        f = fillers[fi]
        if f[0] != '@after': put(f)
        fi += 1
```

```python
import sys, copy
from asmlib import *
import h3
from genh import kv_lead, REM, kvA, HDR
from genj import front_std, back_kv
def build(out, o={}):
    E, i = h3.gen(copy.deepcopy(o))
    print(out, i)
    open(out, 'w').write(wrap_single(E.text(), 256, 256, 163840, 512, accum=256, header=HDR))
```

```python
from emit import *
import math, struct

def f32bits(x):
    return struct.unpack('<I', struct.pack('<f', x))[0]

O_BASE = 1 << 20
SL = 16384

class Alloc:
    def __init__(self, start): self.n = start
    def get(self, k=1, al=1):
        self.n = (self.n + al - 1) // al * al
        r = self.n; self.n += k; return r

def gen(opt):
    stamps = opt.get('stamps', False)
    kvpol = opt.get('kvpol', 'nt')
    qpol = opt.get('qpol', '')
    thresh = opt.get('thresh', 4096.0)
    DC = opt.get('dmacost', 5)
    E = Emit()
    va = Alloc(1)
    KA = va.get(8); VA = va.get(4); WA = va.get(4); KD = va.get(4); VD = va.get(1); WD = va.get(4); OD = 0
    RL = va.get(2, 2)
    L1 = va.get(1); L2 = va.get(1); LA = va.get(1); LB = va.get(1)
    XA = va.get(4, 4); XD = va.get(4, 4)
    S = [va.get(16, 4), va.get(16, 4)]
    NEG = va.get(16, 4)
    P = [va.get(8, 4), va.get(8, 4)]
    T = va.get(8, 4)
    WFV = va.get(8, 4)
    EP = va.get(8, 4)
    QACC = va.get(64, 4)
    Q = va.get(32, 4)
    KF = va.get(32, 4)
    assert va.n <= 256, va.n
    X = 0; O1 = 144; VF = 208; WFA = 240
    WF = [('a', WFA + 4 * i) for i in range(4)] + [('v', WFV), ('v', WFV + 4), ('v', EP), ('v', EP + 4)]
    NWF = len(WF)
    ACC = 0
    assert Q == QACC + 64
    O2 = QACC + 32
    OF = {0: ('a', 80), 1: ('a', 112), 2: ('a', 144), 3: ('a', 176), 4: ('v', QACC), 5: ('a', 80), 6: ('v', KF), 7: ('a', VF)}
    OF.update(opt.get('of2', {}))
    UD = WD; PV_ = XD; PD = XD + 1; ED = XD + 2; EA = XD + 3
    SX, SW, SK, SV, SO = 4, 8, 12, 16, 20
    SWO, SOR, SPL = SX, SW, 68
    SG, SD = SV, SK
    sW4K, sXC, sWC, sOFF, sTH, sRET, sSC, sTMP = 24, 25, 26, 27, 28, 30, 32, 34
    sR1, sA, sB, sN, sM, sHG, sE, sMK = 92, 93, 94, 95, 96, 97, 98, 99
    nst = [0]
    STR = list(range(40, 64)) + list(range(72, 80))
    stn = []
    def stamp(name='', lvl=1):
        E.raw(f"    ;@ {name}")
        if stamps and (lvl <= stamps or name in opt.get('stl', ())):
            for ck in (['s_memtime', 's_memrealtime'] if opt.get('clk') == 'both' else [opt.get('clk', 's_memrealtime')]):
                E(f"{ck} s[100:101]")
                E.raw("    s_waitcnt lgkmcnt(0)"); E.lgkm = []
                E(f"s_mov_b32 s{STR[nst[0]]}, s100")
                nst[0] += 1; stn.append(name)
    c = math.log2(math.e) / math.sqrt(128.0)

    PREF = dict(k=[0, 1, 2, 3], v=[4, 5, 6], w=[7, 8, 9, 6], x=[5, 6], u=[7, 8, 9], e=[9, 8, 7])
    PREF.update(opt.get('pref', {}))
    st = dict(epoch=0, live=[], lastread={}, nread={}, visible=set(), issued=set(), addr={})
    NREADS = {'x': 4, 'w': 32, 'k': 16, 'v': 32, 'u': 32, 'e': 32}
    cur = dict(plan=None, var='')
    def size(item): return SL
    def overl(a, sz): return [p for p in st['live'] if st['addr'][p] < a + sz and a < st['addr'][p] + size(p)]
    def dead(p, item):
        if st['nread'].get(p, 0) != NREADS[p[0]]: return False
        if p[0] == 'x': return True
        return st['epoch'] > st['lastread'][p]
    def on_issue(item):
        ov = dict(opt.get('slotmap', {})); ov.update((cur['plan'] or {}).get('slotmap', {}))
        cands = [ov[item]] if item in ov else PREF[item[0]]
        sz = size(item)
        fr = [c_ for c_ in cands if all(dead(p, item) for p in overl(c_ * sz, sz))]
        assert fr, (item, cands, [(p, st['addr'][p]) for p in st['live']])
        a = fr[0] * sz
        for p in overl(a, sz):
            if p[0] == 'x':
                E.wait_lgkm(len(E.lgkm) - 1 - max([i for i, d in enumerate(E.lgkm) if ('tag', p) in d], default=-1))
            st['live'].remove(p)
        st['live'].append(item); st['issued'].add(item); st['addr'][item] = a
        return a
    def on_read(item):
        assert item in st['live'], item
        if item[0] == 'x':
            E.wait_tag(item)
        else:
            assert item in st['visible'], item
        st['nread'][item] = st['nread'].get(item, 0) + 1
        st['lastread'][item] = st['epoch']
        return st['addr'][item]
    def lds_read(fn, item):
        def f():
            a = on_read(item)
            t = fn(a)
            off = int(t.split('offset:')[1]); assert 0 <= off < 65536, t
            E(t)
            E.lgkm[-1].add(('tag', item))
        return (f, opt.get('dscost', 1))
    BARVM = [[], set()]
    TS = dict(ok=False, rel=None, done=set(), sum=False, red=set())
    def barrier(*tags):
        E.wait_lgkm(0)
        stamp(f"B{st['epoch']}a", 3)
        E.wait_tag(*tags)
        stamp(f"B{st['epoch']}b", 3)
        E("s_barrier")
        stamp(f"B{st['epoch']}c", 3)
        st['epoch'] += 1
        BARVM[0] = list(E.vm); BARVM[1] = set(st['issued'])
        pend = {t for t, d in E.vm}
        for it in st['issued']:
            if it not in pend: st['visible'].add(it)
    def put(fl):
        for f in fl:
            if callable(f[0]): f[0]()
            else: E(f[0], f[2] if len(f) > 2 else None)

    E(f"""
    s_cmp_ge_u32 s2, 256
    s_cbranch_scc1 K1_END
    s_load_dwordx8 s[64:71], s[0:1], 0
    s_load_dwordx8 s[72:79], s[0:1], 40
    s_load_dwordx2 s[80:81], s[0:1], 96
    s_load_dwordx2 s[84:85], s[0:1], 32
    s_load_dwordx2 s[86:87], s[0:1], 72
    s_load_dwordx4 s[88:91], s[0:1], 80
    """)
    stamp('start')
    if opt.get('cpf'):
        E.raw("    s_getpc_b64 s[100:101]")
        E.label("K1_PC")
        E(f"""
        s_lshr_b32 s39, s2, 3
        s_lshl_b32 s39, s39, 11
        v_and_b32 v{EP}, 15, v0
        v_lshlrev_b32 v{EP}, 7, v{EP}
        v_add_u32 v{EP}, s39, v{EP}
        v_min_u32 v{EP}, K1_LAST-K1_PC, v{EP}
        v_mov_b32 v{EP+1}, s101
        v_add_co_u32 v{EP}, vcc, s100, v{EP}
        v_addc_co_u32 v{EP+1}, vcc, 0, v{EP+1}, vcc
        global_load_dword v{T+7}, v[{EP}:{EP+1}], off
        """)
    E(f"""
    v_lshrrev_b32 v{T}, 6, v0
    v_and_b32 v0, 63, v0
    v_readfirstlane_b32 s35, v{T}
    s_and_b32 s36, s2, 7
    s_lshr_b32 s37, s2, 3
    s_lshr_b32 s38, s36, 2
    s_and_b32 s36, s36, 3
    s_lshl_b32 s36, s36, 2
    s_and_b32 s39, s37, 3
    s_add_u32 s36, s36, s39
    s_lshr_b32 s37, s37, 2
    s_lshl_b32 s{sW4K}, s35, 12
    s_lshl_b32 s39, s39, 1
    s_add_u32 s39, s39, s37
    s_cmp_ge_u32 s39, 9
    s_cselect_b32 s{sTMP}, 9, 0
    s_sub_u32 s39, s39, s{sTMP}
    s_mul_i32 s39, s39, {opt.get('rot', 1)}
    s_lshl_b32 s{sXC}, s39, 7
    s_lshl_b32 s{sWC}, s39, 19
    """)
    if opt.get('kvrot'):
        E({1: "s_mov_b32 s29, s37", 2: "s_mov_b32 s29, s36", 3: "s_xor_b32 s29, s36, s37"}[opt['kvrot']])
        E("s_and_b32 s29, s29, 7")
        E("s_lshl_b32 s29, s29, 14")
    t0, t1, t2, t3, t4, t5 = T, T + 1, T + 2, T + 3, T + 4, T + 5
    E(f"""
    v_lshrrev_b32 v{t0}, 3, v0
    s_lshl_b32 s{sTMP}, s35, 5
    v_add_u32 v{t0}, s{sTMP}, v{t0}
    v_mul_u32_u24 v{t0}, 1152, v{t0}
    v_and_b32 v{t1}, 7, v0
    v_lshrrev_b32 v{t2}, 4, v0
    v_xor_b32 v{t3}, v{t1}, v{t2}
    v_xor_b32 v{t4}, 4, v{t3}
    v_lshlrev_b32 v{t3}, 4, v{t3}
    v_lshlrev_b32 v{t4}, 4, v{t4}
    v_add_u32 v{XD}, v{t0}, v{t3}
    v_add_u32 v{XD+1}, v{t0}, v{t4}
    v_add_u32 v{XD+2}, {16*1152-2048}, v{XD}
    v_add_u32 v{XD+3}, {24*1152-3072}, v{XD+1}
    v_add_u32 v{XD+1}, {8*1152-1024}, v{XD+1}
    v_and_b32 v{t1}, 15, v0
    v_lshlrev_b32 v{t3}, 2, v{t2}
    v_xor_b32 v{t3}, v{t1}, v{t3}
    v_lshlrev_b32 v{t3}, 4, v{t3}
    s_lshl_b32 s{sTMP}, s35, 4
    v_add_u32 v{t0}, s{sTMP}, v{t2}
    v_lshlrev_b32 v{t4}, 13, v{t0}
    v_add_u32 v{WD}, v{t4}, v{t3}
    v_add_u32 v{WD+1}, {4*8192-1024}, v{WD}
    v_add_u32 v{WD+2}, {8*8192-2048}, v{WD}
    v_add_u32 v{WD+3}, {12*8192-3072}, v{WD}
    v_lshlrev_b32 v{t4}, 8, v{t0}
    v_add_u32 v{VD}, v{t4}, v{t3}
    """)
    for n in range(4):
        E(f"""
        v_add_u32 v{t3}, {4*n}, v{t2}
        v_xor_b32 v{t3}, v{t1}, v{t3}
        v_lshlrev_b32 v{t3}, 4, v{t3}
        v_add_u32 v{KD+n}, v{t4}, v{t3}
        """)
    E.raw("    s_waitcnt lgkmcnt(0)")
    E(f"""
    s_cmp_eq_u32 s38, 0
    s_cselect_b32 s{SX}, s64, s72
    s_cselect_b32 s{SX+1}, s65, s73
    s_cselect_b32 s{SK}, s66, s74
    s_cselect_b32 s{SK+1}, s67, s75
    s_cselect_b32 s{SV}, s68, s76
    s_cselect_b32 s{SV+1}, s69, s77
    s_cselect_b32 s{SW}, s70, s78
    s_cselect_b32 s{SW+1}, s71, s79
    s_mul_i32 s{sTMP}, s37, 147456
    s_add_u32 s{SX}, s{SX}, s{sTMP}
    s_addc_u32 s{SX+1}, s{SX+1}, 0
    s_mov_b32 s{SX+2}, 147456
    s_mov_b32 s{SX+3}, 0x20000
    s_lshl_b32 s{sTMP}, s36, 8
    s_add_u32 s{SW}, s{SW}, s{sTMP}
    s_addc_u32 s{SW+1}, s{SW+1}, 0
    s_sub_u32 s{SW+2}, {576*8192}, s{sTMP}
    s_mov_b32 s{SW+3}, 0x20000
    s_lshl_b32 s{sTMP}, s37, 5
    s_add_u32 s{sTMP}, s{sTMP}, s36
    s_lshl_b32 s82, s{sTMP}, 17
    s_add_u32 s{SK}, s{SK}, s82
    s_addc_u32 s{SK+1}, s{SK+1}, 0
    s_mov_b32 s{SK+2}, {17*131072}
    s_mov_b32 s{SK+3}, 0x20000
    s_add_u32 s{SV}, s{SV}, s82
    s_addc_u32 s{SV+1}, s{SV+1}, 0
    s_mov_b32 s{SV+2}, {17*131072}
    s_mov_b32 s{SV+3}, 0x20000
    """)
    def adv(s, step, lim):
        E(f"""
        s_add_u32 s{s}, s{s}, {step}
        s_cmp_eq_u32 s{s}, {lim}
        s_cselect_b32 s{s}, 0, s{s}
        """)
    LOCK = {}
    def dma(item):
        f = dma0(item)
        lk = 'a' if item[0] == 'a' else 'm' if (item[0] in 'xwkvuet' and item != 'ts') else None
        if lk is None: return f
        def acq(): assert lk not in LOCK, (item, LOCK); LOCK[lk] = item
        def rel(): del LOCK[lk]
        return [(acq, 0)] + f + [(rel, 0)]
    def dma0(item):
        if item[0] == 'o': return st_o(item)
        if item[0] == 'a': return ld_a(item)
        if item == 'ts': return tail_setup()
        k, i = item[0], int(item[1:])
        if k == 'g': return ld_g(i)
        if k == 'h': return red_g(i)
        if k == 'z': return sum0()
        if k == 'e': return ld_e(i)
        if k == 't': return touch_u(i)
        if k == 'r': return rd_x(i)
        if k == 'n': return snap(i)
        if k == 'u': return ld_u(i)
        if k == 'p': return poll_issue(i)
        if k == 'c': return poll_check(i)
        def first():
            a = on_issue(item)
            E(f"s_add_u32 m0, s{sW4K}, {a}")
        f = [(first, 1)]
        if k == 'x':
            for n in range(4):
                f.append((f"buffer_load_dwordx4 v{XD+n}, s[{SX}:{SX+3}], s{sXC} offen offset:{1024*n} {qpol} lds", DC, item))
            f.append((lambda: adv(sXC, 128, 1152), 3))
        elif k == 'w':
            f.append((f"s_add_u32 s{sOFF}, s{sWC}, {(i//9)*4096}", 1))
            for n in range(4):
                f.append((f"buffer_load_dwordx4 v{WD+n}, s[{SW}:{SW+3}], s{sOFF} offen offset:{1024*n} {qpol} lds", DC, item))
            f.append((lambda: adv(sWC, 1 << 19, 9 << 19), 3))
        else:
            if opt.get('kvrot'): f.append((f"s_xor_b32 s{sOFF}, s29, {(i>>3)*16*131072 + (i&7)*16384}", 1))
            else: f.append((f"s_mov_b32 s{sOFF}, {(i>>3)*16*131072 + (i&7)*16384}", 1))
            for n in range(4):
                if k == 'k': f.append((f"buffer_load_dwordx4 v{KD+n}, s[{SK}:{SK+3}], s{sOFF} offen offset:{1024*n} {kvpol} lds", DC, item))
                else: f.append((f"buffer_load_dwordx4 v{VD}, s[{SV}:{SV+3}], s{sOFF} offen offset:{1024*n} {kvpol} lds", DC, item))
        return f
    XB, VB, WB = 3 * SL, 3 * SL, 6 * SL
    F_BASE = 0x1c0000
    sSN = [64, 64, 65, 64]
    def fl_off(u):
        if u != 2:
            E(f"s_lshl_b32 s{sB}, s{sHG}, 8")
        else:
            E(f"s_and_b32 s{sB}, s{sM}, 1")
            E(f"s_lshl_b32 s{sB}, s{sB}, 8")
            E(f"s_add_u32 s{sB}, s{sB}, 1024")
    def snap(k):
        def g0():
            assert 'x8' in st['issued']
            E(f"v_and_b32 v{PV_}, 0xf0, v{OD}")
            E(f"v_lshrrev_b32 v{PV_}, 2, v{PV_}")
            for u in (0, 2):
                fl_off(u)
                E(f"buffer_load_dword v{RL+u//2}, v{PV_}, s[{SPL}:{SPL+3}], s{sB} offen sc1", "sn")
            st['issued'].add('n0')
        def g1():
            assert 'n0' in st['issued'] and cur['j'] < 16
            for u in (0, 2):
                E(f"v_and_b32 v{RL+u//2}, 1, v{RL+u//2}")
                E(f"v_cmp_eq_u32_e64 s[100:101], 0, v{RL+u//2}")
                E(f"s_mov_b32 s{sSN[u]}, s100")
            st['issued'].add('n1')
        return [(g0, 2 * DC + 4)] if k == 0 else [(g1, 7)]
    def setup_rest():
        E(f"""
        s_mov_b32 s{sTH}, {hex(f32bits(thresh))}
        s_mov_b32 s{sSC}, {hex(f32bits(c))}
        s_mov_b32 s{sSC+1}, {hex(f32bits(c))}
        s_lshl_b32 s{sTMP}, s38, 3
        s_add_u32 s{sTMP}, s{sTMP}, s37
        s_add_u32 s{sTMP}, s{sTMP}, 1
        s_lshl_b32 s{sTMP}, s{sTMP}, 21
        s_add_u32 s82, s80, s{sTMP}
        s_addc_u32 s83, s81, 0
        s_lshl_b32 s{sTMP}, s36, 15
        s_add_u32 s{SO}, s82, s{sTMP}
        s_addc_u32 s{SO+1}, s83, 0
        s_mov_b32 s{SO+2}, {17*32768}
        s_mov_b32 s{SO+3}, 0x20000
        v_and_b32 v{t0}, 31, v0
        v_lshrrev_b32 v{t3}, 5, v0
        v_lshlrev_b32 v{t4}, 8, v{t0}
        v_xor_b32 v{t5}, v{t3}, v{t1}
        """)
        for s in range(8):
            E(f"""
            v_xor_b32 v{KA+s}, {2*s}, v{t5}
            v_lshlrev_b32 v{KA+s}, 4, v{KA+s}
            v_add_u32 v{KA+s}, v{KA+s}, v{t4}
            """)
        E(f"""
        v_lshrrev_b32 v{t5}, 1, v{t1}
        v_xor_b32 v{t5}, v{t3}, v{t5}
        v_lshlrev_b32 v{t4}, 7, v{t0}
        s_add_u32 s{sTMP}, s{sW4K}, {XB}
        v_add_u32 v{t4}, s{sTMP}, v{t4}
        """)
        for s in range(4):
            E(f"""
            v_xor_b32 v{XA+s}, {2*s}, v{t5}
            v_lshlrev_b32 v{XA+s}, 4, v{XA+s}
            v_add_u32 v{XA+s}, v{XA+s}, v{t4}
            """)
        E(f"""
        v_lshrrev_b32 v{t0}, 2, v{t1}
        v_and_b32 v{t4}, 1, v0
        v_lshlrev_b32 v{t4}, 4, v{t4}
        v_and_b32 v{t5}, 2, v0
        v_lshlrev_b32 v{t5}, 2, v{t5}
        v_add_u32 v{t4}, v{t4}, v{t5}
        v_and_b32 v{t5}, 16, v0
        v_lshlrev_b32 v{t5}, 1, v{t5}
        v_add_u32 v{t4}, v{t4}, v{t5}
        v_lshlrev_b32 v{t5}, 8, v{t0}
        v_add_u32 v{t4}, v{t4}, v{t5}
        v_lshlrev_b32 v{t3}, 10, v{t3}
        """)
        for t in range(4):
            E(f"""
            v_xor_b32 v{t5}, {t}, v{t0}
            v_lshlrev_b32 v{t5}, 6, v{t5}
            v_add_u32 v{t5}, v{t5}, v{t4}
            v_add_u32 v{t5}, v{t5}, v{t3}
            v_add_u32 v{VA+t}, {VB}, v{t5}
            v_add_u32 v{t5}, v{t5}, v{t3}
            v_add_u32 v{WA+t}, {WB}, v{t5}
            """)
        E(f"""
        v_lshlrev_b32 v{OD}, 4, v0
        s_lshl_b32 s{sTMP}, s35, 13
        v_add_u32 v{OD}, s{sTMP}, v{OD}
        s_and_b32 s{sM}, s36, 3
        s_lshr_b32 s{sHG}, s36, 2
        s_add_u32 s{SPL}, s82, {F_BASE}
        s_addc_u32 s{SPL+1}, s83, 0
        s_mov_b32 s{SPL+2}, 2048
        s_mov_b32 s{SPL+3}, 0x20000
        """)

    def rd_x(q):
        return [lds_read(lambda sl, s=s: f"ds_read_b128 a[{X+16*q+4*s}:{X+16*q+4*s+3}], v{XA+s} offset:{sl - XB}", f"x{q}") for s in range(4)]
    def wst(q, f):
        if q in opt.get('tmajor', ()): return f % 4, f // 4
        return f // 4, f % 4
    def rd_w(q, f, ri):
        s, t = wst(q, f)
        k, r = WF[ri % NWF]
        return [lds_read(lambda sl, jj=jj: f"ds_read_b64_tr_b16 {k}[{r+2*jj}:{r+2*jj+1}], v{WA+t} offset:{sl - WB + (16*s+4*jj)*256}", f"w{q}") for jj in range(2)]
    def mf_q(q, f, ri):
        s, t = wst(q, f)
        k, r = WF[ri % NWF]
        cq = q % 9
        acc = R('v', QACC + 16 * t, 16)
        src = '0' if (cq == 0 and s == 0) else acc
        return f"v_mfma_f32_32x32x16_bf16 {acc}, {k}[{r}:{r+3}], a[{X+16*cq+4*s}:{X+16*cq+4*s+3}], {src}"
    def rd_k(n, s):
        G, hf = n >> 1, n & 1
        return [lds_read(lambda sl: f"ds_read_b128 v[{KF+4*s}:{KF+4*s+3}], v{KA+s} offset:{sl + hf*8192}", f"k{G}")]
    def rd_v(n, f, order):
        G, hf = n >> 1, n & 1
        t, s2 = order[f]
        return [lds_read(lambda sl, jj=jj: f"ds_read_b64_tr_b16 a[{VF+4*f+2*jj}:{VF+4*f+2*jj+1}], v{VA+t} offset:{sl - VB + hf*8192 + (16*s2+8*jj)*256}", f"v{G}") for jj in range(2)]
    STD = [(f % 4, f // 4) for f in range(8)]
    LAST = [(f // 2, f % 2) for f in range(8)]
    def pv_order(n): return LAST if n % 16 == 15 else STD
    def mf_qk(n, s):
        d = R('v', S[n % 2], 16)
        src = d if s else ('0' if n % 16 == 0 else R('v', NEG, 16))
        return f"v_mfma_f32_32x32x16_bf16 {d}, v[{KF+4*s}:{KF+4*s+3}], {R('v', (Q if n < 16 else QACC) + 4*s, 4)}, {src}"
    def oacc(u, t): return R('a', O1 + 16 * t, 16) if u == 0 else R('v', O2 + 16 * t, 16)
    def mf_pv(n, f):
        t, s2 = pv_order(n)[f]
        d = oacc(n >> 4, t)
        src = '0' if (n % 16 == 0 and s2 == 0) else d
        p = P[n % 2] + 4 * s2
        return f"v_mfma_f32_32x32x16_bf16 {d}, a[{VF+4*f}:{VF+4*f+3}], v[{p}:{p+3}], {src}"
    def cvt_q(D):
        f = []
        for i in range(32):
            if D == Q or opt.get('epk'): f.append((f"v_pk_mul_f32 v[{QACC+2*i}:{QACC+2*i+1}], v[{QACC+2*i}:{QACC+2*i+1}], s[{sSC}:{sSC+1}]", 1))
            else: f += [(f"v_mul_f32 v{QACC+2*i+e}, s{sSC}, v{QACC+2*i+e}", 1) for e in range(2)]
            if i >= 2: f.append((f"v_cvt_pk_bf16_f32 v{D+i-2}, v{QACC+2*i-4}, v{QACC+2*i-3}", 1))
        for i in (30, 31): f.append((f"v_cvt_pk_bf16_f32 v{D+i}, v{QACC+2*i}, v{QACC+2*i+1}", 1))
        return f
    def max_tree(s, dst, tmp):
        f = [(f"v_max3_f32 v{dst}, v{s}, v{s+1}, v{s+2}", 1), (f"v_max3_f32 v{tmp}, v{s+3}, v{s+4}, v{s+5}", 1)]
        for i in range(6, 16, 4):
            f.append((f"v_max3_f32 v{dst}, v{dst}, v{s+i}, v{s+i+1}", 1))
            if i + 3 < 16: f.append((f"v_max3_f32 v{tmp}, v{tmp}, v{s+i+2}, v{s+i+3}", 1))
        f.append((f"v_max_f32 v{dst}, v{dst}, v{tmp}", 1))
        f.append((f"v_mov_b32 v{tmp}, v{dst}", 1))
        f.append((f"v_permlane32_swap_b32 v{dst}, v{tmp}", 3))
        f.append((f"v_max_f32 v{dst}, v{dst}, v{tmp}", 1))
        return f
    def first_max(n):
        s = S[n % 2]
        f = max_tree(s, LA, LB)
        f.append((f"v_sub_f32 v{NEG}, 0, v{LA}", 1))
        for i in range(1, 16): f.append((f"v_mov_b32 v{NEG+i}, v{NEG}", 1))
        g = [(f"v_sub_f32 v{s+i}, v{s+i}, v{LA}", 1) for i in range(16)]
        return f, g
    rare = {}
    stubs = []
    def softmax_items(n):
        s = S[n % 2]; p = P[n % 2]; L = L1 if n < 16 else L2
        ex = [(f"v_exp_f32 v{T+k%8}, v{s+k}", 2) for k in range(16)]
        ad = []
        for k in range(16):
            acc = LA if k % 2 == 0 else LB
            if k < 2: ad.append(None)
            elif k < 4: ad.append((f"v_add_f32 v{acc}, v{T+(k-2)%8}, v{T+k%8}", 1))
            else: ad.append((f"v_add_f32 v{acc}, v{acc}, v{T+k%8}", 1))
        cv = [(f"v_cvt_pk_bf16_f32 v{p+e}, v{T+(2*e)%8}, v{T+(2*e+1)%8}", 1) for e in range(8)]
        tail = []
        if n % 16 == 0:
            tail.append((f"v_add_f32 v{L}, v{LA}, v{LB}", 1))
        else:
            key = (n % 2, n >> 4, n % 16 != 15)
            rare[key] = f"K1_RARE_{key[0]}{key[1]}{int(key[2])}"
            tail.append((f"v_add_f32 v{LA}, v{LA}, v{LB}", 1))
            tail.append((f"v_cmp_nge_f32 vcc, s{sTH}, v{LA}", 1))
            def br(n=n, key=key):
                nm = f"{n}{cur['var']}"
                E(f"s_cbranch_vccnz K1_STUB_{nm}")
                E.label(f"K1_BACK_{nm}")
                stubs.append((nm, rare[key]))
            tail.append((br, 1))
            tail.append((f"v_add_f32 v{L}, v{L}, v{LA}", 1))
        return ex, ad, cv, tail
    def softmax_stream(n):
        ex, ad, cv, tail = softmax_items(n)
        f = []
        LAG = opt.get('smlag', 2)
        for k in range(16 + LAG):
            if k < 16: f.append(ex[k])
            kk = k - LAG
            if kk >= 0:
                if ad[kk]: f.append(ad[kk])
                if kk % 2 == 1: f.append(cv[kk // 2])
        return f, tail
    opol = opt.get('opol', 'sc1')
    epi_done = set()
    def o_store(u, fr):
        k, r = OF[4 * u]; r += 4 * fr
        def g():
            assert (u, fr) in epi_done; E(f"s_mov_b32 s{sTMP}, {u*16*32768 + (fr//4)*4096}"); st['issued'].add(f"o{u}.{fr}")
            E(f"buffer_store_dwordx4 {k}[{r}:{r+3}], v{OD}, s[{SO}:{SO+3}], s{sTMP} offen offset:{(fr%4)*1024} {opol}", f"o{u}")
        return [(g, DC + 1)]
    def st_o(item): return o_store(0, int(item[1:]))
    def epi_items(u, fr, pk):
        t, s2 = fr // 2, fr % 2
        D = EP if u == 0 else QACC + 4 * fr
        f = []
        if u == 0:
            for i in range(8): f.append((f"v_accvgpr_read_b32 v{EP+i}, a{O1+16*t+8*s2+i}", 1))
            src = EP
        else:
            src = O2 + 16 * t + 8 * s2
        if pk:
            for i in range(4): f.append((f"v_pk_mul_f32 v[{src+2*i}:{src+2*i+1}], v[{src+2*i}:{src+2*i+1}], v[{RL}:{RL+1}] op_sel_hi:[1,0]", 1))
        else:
            for i in range(8): f.append((f"v_mul_f32 v{src+i}, v{src+i}, v{RL}", 1))
        for i in range(4): f.append((f"v_cvt_pk_bf16_f32 v{D+i}, v{src+2*i}, v{src+2*i+1}", 1))
        if u == 0:
            for i in (0, 2): f.append((f"v_and_b32 v{D+i}, -2, v{D+i}", 1))
            for i in range(4): f.append((f"v_accvgpr_write_b32 a{OF[0][1]+4*fr+i}, v{D+i}", 1))
        f.append((lambda: epi_done.add((u, fr)), 0))
        if u == 1: f += o_store(1, fr)
        return f
    def rl_items(L):
        return [(f"v_mov_b32 v{RL+1}, v{L}", 1), (f"v_mov_b32 v{RL}, v{L}", 1), (f"v_permlane32_swap_b32 v{RL}, v{RL+1}", 3),
                (f"v_add_f32 v{RL}, v{RL}, v{RL+1}", 1), (f"v_rcp_f32 v{RL}, v{RL}", 2)]
    def items(l): return [f for it in l for f in dma(it)]
    def items_lo(l):
        its = []; lo = []
        for it in l:
            nm, _, g = it.partition('@')
            f = dma(nm); its += f; lo += [int(g or 0)] * len(f)
        return its, lo

    class Strm:
        def __init__(self, its, g0=0, g1=None, lo=None, asap=False, hard=False, hi=None, prio=0):
            self.its = list(its); self.g0 = g0; self.g1 = g1; self.lo = lo; self.asap = asap; self.hard = hard; self.hi = hi; self.prio = prio
    def schedule(mf, streams, fixed=None, cap0=None):
        n = len(mf)
        fixed = fixed or {}
        Q_ = []
        total = sum(f[1] for v in fixed.values() for f in v)
        for sm in streams:
            g1 = n if sm.g1 is None else min(sm.g1, n)
            g0 = min(sm.g0, g1 - 1)
            tot = sum(f[1] for f in sm.its); acc = 0; l = []
            total += tot
            prev = 0
            hi = list(sm.hi) if sm.hi else [n] * len(sm.its)
            for i in range(len(hi) - 2, -1, -1): hi[i] = min(hi[i], hi[i + 1])
            for i, f in enumerate(sm.its):
                lo = max(g0, sm.lo[i] if sm.lo else 0, prev); prev = lo
                due = lo if sm.asap else max(lo, g0 + (acc + f[1] * 0.5) * (g1 - g0) / max(tot, 1) - 0.5)
                acc += f[1]
                assert lo <= hi[i], (f, lo, hi[i])
                l.append((f, min(lo, n - 1), due - sm.prio, min(hi[i], max(g1 - 1, min(lo, n - 1))), sm.hard))
            Q_.append(l)
        cap = max(opt.get('cap', 6), total / n) if callable(cap0) else max(cap0 or opt.get('cap', 6), total / n)
        carry = 0.0
        for g in range(n):
            if callable(cap0): cap = cap0(g)
            m = mf[g]
            if callable(m): m()
            else: E(m)
            used = 0
            for f in fixed.get(g, []): put([f]); used += f[1]
            lim = cap + carry
            while True:
                best = None
                for l in Q_:
                    if not l or l[0][1] > g: continue
                    f, lo, due, hi, hard = l[0]
                    if len(f) > 3 and not f[3](): continue
                    forced = hi <= g or (hard and due <= g)
                    if not forced:
                        if due > g + opt.get('early', 1.5): continue
                        if used + f[1] > lim + 0.01 and not (used == 0): continue
                    key = (0 if forced else 1, due)
                    if best is None or key < best[0]: best = (key, l)
                if best is None: break
                f = best[1].pop(0)[0]
                put([f]); used += f[1]
            carry = max(0.0, min(lim - used, cap - int(cap)))
        for l in Q_: assert not l

    CS = dict(fr=[], nm=0, nr=0, u=False, m0=0)
    def cs_tiles(upto):
        return sorted({d[0] for d in CS['fr'][CS['nr']:upto]}, key=lambda x: int(x[1:]))
    def cs_take(cm, ra):
        m0 = CS['nm']; CS['nm'] = m0 + cm; CS['m0'] = m0
        assert CS['nm'] <= len(CS['fr'])
        mf = [CS['fr'][i][2](i) for i in range(m0, m0 + cm)]
        r1 = min(m0 + cm + ra, len(CS['fr']))
        rd = []
        for i in range(CS['nr'], r1):
            rd.append((i, CS['fr'][i][1](i), i - NWF - m0, CS['fr'][i][0]))
        CS['nr'] = max(CS['nr'], r1)
        return mf, rd, m0
    def q_frags(qs): return [(f"w{q}", (lambda i, q=q, f=f: rd_w(q, f, i)), (lambda i, q=q, f=f: mf_q(q, f, i))) for q in qs for f in range(16)]

    UB = dict(ok=False, set=False, set2=False)
    def oproj_setup():
        f = []
        def srd1():
            assert 'w17' in st['issued']
            E(f"""
            s_cmp_eq_u32 s38, 0
            s_cselect_b32 s{SWO}, s84, s86
            s_cselect_b32 s{SWO+1}, s85, s87
            s_mul_i32 s{sN}, s{sHG}, {512*1152}
            s_add_u32 s{SWO}, s{SWO}, s{sN}
            s_addc_u32 s{SWO+1}, s{SWO+1}, 0
            s_sub_u32 s{SWO+2}, {4096*1152}, s{sN}
            """)
        f.append((srd1, 7))
        def srd2():
            E(f"""
            s_lshl_b32 s{sN}, s{sM}, 15
            s_sub_u32 s{SOR}, s{SO}, s{sN}
            s_subb_u32 s{SOR+1}, s{SO+1}, 0
            s_mov_b32 s{SOR+2}, {20*32768}
            """)
        f.append((srd2, 4))
        def se():
            E(f"""
            s_lshr_b32 s{sN}, s35, 1
            s_add_u32 s{sN}, s{sN}, s{sM}
            s_and_b32 s{sN}, s{sN}, 3
            s_lshl_b32 s{sN}, s{sN}, 1
            s_and_b32 s{sE}, s35, 1
            s_add_u32 s{sN}, s{sN}, s{sE}
            s_mul_i32 s{sN}, s{sN}, {64*1152}
            s_and_b32 s{sE}, s{sM}, 1
            s_lshl_b32 s{sE}, s{sE}, 6
            s_add_u32 s{sE}, s{sE}, s{sN}
            s_add_u32 s{sE}, s{sE}, 1024
            s_lshl_b32 s{sMK}, s{sM}, 8
            """)
        f.append((se, 12))
        txt = f"""
        v_lshrrev_b32 v{UD+1}, 13, v{WD}
        v_and_b32 v{UD}, 0xff, v{WD}
        v_mul_u32_u24 v{UD+1}, 1152, v{UD+1}
        v_add3_u32 v{UD}, v{UD}, v{UD+1}, s{sMK}
        v_add_u32 v{UD+1}, {4*1152-1024}, v{UD}
        v_add_u32 v{UD+2}, {8*1152-2048}, v{UD}
        v_add_u32 v{UD+3}, {12*1152-3072}, v{UD}
        v_bfe_u32 v{ED}, v{OD}, 6, 4
        v_mul_u32_u24 v{ED}, 1152, v{ED}
        v_and_b32 v{PD}, 0x30, v{OD}
        v_add_u32 v{ED}, v{ED}, v{PD}
        v_and_b32 v{EA}, 0x2d0, v{OD}
        v_and_b32 v{PD}, 0x20, v{OD}
        v_lshrrev_b32 v{PD}, 2, v{PD}
        v_add_u32 v{EA}, v{EA}, v{PD}
        v_and_b32 v{PD}, 0x100, v{OD}
        v_lshrrev_b32 v{PD}, 3, v{PD}
        v_add_u32 v{EA}, v{EA}, v{PD}
        v_add_u32 v{EA}, {WB}, v{EA}
        """
        f += [(l.strip(), 1) for l in txt.strip().split('\n')]
        f.append((lambda: UB.update(set=True), 0))
        return f
    def oproj_setup2():
        def g():
            assert UB['set'] and CS['nr'] == len(CS['fr']) and not CS['u']
            E(f"s_lshl_b32 s{sN}, s{sHG}, 6")
            for t in range(4): E(f"v_xor_b32 v{WA+t}, s{sN}, v{WA+t}")
            E(f"s_and_b32 s{sN}, s{sM}, 2")
            E(f"s_lshl_b32 s{sN}, s{sN}, 4")
            E(f"v_xor_b32 v{EA}, s{sN}, v{EA}")
        f = [(g, 8)]
        f += [(f"v_subrev_u32 v{XA+t}, {WB}, v{WA+t}", 1) for t in range(4)]
        f.append((lambda: UB.update(set2=True), 0))
        return f
    def ubase_setup():
        UB['ok'] = True
        return [(f"v_subrev_u32 v{KA+t}, {WB - 3*SL}, v{WA+t}", 1) for t in range(4)] + [(f"v_subrev_u32 v{KA+4}, {WB - 2*SL}, v{EA}", 1)]
    def publish(u):
        def g():
            assert 'n1' in st['issued'] and 'p' not in LOCK
            if u < 3: assert all(f"o{u&1}.{fr}" in BARVM[1] for fr in range(8)) and not [t for t, d in BARVM[0] if t == f"o{u&1}"]
            fl_off(u)
            if u == 3 or (u == 1 and all(f"a{h}.{fr}" in BARVM[1] for h in (1, 2, 3) for fr in range(8)) and not [t for t, d in BARVM[0] if t in ('a1', 'a2', 'a3')]):
                assert all(f"a{h}.{fr}" in BARVM[1] for h in (1, 2, 3) for fr in range(8)) and not [t for t, d in BARVM[0] if t in ('a1', 'a2', 'a3')]
                TS['rel'] = u
            if u != 2: E(f"s_add_u32 s100, s{sM}, {[0, 4, 0, 8][u]}")
            else:
                E(f"s_and_b32 s100, s{sM}, 2")
                E(f"s_lshl1_add_u32 s100, s100, s{sHG}")
            E(f"s_lshl2_add_u32 s{sB}, s100, s{sB}")
            E(f"s_lshr_b32 s100, s{sSN[u]}, s100")
            E(f"v_mov_b32 v{PD}, s100")
            E(f"v_lshlrev_b32 v{RL+1}, 8, v{OD}")
            E(f"buffer_store_dword v{PD}, v{RL+1}, s[{SPL}:{SPL+3}], s{sB} offen sc1", f"fl{u}")
            stamp(f'pb{u}', 3)
        return [(g, DC + 6)]
    def poll_ld(u):
        return f"buffer_load_dword v{PD}, v{PV_}, s[{SPL}:{SPL+3}], s{sB} offen sc1"
    def poll_issue(u):
        def g():
            assert 'p' not in LOCK; LOCK['p'] = u
            fl_off(u)
            E(poll_ld(u), f"pl{u}")
        return [(g, DC)]
    polls = []
    def poll_test(u):
        return f"""
            v_and_b32 v{PD}, 1, v{PD}
            v_cmp_ne_u32_e64 s[100:101], 0, v{PD}
            s_nop 0
            s_xor_b32 s100, s100, s{sSN[u]}
            s_and_b32 s100, s100, {[0x0f, 0xf0, 0xff, 0xf00][u]}
            """
    def poll_check(u):
        def g():
            assert LOCK.pop('p') == u
            stamp(f'pw{u}', 3)
            fl_off(u)
            E(poll_test(u))
            E(f"s_cbranch_scc0 K1_PBACK_{u}")
            E.raw(f"""    ;[
    s_mov_b32 s{sRET}, 0
K1_PLOOP_{u}:
    {poll_ld(u)}
    s_add_u32 s{sRET}, s{sRET}, 1
    s_waitcnt vmcnt(0)
    s_cmp_gt_u32 s{sRET}, 0x30000
    s_cbranch_scc1 K1_PBACK_{u}
    {poll_test(u).strip()}
    s_cbranch_scc1 K1_PLOOP_{u}
    ;]""")
            E.label(f"K1_PBACK_{u}")
            polls.append(u)
            stamp(f'pc{u}', 3)
        return [(g, 7)]
    def rot(hs):
        E(f"s_add_u32 s{sN}, s{sM}, {hs & 3}")
        E(f"s_and_b32 s{sN}, s{sN}, 3")
    upol = opt.get('upol', '')
    def ld_u(c):
        def first():
            assert UB['set']
            a = on_issue(f"u{c}")
            rot(c >> 1)
            E(f"s_mul_i32 s{sOFF}, s{sN}, {128*1152}")
            E(f"s_add_u32 s{sOFF}, s{sOFF}, {(c >> 3)*2048*1152 + (c & 1)*64*1152}")
            E(f"s_add_u32 m0, s{sW4K}, {a}")
        return [(first, 5)] + [(f"buffer_load_dwordx4 v{UD+i}, s[{SWO}:{SWO+3}], s{sOFF} offen offset:{1024*i} {upol} lds", DC, f"u{c}") for i in range(4)]
    def touch_u(c):
        def g():
            early = not UB['set']
            assert cur.get('j', -1) != 16
            D = L1 if cur.get('j', -1) > 16 or (early and c == 1) else L2
            S_ = SWO
            if early:
                assert 'n1' not in st['issued'] and 'j' not in cur
                S_ = 64
                E(f"""
                s_cmp_eq_u32 s38, 0
                s_cselect_b32 s64, s84, s86
                s_cselect_b32 s65, s85, s87
                s_mov_b32 s66, {4096*1152}
                s_mov_b32 s67, 0x20000
                s_lshl_b32 s{sN}, s36, 3
                """)
            else: E(f"s_lshl_b32 s{sN}, s{sM}, 3")
            E(f"""
            s_add_u32 s{sN}, s{sN}, s37
            s_lshl2_add_u32 s{sN}, s{sN}, s35
            s_mul_i32 s{sOFF}, s{sN}, {4*1152}
            s_add_u32 s{sOFF}, s{sOFF}, {c*2048*1152}
            v_and_b32 v{D}, 0x3f0, v{OD}
            v_min_u32 v{D}, {35*16}, v{D}
            v_lshlrev_b32 v{D}, 3, v{D}
            """)
            dst = f"v{D}" if (early or not opt.get('tagpr', 1)) else "a143"
            if dst[0] == 'a': assert cur['j'] >= 14 and 'a1.0' not in st['issued']
            E(f"buffer_load_dword {dst}, v{D}, s[{S_}:{S_+3}], s{sOFF} offen", f"t{c}")
        return [(g, 8 + DC)]
    def ld_e(c):
        def first():
            assert UB['set']
            a = on_issue(f"e{c}")
            E(f"s_add_u32 m0, s{sW4K}, {a}")
        f = [(first, 1)]
        for i in range(4):
            f.append((f"s_add_u32 s{sOFF}, s{sE}, {c*2048*1152 + i*(16*1152-1024)}", 1))
            f.append((f"buffer_load_dwordx4 v{ED}, s[{SWO}:{SWO+3}], s{sOFF} offen offset:{1024*i} {upol} lds", DC, f"e{c}"))
        return f
    def ld_a(item):
        hs, _, part = item[1:].partition('.')
        hs = int(hs)
        frs = range(8) if part == '' else range(4 * int(part), 4 * int(part) + 4)
        k, r = OF[hs]
        def first():
            for h2 in range(hs):
                if OF[h2] == OF[hs]:
                    assert CS['u'] and not any(d[3] == h2 for d in CS['fr'][max(CS['m0'], mfp[0]):]), (hs, h2)
                    if h2 == 0: assert all(f"o0.{fr}" in st['issued'] for fr in range(8))
            if k == 'a' and O1 <= r < O1 + 64: assert all((0, fr) in epi_done for fr in range(8))
            if (k, r) == ('a', VF): assert cur['plan'] is None
            if (k, r) == ('v', KF): assert cur.get('j', 0) >= 31
            assert (hs >> 2) in polls and hs % 4
            rot(hs)
            E(f"s_lshl_b32 s{sA}, s{sN}, 15")
            off = (hs >> 2) * 16 * 32768 + (4096 if frs[0] == 4 else 0)
            if off: E(f"s_add_u32 s{sA}, s{sA}, {off}")
        f = [(first, 4)]
        for fr in frs:
            if fr == 4 and frs[0] == 0: f.append((f"s_add_u32 s{sA}, s{sA}, 4096", 1))
            f.append((f"buffer_load_dwordx4 {k}[{r+4*fr}:{r+4*fr+3}], v{OD}, s[{SOR}:{SOR+3}], s{sA} offen offset:{(fr%4)*1024} {opt.get('apol', 'sc1')}", DC, f"a{hs}"))
            f.append((lambda fr=fr: st['issued'].add(f"a{hs}.{fr}"), 0))
        return f
    def rd_u(c, s, t, ri):
        k, r = WF[ri % NWF]
        def fn(a, jj):
            assert UB['set2']
            if t == 4:
                if a >= WB: b, o = EA, WB
                else:
                    assert UB['ok'] and a >= 2 * SL
                    b, o = KA + 4, 2 * SL
                return f"ds_read_b64_tr_b16 {k}[{r+2*jj}:{r+2*jj+1}], v{b} offset:{a - o + (c & 3)*4096 + (16*s+4*jj)*64}"
            if a >= WB: b, o = WA, WB
            elif a < 4 * SL: b, o = XA, 0
            else:
                assert UB['ok']
                b, o = KA, 3 * SL
            return f"ds_read_b64_tr_b16 {k}[{r+2*jj}:{r+2*jj+1}], v{b+t} offset:{a - o + (16*s+4*jj)*256}"
        return [lds_read(lambda a, jj=jj: fn(a, jj), f"e{c>>3}" if t == 4 else f"u{c}") for jj in range(2)]
    FR = NEG; SUM = FR; SUMX = T; PM = P[0]
    assert P[1] == P[0] + 8
    def mf_u(c, s, t, ri, first, fresh):
        k, r = WF[ri % NWF]
        hs = c >> 1; fr = 4 * (c & 1) + s
        kb, rb = OF[hs]; rb += 4 * fr
        acc = R('v', FR, 16) if fresh else R('a', ACC + 16 * t, 16)
        def g():
            assert ((hs >> 2, fr) in epi_done) if hs % 4 == 0 else (f"a{hs}.{fr}" in st['issued']), (c, s, t)
            assert not fresh or TS['sum'] == 2
            E(f"v_mfma_f32_32x32x16_bf16 {acc}, {k}[{r}:{r+3}], {kb}[{rb}:{rb+3}], {'0' if first else acc}")
        return g
    def u_frags():
        cs = opt['uorder']; keep = opt['keep']; ntm = opt.get('ntm', 2)
        tri = []
        tl = lambda c: [t for t in range(5 if (c & 7) < 4 else 4) if not (t == 0 and c in keep)]
        for c in cs[:len(cs) - ntm]: tri += [(c, s, t, False) for s in range(4) for t in tl(c)]
        for t in (4, 0, 1, 2, 3): tri += [(c, s, t, False) for c in cs[len(cs) - ntm:] if t in tl(c) for s in range(4)]
        tri += [(c, s, 0, True) for c in keep for s in range(4)]
        assert len(tri) == 288 and len(set(x[:3] for x in tri)) == 288
        l = []; seen = set()
        for c, s, t, fresh in tri:
            key = 5 if fresh else t
            l.append((f"e{c>>3}" if t == 4 else f"u{c}", (lambda i, c=c, s=s, t=t: rd_u(c, s, t, i)),
                      (lambda i, c=c, s=s, t=t, fi=(key not in seen and not fresh), fresh=fresh: mf_u(c, s, t, i, fi, fresh)), c >> 1, key))
            seen.add(key)
        return l
    def last_of(key): return max(i for i, d in enumerate(CS['fr']) if d[4] == key)
    PT = [S[0], S[1]]
    DA, GX = VA, VA + 1
    GR = O2
    GT = O2 + 52
    sPX, sGH, sK8, sWM = sXC, sWC, 39, 66
    nps = [0]
    mfp = [0]
    def pstore(t):
        def chk():
            assert TS['ok'] and TS['rel'] in polls and cur['j'] == 33, (t, TS, polls)
        f = [(chk, 0, None, lambda: TS['ok'] and TS['rel'] in polls)]
        tm = PT[nps[0] % 2]; nps[0] += 1
        for h in range(2):
            for i in range(8): f.append((f"v_accvgpr_read_b32 v{tm+8*h+i}, a{ACC+16*t+8*h+i}", 1))
            for i in range(4): f.append((f"v_cvt_pk_bf16_f32 v{tm+8*h+i}, v{tm+8*h+2*i}, v{tm+8*h+2*i+1}", 1))
            for i in (0, 2): f.append((f"v_or_b32 v{tm+8*h+i}, 1, v{tm+8*h+i}", 1))
            k = 2 * (t - 1) + h
            def stf(h=h, k=k):
                if t == 4:
                    so = f"s{sPX}"; off = 0
                    if h: E(f"s_xor_b32 s{sTMP}, s{sPX}, 1024"); so = f"s{sTMP}"
                elif k >= 4: E(f"s_movk_i32 s{sTMP}, 4096"); so = f"s{sTMP}"; off = (k % 4) * 1024
                else: so = '0'; off = k * 1024
                E(f"buffer_store_dwordx4 v[{tm+8*h}:{tm+8*h+3}], v{OD}, s[{SO}:{SO+3}], {so} offen offset:{off} sc1", f"ps{t}")
                if h: TS['done'].add(t)
            f.append((stf, DC))
        return f
    def tail_setup():
        def g1():
            assert 'k15' in st['issued'] and 'v15' in st['issued'] and cur['j'] >= 32
            E(f"""
            s_mov_b32 s{SG}, s82
            s_mov_b32 s{SG+1}, s83
            s_mov_b32 s{SG+2}, {16*32768}
            s_lshl_b32 s{sGH}, s36, 15
            s_and_b32 s{sPX}, s{sM}, 2
            s_lshl_b32 s{sPX}, s{sPX}, 9
            s_add_u32 s{sPX}, s{sPX}, 6144
            """)
        def g2():
            E(f"""
            s_cmp_eq_u32 s35, s{sHG}
            s_cselect_b32 s{sN}, s{sPX}, 0x40000000
            s_cselect_b64 s[{sWM}:{sWM+1}], -1, 0
            v_add_u32 v{GX}, s{sN}, v{OD}
            v_bfe_u32 v{DA}, v{OD}, 4, 5
            s_lshl_b32 s{sN}, s35, 5
            v_add_u32 v{DA}, s{sN}, v{DA}
            v_mul_u32_u24 v{DA}, 2304, v{DA}
            v_bfe_u32 v{DA+2}, v{OD}, 9, 1
            v_lshl_add_u32 v{DA}, v{DA+2}, 4, v{DA}
            """)
        def g3():
            E(f"""
            s_lshl2_add_u32 s{sN}, s{sM}, s{sHG}
            s_lshl_b32 s{sN}, s{sN}, 6
            s_and_b32 s{sR1}, s{sM}, 1
            s_lshl_b32 s{sR1}, s{sR1}, 1
            s_lshr_b32 s{sTMP}, s{sM}, 1
            s_add_u32 s{sR1}, s{sR1}, s{sTMP}
            s_lshl_b32 s{sR1}, s{sR1}, 5
            s_add_u32 s{sR1}, s{sR1}, 1024
            s_sub_u32 s{sR1}, s{sR1}, s{sN}
            s_cmp_eq_u32 s35, s{sHG}
            s_cselect_b32 s{sR1}, s{sR1}, 0x40000000
            s_mul_i32 s{sTMP}, s37, {128*2304}
            s_add_u32 s{sN}, s{sN}, s{sTMP}
            s_mul_i32 s{sTMP}, s38, 1152
            s_add_u32 s{sN}, s{sN}, s{sTMP}
            s_add_u32 s{SD}, s88, s{sN}
            s_addc_u32 s{SD+1}, s89, 0
            s_sub_u32 s{SD+2}, {1024*2304}, s{sN}
            """)
            TS['ok'] = True
        def cj(): assert cur['j'] == 33
        txt = f"""
        v_bfe_u32 v{GT}, v{OD}, 7, 2
        v_bfe_u32 v{GT+1}, v{OD}, 5, 1
        v_lshl_add_u32 v{GT}, v{GT}, 1, v{GT+1}
        v_bfe_u32 v{GT+1}, v{OD}, 6, 1
        v_bfe_u32 v{GT+2}, v{OD}, 9, 1
        v_xor_b32 v{GT+1}, v{GT+1}, v{GT+2}
        v_lshl_add_u32 v{GT}, v{GT+1}, 3, v{GT}
        v_and_b32 v{GT+1}, 16, v{OD}
        v_mov_b32 v{GT+2}, 0x3f80
        v_lshlrev_b32 v{GT+1}, v{GT+1}, v{GT+2}
        """
        f = [(cj, 0)] + [(l.strip(), 1) for l in txt.strip().split('\n')]
        for j in range(8):
            def g(j=j):
                E(f"v_cmp_eq_u32_e64 s[100:101], {j}, v{GT}")
                E(f"v_cndmask_b32_e64 v{PM+j}, 0, v{GT+1}, s[100:101]")
            f.append((g, 3))
        return f + [(g1, 6), (g2, 8), (g3, 10)]
    def g_loads(t):
        l = []
        pol = opt.get('rpol', 'sc1')
        if t < 4:
            for h in range(2):
                k = 2 * (t - 1) + h; d = GR + 8 * (t - 1) + 4 * h
                l.append((f"s_xor_b32 s{sMK}, s{sGH}, {(4*t << 15) + (k // 4) * 4096}",
                          f"buffer_load_dwordx4 v[{d}:{d+3}], v{OD}, s[{SG}:{SG+3}], s{sMK} offen offset:{(k%4)*1024} {pol}"))
        else:
            for n in range(1, 8):
                d = GR + 24 + 4 * (n - 1)
                l.append((f"s_xor_b32 s{sMK}, s{sGH}, {2*n << 15}", f"buffer_load_dwordx4 v[{d}:{d+3}], v{GX}, s[{SG}:{SG+3}], s{sMK} offen {pol}"))
        return l
    def g_regs(t): return list(range(GR + 8 * (t - 1), GR + 8 * t)) if t < 4 else list(range(GR + 24, GR + 52))
    def g_test(t):
        r = g_regs(t)[::2]; l = []
        l.append(f"v_bitop3_b32 v{GT}, v{r[0]}, v{r[1]}, 1 bitop3:0x80")
        for i in range(2, len(r), 2): l.append(f"v_bitop3_b32 v{GT}, v{r[i]}, v{r[i+1]}, v{GT} bitop3:0x80")
        return l
    def g_br(t):
        return [f"v_cmp_eq_u32 vcc, 0, v{GT}", "s_nop 0", (f"s_and_b64 vcc, vcc, s[{sWM}:{sWM+1}]" if t == 4 else "s_or_b64 vcc, vcc, vcc")]
    def ld_g(t):
        f = []
        for a_, b_ in g_loads(t):
            def g(a_=a_, b_=b_):
                assert TS['ok'] and 2 in polls and all((1, fr) in epi_done for fr in range(8)) and cur['j'] == 33
                E(a_); E(b_, f"g{t}")
            f.append((g, DC + 1))
        f.append((lambda: st['issued'].add(f"g{t}"), 0))
        return f
    def sum0():
        def chk():
            assert mfp[0] > last_of(0) and cur['j'] == 33; TS['sum'] = True
        return [(chk, 0, None, lambda: mfp[0] > last_of(0) + 2)] + [(f"v_accvgpr_read_b32 v{SUM+i}, a{ACC+i}", 1) for i in range(16)] + [(lambda: TS.update(sum=2), 0)]
    retr = []
    def red_g(t):
        def chk():
            assert f"g{t}" in st['issued'] and (TS['sum'] == 2 or t == 4) and (TS['done'] == {1, 2, 3, 4} or opt.get('earlyred'))
            assert t in TS['done']
            stamp(f'hw{t}', 3)
        f = [(chk, 0, None, lambda: f"g{t}" in st['issued'] and (TS['done'] == {1, 2, 3, 4} or (t == 4 and opt.get('earlyred') and 4 in TS['done'])))] + [(x, 1) for x in g_test(t)]
        def br():
            for x in g_br(t): E(x)
            E(f"s_cbranch_scc0 K1_RBACK_{t}")
            tl_ = [t] + [x for x in (1, 2, 3) if t < 4 and x != t and f"g{x}" in st['issued'] and x not in TS['red'] and opt.get('rall', 1)]
            nl = "\n    "
            E.raw(f"""    ;[
    s_mov_b32 s{sRET}, 0
K1_RLOOP_{t}:
    {nl.join(a_ + nl + b_ for x in tl_ for a_, b_ in g_loads(x))}
    s_add_u32 s{sRET}, s{sRET}, 1
    s_waitcnt vmcnt(0)
    s_cmp_gt_u32 s{sRET}, 0x30000
    s_cbranch_scc1 K1_RBACK_{t}
    {nl.join(g_test(t) + g_br(t))}
    s_cbranch_scc1 K1_RLOOP_{t}
    ;]""")
            E.label(f"K1_RBACK_{t}")
            stamp(f'hc{t}', 3)
        f.append((br, 4))
        r = g_regs(t)
        acc = R('a', ACC + 64, 16) if t == 4 else R('v', SUM, 16)
        for q in range(len(r) // 4):
            pm = PM + (0 if t == 4 else 4 * q)
            f.append((f"v_mfma_f32_32x32x16_bf16 {acc}, v[{pm}:{pm+3}], v[{r[4*q]}:{r[4*q]+3}], {acc}", 3))
        if t == 4:
            f.append((lambda: TS.update(x4=mfp[0]), 0))
            f.append((lambda: None, 0, None, lambda: mfp[0] >= min(TS['x4'] + 2, len(CS['fr']))))
            f += [(f"v_accvgpr_read_b32 v{SUMX+i}, a{ACC+64+i}", 1) for i in range(8)]
        if t == 4:
            for i in range(4): f.append((f"v_cvt_pk_bf16_f32 v{SUMX+i}, v{SUMX+2*i}, v{SUMX+2*i+1}", 1))
            f.append((f"buffer_store_dwordx4 v[{SUMX}:{SUMX+3}], v{DA}, s[{SD}:{SD+3}], s{sR1} offen {opt.get('dpol', '')}", DC, "d4"))
        f.append((lambda: TS['red'].add(t), 0))
        return f

    RLAG = opt.get('rlag', 0)
    def merge(att, cm):
        na, nc = len(att), cm
        seq = []; ia = ic = 0
        while ia < na or ic < nc:
            if ic < nc and (ia >= na or (ic + 1) * na <= ia * nc + opt.get('cbias', 0) * nc): seq.append(('c', ic)); ic += 1
            else: seq.append(att[ia]); ia += 1
        return seq
    def cread_stream(rd, cpos, bpos, newt, m0):
        its = []; lo = []; hi = []
        for i, reads, after, tile in rd:
            g = cpos[after] + RLAG if after >= 0 else 0
            if tile in newt: g = max(g, bpos)
            assert i - m0 >= len(cpos) or cpos[i - m0] > g, "fragment read after its use"
            h = 10**6 if i - m0 >= len(cpos) else max(g, cpos[i - m0] - 3)
            for x in reads: its.append(x); lo.append(g); hi.append(h)
        return Strm(its, lo=lo, asap=True, hi=hi)

    def p0(plan):
        PREF.update(plan.get('pref0', {}))
        stamp('i0', 3)
        for it in plan['init']: put(dma(it))
        stamp('i1', 3)
        setup_rest()
        stamp('i2', 3)
        for it in plan.get('init2', []): put(dma(it))
        stamp('iss')
        xr = plan.get('xread', {q - 1: [q] for q in range(9)})
        for q in xr.get(-1, []): put(rd_x(q))
        put(items(plan['ld'].get(('q', -1), [])))
        CS.update(fr=q_frags(range(9)), nm=0, nr=0)
        LAGP = plan.get('lagp', 8)
        for q in range(10):
            cm = 16 - LAGP if q == 0 else (16 if q < 9 else LAGP)
            if cm == 0: continue
            tags = [f"w{q}"] if q < 9 else ["k0"] + plan['prew']
            fixed = {}; bp = 0
            if q == 0 or LAGP == 0:
                barrier(*tags)
                if q == 0: stamp('b0')
                _, rd, _ = cs_take(0, NWF)
                for r in rd: put(r[1])
            else:
                bp = plan.get('bposp', 2)
                fixed[bp] = [(lambda tags=tags: barrier(*tags), 2)]
            mf, rd, m0 = cs_take(cm, LAGP)
            cpos = list(range(cm))
            sts = [cread_stream(rd, cpos, bp, tags, m0), Strm(items(plan['ld'].get(('q', q), [])), g0=bp, g1=plan.get('pspan', 16))]
            if q < 9: sts.append(Strm([x for qq in xr.get(q, []) for x in rd_x(qq)], g0=cm - 2))
            if q == 9:
                sts.append(Strm([x for s in range(8) for x in rd_k(0, s)] + items(plan['ld'].get('pre', [])), g0=bp))
            schedule(mf, sts, fixed)
            stamp(f'c{q}', 2)
        stamp('p0')
        if LAGP == 0:
            barrier("k0", *plan['prew'])
            for s in range(8): put(rd_k(0, s))
            put(items(plan['ld'].get('pre', [])))
        CS.update(fr=q_frags(range(9, 18)), nm=0, nr=0)
        _, rd, _ = cs_take(0, NWF)
        put(cvt_q(Q))
        schedule([mf_qk(0, s) for s in range(8)], [Strm([rd_k(1, s)[0] for s in range(8)], lo=list(range(8)), asap=True),
                                                   Strm([x for r in rd for x in r[1]])])
        f, g = first_max(0)
        cm = plan['cm'][-1]
        mf, rd, m0 = cs_take(cm, plan.get('ra', 8))
        schedule(mf, [cread_stream(rd, list(range(cm)), 0, (), m0), Strm(f + g, g0=1), Strm(items(plan['ld'].get('pre2', [])))])
        stamp('pre')
    EPI = opt.get('epi', {16: [0], 17: [1, 2, 3], 18: [4, 5], 19: [6, 7]})
    def step(j, plan):
        if j == 14 and opt.get('hook'): opt['hook'](opt, plan, E)
        PUB = opt.get('pub', 18)
        cur['j'] = j
        hasqk = j + 1 < 32; haspv = j >= 1; hassm = j < 32
        if j == 16:
            att = [('pv', f) for f in range(8)] + [('qk', s) for s in range(8)]
        elif hasqk and haspv:
            att = [('qk', 0)]
            for s in range(1, 8): att += [('qk', s), ('pv', s - 1)]
            att += [('pv', 7)]
        elif hasqk: att = [('qk', s) for s in range(8)]
        else: att = [('pv', f) for f in range(8)]
        if j == plan.get('ustart'):
            assert CS['nm'] == len(CS['fr']) and j > max(EPI)
            CS.update(fr=u_frags(), nm=0, nr=0, u=True)
        cmd = plan.get('cm', {}); ra = plan.get('ra', 8)
        cm = cmd.get(j, 0)
        bpos = -1; newt = ()
        fixed = {}
        if (j % 2 == 0 and j <= opt.get('lastbar', 30)) or j in opt.get('xbar', {}):
            G = j // 2
            bpos = opt.get('xbar', {}).get(j, opt.get('bpos', 2))
            newt = cs_tiles(CS['nm'] + cm + cmd.get(j + 1, 0) + ra)
            newt = [t for t in newt if t not in st['visible'] and t in st['issued']]
            newt += [t for t in plan.get('btag', {}).get(j, []) if t not in newt]
            tags = ([f"k{G+1}", f"v{G}"] if j % 2 == 0 else []) + newt
            if j == PUB:
                tags.append("o0")
            fixed[bpos] = [(lambda tags=tags: barrier(*tags), 2)]
            if j == PUB: fixed[bpos] += publish(0) + publish(2)
        if j in plan.get('pref', {}): PREF.update(plan['pref'][j])
        while ra > 0 and any(t not in st['visible'] and t not in newt for t in cs_tiles(CS['nm'] + cm + ra)): ra -= 1
        ahead = CS['nr'] - CS['nm']
        cmf, rd, m0 = cs_take(cm, ra)
        sk = min(len(att) - 1, max(bpos, 0) + 3) if ahead < 2 else 0
        seq = att[:sk] + merge(att[sk:], cm)
        n = len(seq)
        mf = [mf_qk(j + 1, i) if k == 'qk' else mf_pv(j - 1, i) if k == 'pv' else cmf[i] for k, i in seq]
        cpos = [g for g, (k, i) in enumerate(seq) if k == 'c']
        lastatt = max(g for g, (k, i) in enumerate(seq) if k != 'c')
        sts = []
        if hassm:
            sm, tail = softmax_stream(j)
            if j == 16:
                f, g = first_max(16)
                q0 = min(gi for gi, (k, i) in enumerate(seq) if k == 'qk')
                a_ = rl_items(L1) + f; b_ = g + sm + tail
                sts.append(Strm(a_ + b_, 0, n, hi=[q0 - 2] * len(a_) + [n] * len(b_)))
            else:
                lo = [0] * (len(sm) + len(tail))
                if len(tail) > 1:
                    lo[-2] = lastatt
                sts.append(Strm(sm + tail, 0, n, lo=lo))
        its = []; lo = []
        for gi, (k, i) in enumerate(seq):
            g = min(max(gi + RLAG, bpos if j % 2 == 0 else 0), n - 1)
            r = []
            if k == 'qk' and j + 2 < 32: r = rd_k(j + 2, i)
            if k == 'pv' and j < 32: r = rd_v(j, i, pv_order(j))
            its += r; lo += [g] * len(r)
        sts.append(Strm(its, lo=lo, asap=True))
        if j == 0:
            sts.append(Strm([x for f in range(8) for x in rd_v(0, f, STD)], bpos, n))
        sts.append(cread_stream(rd, cpos, bpos, newt, m0))
        if j in EPI:
            sts.append(Strm([x for fr in EPI[j] for x in epi_items(0, fr, opt.get('epk', False))], 8 if j == 16 else 0, n))
        if j == opt.get('osetup', 15):
            assert not [x for x in plan['ld'].get(('s', j), []) if x[0] in 'ueapcyz']
            sts.append(Strm(oproj_setup(), 0, n))
        if j == 15: sts.append(Strm(oproj_setup2(), 0, n))
        if j == 14:
            assert CS['nm'] == len(CS['fr'])
            sts.append(Strm(cvt_q(QACC), (cpos[-1] if cpos else -1) + 3, n))
        if j == 30:
            fixed.setdefault(0, []).extend(ubase_setup())
        if j % 2: bpos = -1
        g0, g1 = plan.get('span', {}).get(j, (bpos + 1, n))
        its, lo = items_lo(plan['ld'].get(('s', j), []))
        sts.append(Strm(its, max(g0, bpos + 1), min(g1, n), lo=lo))
        if j == 32:
            put(rl_items(L2))
            pv = [g for g, (k, i) in enumerate(seq) if k == 'pv']
            its = []; lo = []
            for t in range(4):
                e = epi_items(1, 2*t, opt.get('epk', False)) + epi_items(1, 2*t+1, opt.get('epk', False))
                its += e; lo += [min(pv[2*t+1] + 2, n - 1)] * len(e)
            sts.append(Strm(its, lo=lo, asap=True))
        schedule(mf, sts, fixed)
        stamp(f's{j}', 1 if j in (15, 31) else 2)
    import copy
    fronts = opt['fronts']; JOIN = opt.get('join', 15); back = opt['back']
    def front(plan, var):
        cur['plan'] = plan; cur['var'] = var
        p0(plan)
        for j in range(JOIN): step(j, plan)
        cur['plan'] = None; cur['var'] = ''
    if len(fronts) == 1:
        front(fronts[0], '')
    else:
        E(f"s_bitcmp1_b32 s2, {opt.get('pbit', 3)}")
        E("s_cbranch_scc1 K1_P0B")
        save = (copy.deepcopy(st), list(E.vm), list(E.lgkm), nst[0], list(stn))
        front(fronts[0], 'a')
        endA = (copy.deepcopy(st), [t for t, d in E.vm], list(stn))
        E.wait_lgkm(0)
        E("s_branch K1_P0J")
        E.label("K1_P0B")
        st.clear(); st.update(copy.deepcopy(save[0])); E.vm = list(save[1]); E.lgkm = list(save[2]); nst[0] = save[3]; stn[:] = save[4]
        front(fronts[1], 'b')
        E.wait_lgkm(0)
        E.label("K1_P0J")
        E.nop(12)
        A_, B_ = endA[1], [t for t, d in E.vm]
        n = min(len(A_), len(B_))
        assert A_[len(A_)-n:] == B_[len(B_)-n:], (A_, B_)
        if len(A_) > len(B_): E.vm = [(t, set()) for t in A_]
        assert endA[2] == stn
        SA = endA[0]
        assert SA['issued'] == st['issued'], (SA['issued'] ^ st['issued'])
        assert SA['epoch'] == st['epoch']
        for p in set(SA['live']) | set(st['live']):
            full = lambda s_: s_['nread'].get(p, 0) == NREADS[p[0]]
            assert SA['nread'].get(p, 0) == st['nread'].get(p, 0), p
            if not full(st) or SA['lastread'][p] == SA['epoch'] or st['lastread'][p] == st['epoch']:
                assert p in SA['live'] and p in st['live'] and SA['addr'][p] == st['addr'][p], p
                if p in st['lastread']: st['lastread'][p] = max(st['lastread'][p], SA['lastread'][p])
        st['visible'] &= SA['visible']
    back = opt['back']
    cur['plan'] = back
    for j in range(JOIN, 33): step(j, back)
    cur['plan'] = None; cur['j'] = 33
    PREF['u'] = opt.get('tailu', [7, 8, 9, 0, 1, 2, 3, 4, 5, 6]); PREF['e'] = opt.get('taile', [4, 5, 6, 7, 8, 9, 2, 3])
    ops = opt['tail']
    pq = sorted((1, 2, 3, 4), key=last_of)
    PLAG = opt.get('plag', 2)
    for oi, op in enumerate(ops):
        if op[0] == 'mf':
            cm = op[1] if op[1] >= 0 else len(CS['fr']) - CS['nm'] + op[1] + 1
            ra = 8
            while ra > 0 and any(t not in st['visible'] for t in cs_tiles(CS['nm'] + cm + ra)): ra -= 1
            if CS['nr'] < min(CS['nm'] + 2, len(CS['fr'])):
                _, rd, _ = cs_take(0, NWF)
                for r in rd: put(r[1])
            mf, rd, m0 = cs_take(cm, ra)
            def cnt(m):
                def g(): m(); mfp[0] += 1
                return g
            mfp[0] = m0
            mf = [cnt(m) for m in mf]
            sts = [cread_stream(rd, list(range(cm)), 0, (), m0)]
            kw = op[-1] if isinstance(op[-1], dict) else {}
            for l_ in op[2:]:
                if isinstance(l_, dict): continue
                its, lo = items_lo(l_)
                sts.append(Strm(its, lo=lo, asap=kw.get('asap', False)))
            its = []; lo = []
            while pq and last_of(pq[0]) + PLAG < m0 + cm - kw.get('pmargin', 3) and not kw.get('nops'):
                t = pq.pop(0)
                e = pstore(t); its += e; lo += [max(kw.get('plo', 0), last_of(t) + PLAG - m0)] * len(e)
            sts.append(Strm(its, lo=lo, asap=True))
            schedule(mf, sts, cap0=kw.get('cap'))
        elif op[0] == 'bar':
            nx = 0
            for o2 in ops[oi + 1:]:
                if o2[0] == 'bar': break
                if o2[0] == 'mf': nx = max(nx + o2[1], 0) if o2[1] >= 0 else len(CS['fr']) - CS['nm'] + o2[1] + 1
            need = [t for t in cs_tiles(CS['nm'] + nx) if t not in st['visible']]
            assert all(t in st['issued'] for t in need), need
            barrier(*op[1:], *need)
        elif op[0] == 'T':
            T2 = op[1]; m0 = CS['nm']; cm = len(CS['fr']) - m0
            bars = sorted(T2['bars'])
            pos = {it[0]: it[1] + 3 * it[2] for l_ in T2['st'] for it in l_}
            vis = {}; btags = {b: [] for b in bars}
            for i in range(CS['nr'], len(CS['fr'])):
                tl_ = CS['fr'][i][0]
                if tl_ in vis or tl_ in st['visible']: continue
                c_ = [b for b in bars if b < i - m0 and b > pos.get(tl_, -2)]
                assert c_, tl_
                c2 = [b for b in c_ if b <= i - m0 - 3]
                vis[tl_] = c2[-1] if c2 else c_[0]
                btags[vis[tl_]].append(tl_)
            def bar_items(b):
                tags = list(btags[b]); f = []
                for u in T2['bars'][b]:
                    if isinstance(u, str): f.append((lambda u=u: stamp(u), 0)); continue
                    tags += {0: ['o0'], 1: ['o1'], 2: ['o0'], 3: ['a1', 'a2', 'a3']}[u]
                    f += publish(u)
                return [(lambda: barrier(*tags), 2)] + f
            for l_ in T2['st']:
                for it in l_:
                    if it[1] < -1: put(dma(it[0]))
            if -1 in bars: put(bar_items(-1))
            for l_ in T2['st']:
                for it in l_:
                    if it[1] == -1: put(dma(it[0]))
            if CS['nr'] < CS['nm'] + 2:
                ra = NWF
                while any(t not in st['visible'] for t in cs_tiles(CS['nm'] + ra)): ra -= 1
                _, rd, _ = cs_take(0, ra)
                for r in rd: put(r[1])
            mf, rd, m0 = cs_take(cm, 0)
            def cnt(m):
                def g(): m(); mfp[0] += 1
                return g
            mfp[0] = m0
            mf = [cnt(m) for m in mf]
            its = []; lo = []; hi = []
            for i, reads, after, tile in rd:
                g = max(after, 0, vis.get(tile, 0))
                assert i - m0 > g
                for x in reads: its.append(x); lo.append(g); hi.append(max(g, i - m0 - 3))
            sts = [Strm(its, lo=lo, asap=True, hi=hi)]
            for l_ in T2['st']:
                its = []; lo = []
                for nm, g, sp in l_:
                    if g < 0: continue
                    k_ = 0
                    for f in dma(nm):
                        its.append(f); lo.append(int(g + k_ * sp))
                        if f[1] >= DC: k_ += 1
                sts.append(Strm(its, lo=lo, asap=True))
            its = []; lo = []
            for t in pq:
                e = pstore(t); its += e; lo += [max(T2.get('plo', 0), last_of(t) + PLAG - m0)] * len(e)
            sts.append(Strm(its, lo=lo, asap=True, prio=20))
            fixed = {b: bar_items(b) for b in bars if b >= 0}
            for g, nm in T2.get('stamps', {}).items(): fixed.setdefault(g if g >= 0 else cm + g, []).append((lambda nm=nm: stamp(nm), 0))
            c8 = cm - T2.get('c8', 64)
            schedule(mf, sts, fixed, cap0=lambda g: 6 if g < c8 else T2.get('cap', 8))
        elif op[0] == 'pub': put(publish(op[1]))
        elif op[0] == 'ld': put(items(op[1]))
        elif op[0] == 'st': stamp(op[1])
        elif op[0] == 'fr':
            assert CS['nm'] == len(CS['fr']) and TS['sum']
            stamp('oend')
            TS['red'].add(0)
        elif op[0] == 'out':
            assert TS['red'] >= {0, 1, 2, 3}
            for h in range(2):
                for i in range(4): E(f"v_cvt_pk_bf16_f32 v{SUM+8*h+i}, v{SUM+8*h+2*i}, v{SUM+8*h+2*i+1}")
                E(f"buffer_store_dwordx4 v[{SUM+8*h}:{SUM+8*h+3}], v{DA}, s[{SD}:{SD+3}], 0 offen offset:{32*h} {opt.get('dpol', '')}", "d0")
            TS['red'].add(5)
        else: raise ValueError(op)
    assert TS['red'] == {0, 1, 2, 3, 4, 5}
    if opt.get('hook'): return E, None
    E.label("K1_FIN")
    if stamps:
        E.wait_vm(0, force=True)
        stamp('fin')
        E(f"""
        s_cmp_lg_u32 s35, 0
        s_cbranch_scc1 K1_END
        s_lshl_b32 s{sTMP}, s2, 7
        s_add_u32 s{sTMP}, s{sTMP}, 65536
        s_add_u32 s{SO}, s80, s{sTMP}
        s_addc_u32 s{SO+1}, s81, 0
        s_mov_b32 s{SO+2}, 128
        v_mov_b32 v1, 0
        """)
        for i in range(nst[0]):
            E(f"v_mov_b32 v2, s{STR[i]}")
            E(f"buffer_store_dword v2, v1, s[{SO}:{SO+3}], 0 offen offset:{4*i}")
            E.wait_vm(0)
    E.label("K1_END")
    E.label("K1_LAST")
    E("s_endpgm")
    for n, lab in stubs:
        E.label(f"K1_STUB_{n}")
        E.raw(f"    s_call_b64 s[{sRET}:{sRET+1}], {lab}")
        E.raw(f"    s_branch K1_BACK_{n}")
    for key, lab in rare.items():
        par, u, fix = key
        s = S[par]; sn = S[1 - par]; p = P[par]; L = L1 if u == 0 else L2
        Rr = Emit()
        Rr.label(lab)
        Rr.nop(16)
        for f in max_tree(s, LA, LB): Rr(f[0])
        Rr(f"v_max_f32 v{LA}, 0, v{LA}")
        Rr(f"v_sub_f32 v{LB}, 0, v{LA}")
        Rr(f"v_exp_f32 v{LB}, v{LB}")
        for i in range(16):
            Rr(f"v_sub_f32 v{s+i}, v{s+i}, v{LA}")
            Rr(f"v_sub_f32 v{NEG+i}, v{NEG+i}, v{LA}")
            if fix: Rr(f"v_sub_f32 v{sn+i}, v{sn+i}, v{LA}")
        Rr(f"v_mul_f32 v{L}, v{L}, v{LB}")
        for i in range(64):
            if u == 0:
                Rr(f"v_accvgpr_read_b32 v{T}, a{O1+i}")
                Rr(f"v_mul_f32 v{T}, v{T}, v{LB}")
                Rr(f"v_accvgpr_write_b32 a{O1+i}, v{T}")
            else:
                Rr(f"v_mul_f32 v{O2+i}, v{O2+i}, v{LB}")
        Rr(f"v_mov_b32 v{LA}, 0")
        for e in range(8):
            Rr(f"v_exp_f32 v{T}, v{s+2*e}")
            Rr(f"v_exp_f32 v{T+1}, v{s+2*e+1}")
            Rr(f"v_add_f32 v{LA}, v{LA}, v{T}")
            Rr(f"v_add_f32 v{LA}, v{LA}, v{T+1}")
            Rr(f"v_cvt_pk_bf16_f32 v{p+e}, v{T}, v{T+1}")
        Rr.nop(4)
        Rr(f"s_setpc_b64 s[{sRET}:{sRET+1}]")
        E.lines += Rr.lines
    return E, dict(nops=E.nops, waits=E.nwait, count=E.count, vgpr=va.n, nst=nst[0], stn=stn)

if __name__ == '__main__':
    pass
```

```python
from genk import *
ST2 = dict(stamps=0.5, stl=['start', 's15', 's19', 's23', 's27', 's29', 's31', 's32', 'm1', 'm2', 'm3', 'm4', 'm5', 'oend', 'hc3', 'fin'])
O = lambda a, b: [f'o{i}' for i in range(a, b)]
def mk(L, cm, tail, uorder, keep, **kw):
    fr = front_std(kvA)
    fr['ld'][('s', 14)] = L.get(14, [])
    ld = {('s', j): L.get(j, []) for j in range(15, 33)}
    back = dict(ld=ld, cm=cm, ustart=20, pref={24: dict(u=[7, 8, 0, 1, 2, 3]), 30: dict(u=[7, 8, 0, 1, 2, 3, 4, 5, 6], e=[4, 5, 6])}, btag=kw.pop('btag', {}))
    return dict(fronts=[fr], back=back, uorder=uorder, keep=list(keep), tail=tail, osetup=13, epk=True, **kw)
def fin(nk, g=(0, 0, 0)):
    return [('mf', -1, [f'g1@{nk-18}', 'g2', 'g3'], ['h4@6'], dict(cap=8)), ('fr',), ('ld', ['h1', 'h2', 'h3']), ('out',)]
def D1():
    L = {14: ['v9', 't0'], 15: ['k11'], 16: ['v10'], 17: ['k12'], 18: ['u0', 'e0'], 19: ['v11'], 20: ['k13', 'u1'], 21: ['v12'], 22: ['k14'], 23: ['v13'],
         24: ['k15'], 25: ['v14'], 26: ['v15'], 27: O(0, 4), 28: O(4, 8), 29: ['t1'], 30: ['u2'], 31: ['u3', 'u8'], 32: ['p0@4', 'u9', 'e1']}
    cm = {22: 6, 23: 6, 24: 6, 25: 6, 26: 6, 27: 6, 28: 4}
    keep = (6, 7, 10, 11, 12, 13, 14, 15)
    tail = [('ld', ['c0', 'a1']), ('bar',), ('mf', 40, ['ts', 'u4', 'u5', 'a2', 'p2', 'c2@36']), ('st', 'm1'), ('bar', 'o1'), ('pub', 1),
            ('mf', 40, ['a3', 'u6', 'u7', 'p1@30']), ('mf', 32, ['c1@4', 'a5', 'u10', 'u11']), ('st', 'm2'), ('bar', 'a3'), ('pub', 3),
            ('mf', 24, ['a6', 'u12', 'u13']), ('st', 'm3'), ('bar',), ('mf', 32, ['a7', 'u14', 'u15', 'p3', 'c3@30'], dict(nops=1)), ('st', 'm4'),
            ('bar',), ('mf', 24, ['z0']), ('bar',), ('mf', 24, ['g4'], dict(cap=8)), ('st', 'm5')] + fin(32)
    return mk(L, cm, tail, [0, 1, 8, 9, 2, 3, 4, 5, 6, 7, 10, 11, 12, 13, 14, 15], keep, pub=31, xbar={31: 2})
if __name__ == '__main__':
    build('z_b.s', dict(D1(), **ST2))
```

```python
from n2 import *
def mkT(L, cm, bars, ld, ld2, uorder, keep, plo=0, stamps=None, **kw):
    NT = 288 - sum(cm.values())
    T = dict(bars=bars, st=[ld, ld2], plo=plo, stamps=stamps or {40: 'm1', 100: 'm2', 160: 'm3', -4 * len(keep): 'm5'})
    tail = [('T', T), ('fr',), ('ld', ['h1', 'h2', 'h3']), ('out',)]
    return mk(L, cm, tail, uorder, keep, **kw)
def D2():
    L = {14: ['v9', 't0'], 15: ['k11'], 16: ['v10'], 17: ['k12'], 18: ['u0', 'e0'], 19: ['v11'], 20: ['k13', 'u1'], 21: ['v12'], 22: ['k14'], 23: ['v13'],
         24: ['k15'], 25: ['v14'], 26: ['v15'], 27: O(0, 4), 28: O(4, 8), 29: ['t1'], 30: [], 31: ['u8', 'u9'], 32: ['e1']}
    cm = {22: 6, 23: 6, 24: 6, 25: 6, 26: 6, 27: 6, 28: 4}
    keep = (6, 7, 10, 11, 12, 13, 14, 15)
    bars = {-1: [], 30: [1], 70: [], 105: [3], 130: [], 160: [], 185: []}
    ld = [('p0', -1, 1), ('u2', 0, 2), ('u3', 8, 2), ('c0', 16, 1), ('a1', 16, 1), ('a2', 32, 2), ('u4', 48, 2), ('u5', 56, 2), ('p1', 64, 1), ('a3', 65, 2), ('u6', 80, 1), ('u7', 84, 1), ('c1', 88, 1), ('a5', 88, 2),
          ('u10', 106, 2), ('u11', 114, 2), ('p2', 122, 1), ('a6', 123, 1), ('u12', 132, 2), ('u13', 140, 2), ('c2', 148, 1), ('p3', 148, 1), ('a7', 149, 1), ('u14', 162, 1), ('u15', 166, 1), ('c3', 170, 1),
          ('g4', 195, 1), ('g1', 230, 2), ('g2', 234, 2), ('g3', 240, 2)]
    ld2 = [('ts', 100, 1), ('z0', 150, 1), ('h4', 224, 1)]
    return mkT(L, cm, bars, ld, ld2, [0, 1, 8, 9, 2, 3, 4, 5, 6, 7, 10, 11, 12, 13, 14, 15], keep, plo=171, pub=31, xbar={31: 2})
if __name__ == '__main__':
    build('z_c.s', dict(D2(), **ST2))
```

```python
from n3 import *
ST3 = dict(stamps=0.5, stl=['start', 's15', 's17', 's19', 's21', 's23', 's25', 's27', 's29', 's31', 's32', 'm1', 'm2', 'm3', 'm4', 'm5', 'oend', 'hc3', 'fin'])
def E1(var=0):
    L = {14: ['v9', 't0'], 15: ['k11'], 16: ['v10'], 17: ['k12', 'u0'], 18: ['v11', 'e0'], 19: O(0, 4), 20: ['k13', 'u1'], 21: O(4, 8), 22: ['v12'], 23: ['k14'],
         24: ['v13', 'u2'], 25: ['k15', 'p0'], 26: ['v14', 'u3'], 27: ['t1', 'c0', 'u4'], 28: ['v15', 'u5'], 29: ['a1'], 30: ['u8', 'u9'], 31: ['e1', 'a2.0'], 32: []}
    cm = {j: 4 for j in range(20, 30)}
    cm.update({31: 8, 32: 8})
    keep = (6, 7, 10, 11, 12, 13, 14, 15)
    bars = {20: [1], 60: [], 92: [3], 116: [], 148: [], 172: []}
    ld = [('a2.1', -1, 1), ('u6', 21, 1), ('a3', 26, 1), ('u7', 36, 2), ('p1', 46, 1), ('c1', 62, 1), ('a5', 62, 1), ('u10', 72, 2), ('u11', 80, 2), ('p2', 93, 1), ('a6', 94, 1), ('u12', 103, 1), ('u13', 108, 1),
          ('c2', 117, 1), ('p3', 117, 1), ('a7', 118, 1), ('u14', 127, 2), ('u15', 135, 2), ('c3', 143, 1),
          ('g4', 190, 1), ('g1', 216, 2), ('g2', 220, 2), ('g3', 224, 2)]
    ld2 = [('ts', 40, 1), ('z0', 100, 1), ('h4', 212, 1)]
    return mkT(L, cm, bars, ld, ld2, [0, 1, 2, 3, 8, 9, 4, 5, 6, 7, 10, 11, 12, 13, 14, 15], keep, pub=24, stamps={24: 'm1', 64: 'm2', 120: 'm3', 176: 'm4', 200: 'm5'},
               btag={30: ['u3', 'u4', 'u5']})
if __name__ == '__main__':
    build('z_d.s', dict(E1(), **ST3))
```

```python
import re, sys, math, copy
TR = ('v_exp', 'v_rcp', 'v_log')
DEF = dict(La=0.24, q=4, B=0.5, B2=0.2, f=2.0, Lm=0.76, Lh=0.24, Ls=0.44, Lx=0.40, R=7.2, cap=8, lds=0.075, bar=0.03, skew=0.24, gskew=0.0, t0=1.2, minns=22.4, minns2=20, flag=0.4, lo=0, tau=1.0, f2=2.0)
def cls(tag):
    k = tag[0]
    if tag.startswith('ps'): return 's', (0.8 if tag == 'ps' else 1)
    if tag == 'g4': return 'x', 0.25
    if k == 'g': return 'x', 1
    if tag == 'd4': return 's', 0.25
    if k == 'd': return 's', 1
    if tag.startswith('pr'): return 'x', 0.6
    if tag.startswith(('pl', 'sn')): return 'x', 0
    if tag.startswith('fl'): return 's', 0
    if k in 'kv': return 'm', 1
    if k == 'o': return 's', 1
    if k == 't': return 'm', 36 * 128 / 1024
    if k == 'a': return ('x', 1) if tag[1] in '15' else ('a', 0)
    if k == 'x': return ('m', 1) if int(tag[1:]) < 2 else ('h', 0.03)
    if k == 'w': return ('m', 1) if int(tag[1:]) in (0, 9) else ('h', 0.02)
    if k in 'ue' and tag != 'e0' and (k == 'e' or int(tag[1:]) >= 8): return 'h', 0.125
    return 'h', 0
def parse(L):
    R = []
    def cyc(n):
        if R and R[-1][0] == 'c': R[-1] = ('c', R[-1][1] + n)
        else: R.append(('c', n))
    skip = False
    for l in [x for y in L for x in y.split('\n')]:
        l = l.strip()
        if l == ';[': skip = True
        if l == ';]': skip = False
        if skip: continue
        if l.startswith(';@'): R.append(('@', l[2:].strip())); continue
        if not l or l[0] == ';' or l[-1] == ':': continue
        op = l.split(None, 1)[0]
        if op == 's_endpgm': break
        if op in ('s_memtime', 's_memrealtime'): cyc(80)
        elif op.startswith('v_mfma'): R.append(('m',))
        elif op.startswith(('buffer_', 'global_')):
            tag = l.split(';')[1].strip() if ';' in l else 'o'
            R.append(('v', tag, 'x4' in op) + cls(tag))
        elif op == 's_waitcnt':
            m = re.search(r'vmcnt\((\d+)\)', l)
            if m: R.append(('wv', int(m.group(1))))
            m = re.search(r'lgkmcnt\((\d+)\)', l)
            if m: R.append(('wl', int(m.group(1))))
        elif op.startswith('ds_'): R.append(('d',))
        elif op == 's_barrier': R.append(('b',))
        elif op == 's_cbranch_scc1' and ('K1_POLL' in l or 'K1_RETRY' in l): R.append(('p', l[-1] if 'POLL' in l else 'g' + l[-1]))
        elif op == 's_cbranch_scc0' and ('K1_PBACK' in l or 'K1_RBACK' in l): R.append(('p', l[-1] if 'PBACK' in l else 'g' + l[-1])); cyc(20)
        elif op == 's_nop': cyc(4 * (1 + int(l.split()[1]) // 4))
        elif op.startswith(TR): cyc(8)
        elif op.startswith('v_pk_'): cyc(12)
        else: cyc(4)
    return R
def load(fn):
    L = open(fn).read().split('\n')
    i0 = [i for i, l in enumerate(L) if l.endswith('_kernel:')][0]
    return parse(L[i0 + 1:])
def sim(fn, ext=None, state=None, partial=False, **kw):
    P = dict(DEF); P.update(kw)
    R = load(fn) if isinstance(fn, str) else fn
    cy = 1e-3 / P['f']
    if state is None: state = (P['t0'] - 0.25, 0.0, [], 0.0, 0.0, [], [], [], 'start', 0, [], [])
    t, mf, fifo, last, fab, lg, vm, st, cur, nm, starts, en = [list(x) if isinstance(x, list) else x for x in state]
    pubt = {}; stall = {}; pollok = {}
    def S(k, d):
        if d > 1e-6: stall.setdefault(cur, {}); stall[cur][k] = stall[cur].get(k, 0) + d
    mt = max(32 * cy, P['minns'] * 1e-3); q = int(P['q']); cap = P['cap'] + 1e-9
    for r in R:
        k = r[0]
        if k == 'c': t += r[1] * cy
        elif k == 'd': lg.append(t + P['lds']); t += 4 * cy
        elif k == 'm':
            if mf > t: t = mf
            mf = t + mt; t += 8 * cy; nm += 1; en.append((t, 0.012))
        elif k == 'wl':
            n = r[1]
            if len(lg) > n:
                t = max(t, lg[len(lg) - n - 1]); lg = lg[len(lg) - n:] if n else []
            t += 4 * cy
        elif k == 'v':
            _, tag, x4, lc, sh = r
            w = 1 if x4 else (4.5 if tag[0] == 't' else 0.1)
            if len(starts) >= q and starts[-q] > t:
                S('blk:' + tag, starts[-q] - max(t, mf - 24 * cy)); t = starts[-q]
            s0 = max(t, (starts[-1] + 64 * cy * min(w, 1)) if starts else 0)
            while fifo and (fifo[0][0] <= s0): fifo.pop(0)
            while sum(x[1] for x in fifo) + w > cap:
                s0 = max(s0, fifo[0][0]); fifo.pop(0)
            starts.append(s0)
            lat = P['L' + lc]
            d = s0 + lat
            if sh:
                f0 = max(fab, s0 - P['B']); fab = f0 + sh * 4096 * 256 / P['R'] * 1e-6
                if lc != 'h': d = max(d, fab + lat - P['B2'])
                [en.append((max(fab, s0) - (fab - f0) * i / 4, sh * 0.377 / 16)) for i in range(4)]
            d = max(d, last + (64 * cy if x4 else 8 * cy * w))
            last = d; fifo.append((d, w)); vm.append((d, tag))
            if tag.startswith('fl'): pubt[tag[2]] = s0
            elif tag.startswith('pl'): pollok[tag[2]] = s0
            elif tag.startswith('ps'): pubt['g' + tag[2:]] = s0
            elif tag[0] == 'g': pollok.setdefault(tag, s0)
            t += 4 * cy
        elif k == 'wv':
            n = r[1]
            if len(vm) > n:
                d, tag = vm[len(vm) - n - 1]
                S('vm:' + tag, d - max(t, mf - 24 * cy)); t = max(t, d); vm = vm[len(vm) - n:] if n else []
            t += 4 * cy
        elif k == 'b': t += P['bar']
        elif k == 'p':
            u = r[1]
            vis = pubt[u] + P['flag'] + (P['skew'] if u[0] != 'g' else P['gskew'])
            if ext: vis = max(vis, ext[u] + P['flag'])
            if pollok[u] < vis:
                t1 = max(t, last, vis + 0.5 * P['Lh'])
                if u[0] == 'g':
                    for x in pollok:
                        if x[0] == 'g' and u != 'g4': pollok[x] = t1
                t1 += P['Lx']
                S('poll' + u, t1 - t); t = t1; vm = []; fifo = []; last = t
        elif k == '@':
            nmn = r[1]
            st.append((nmn, t, nm))
            if nmn == 's15': mt = max(32 * cy, P['minns2'] * 1e-3)
            if nmn == 's32': cy = 1e-3 / P['f2']
            if nmn == 'fin': break
            if not nmn.startswith(('B', 'pb', 'pw', 'pc', 'i', 'hw')): cur = nmn
    if partial: return (t, mf, fifo, last, fab, lg, vm, st, cur, nm, starts, en)
    st.append(('end', max(t, last), nm))
    en.sort(); ys = []; i0 = 0; y = 0
    for tt, e in en:
        y += e
        while en[i0][0] <= tt - P['tau']: y -= en[i0][1]; i0 += 1
        ys.append((tt, y / P['tau']))
    stall['y'] = ys; stall['pub'] = pubt
    return st, stall
if __name__ == '__main__':
    KW = {a.split('=')[0]: float(a.split('=')[1]) for a in sys.argv[1:] if '=' in a}
    for fn in [a for a in sys.argv[1:] if '=' not in a]:
        st, stall = sim(fn, **KW)
        print(fn)
        prev = 'start'; pt = 0; pn = 0
        for n, t, nm in st:
            if n.startswith(('B', 'pb', 'pw', 'pc', 'i', 'hw')): continue
            if t >= KW.get('lo', 0): print(f"  {n:6s} {t:6.2f} +{t-pt:4.2f} mf{nm-pn:3d} y{max([y for a, y in stall['y'] if pt <= a <= t], default=0):.3f}", ' '.join(f"{k}={v:.2f}" for k, v in stall.get(prev, {}).items() if v > 0.02))
            prev = n; pt = t; pn = nm
```

```python
import sys, copy, random, json, os, time
from multiprocessing import Pool
from n3 import *
import h3, sim
def tocfg(p):
    n0 = sum(p['cm'].values())
    rel = lambda g: max(g - n0, -1)
    bars = {}
    for g, u in p['bars']:
        bars.setdefault(rel(g), []); bars[rel(g)] += u
    L = {j: [y for x in l for y in (O(*{'oa': (0, 2), 'ob': (2, 4), 'oc': (4, 6), 'od': (6, 8)}[x]) if x in ('oa', 'ob', 'oc', 'od') else [x])] for j, l in p['L'].items()}
    kw = dict(p.get('kw', {}))
    if p['pub'] % 2 or p['pub'] == 32: kw['xbar'] = {p['pub']: p.get('xpos', 2)}
    st = {rel(g): n for g, n in p.get('stamps', {80: 'm1', 120: 'm2', 176: 'm3', 232: 'm4', 256: 'm5'}).items() if rel(g) >= 0}
    return mkT(L, dict(p['cm']), bars, [(a, rel(g), s) for a, g, s in p['ld']], [(a, rel(g), s) for a, g, s in p['ld2']], p['uorder'], p['keep'], pub=p['pub'], stamps=st,
               btag=p.get('btag', {}), **kw)
YM = 1.08
def score(R, S0):
    st, stall = sim.sim(R, state=S0, skew=-5, gskew=-5, Lm=1.0, **SK)
    T = [st[-1][1]]
    s2, sl = sim.sim(R, state=S0, skew=0, gskew=0, ext=stall['pub'], **SK)
    T.append(s2[-1][1])
    s3, _ = sim.sim(R, state=S0, skew=0, gskew=0, Lm=0.95, ext=stall['pub'], **SK)
    T.append(s3[-1][1])
    t16 = [t for n, t, _ in s2 if n == 's16'][0]
    Y = [(t, v) for t, v in sl['y'] if t > t16 and t < st[-1][1] - 1.5]
    y = max(v for t, v in Y)
    ex = sum((b[0] - a[0]) * max(0, a[1] - YM) for a, b in zip(Y, Y[1:]))
    return max(T) + 0.2 * sum(T) / len(T) + 30 * ex, ([round(x, 2) for x in T], round(y, 3))
SK = dict(f2=1.8, tau=1.5)
def mut(p, R):
    p = copy.deepcopy(p)
    for _ in range(R.choice([1, 1, 2, 3])):
        k = R.random()
        L = p['L']
        if k < 0.3:
            j = R.choice([j for j in L if L[j]])
            if R.random() < 0.5:
                if j < 32: L[j + 1].insert(0, L[j].pop())
                elif L[j][-1][0] in 'uaepc': p['ld'].insert(0, (L[j].pop(), 0, 1))
            elif j > 14: L[j - 1].append(L[j].pop(0))
        elif k < 0.42:
            seq = [(j, i) for j in sorted(L) for i in range(len(L[j]))]
            a = R.randrange(len(seq) - 1); (j, i), (j2, i2) = seq[a], seq[a + 1]
            L[j][i], L[j2][i2] = L[j2][i2], L[j][i]
        elif k < 0.45:
            if p['ld'][0][0][0] in 'uaepc': L[32].append(p['ld'].pop(0)[0])
        elif k < 0.57:
            j = R.randrange(20, 33); p['cm'][j] = max(0, p['cm'].get(j, 0) + R.choice([-4, -2, -1, 1, 2, 4]))
            if R.random() < 0.5:
                j = R.randrange(20, 33); p['cm'][j] = max(0, p['cm'].get(j, 0) + R.choice([-2, 2]))
        elif k < 0.78:
            l = p['ld'] if R.random() < 0.9 else p['ld2']
            i = R.randrange(len(l)); a, g, s = l[i]
            d = R.choice([-8, -4, -2, -1, 1, 2, 4, 8])
            if R.random() < 0.3:
                for i2 in range(i, min(len(l), i + R.randrange(2, 6))): l[i2] = (l[i2][0], l[i2][1] + d, l[i2][2])
            elif R.random() < 0.2: l[i] = (a, g, R.choice([1, 1.5, 2, 3]))
            else: l[i] = (a, g + d, s)
        elif k < 0.86:
            l = p['ld']; i = R.randrange(len(l) - 1)
            l[i], l[i + 1] = (l[i + 1][0], l[i][1], l[i + 1][2]), (l[i][0], l[i + 1][1], l[i][2])
        elif k < 0.96:
            i = R.randrange(len(p['bars'])); g, u = p['bars'][i]
            if not u and R.random() < 0.15: p['bars'].pop(i)
            else: p['bars'][i] = (g + R.choice([-8, -4, -2, -1, 1, 2, 4, 8]), u)
        elif k < 0.98: p['bars'].append((R.randrange(60, 250), []))
        else: p['pub'] += R.choice([-1, 1])
    return p
def search(p0, name, secs, seed=0):
    import pickle
    R = random.Random(seed)
    W = {}
    def hook(opt, plan, E):
        n0 = len(E.lines)
        S0 = sim.sim(sim.parse(E.lines), partial=True, **SK)
        p = p0; best = None; t0 = time.time(); n = 0; cur = None
        while time.time() - t0 < secs:
            c = mut(p, R) if best else p
            r, w = os.pipe()
            if os.fork() == 0:
                os.close(r)
                o = tocfg(c)
                plan['ld'][('s', 14)] = o['fronts'][0]['ld'][('s', 14)]
                opt.pop('xbar', None)
                opt.update({k: v for k, v in o.items() if k != 'fronts'})
                W.update(w=w, n0=n0, S0=S0)
                return
            os.close(w)
            d = os.read(r, 65536); os.close(r); os.wait(); n += 1
            if not d: continue
            res = pickle.loads(d)
            if cur is None or res[0] <= cur + TEMP * R.expovariate(1) * max(0, 1 - (time.time() - t0) / secs):
                cur = res[0]; p = c
                if best is None or res[0] < best[0]:
                    if best is None or res[0] < best[0] - 0.01: print(n, res, flush=True)
                    best = res; open(name, 'w').write(repr(p))
        print('done', n, best)
        os._exit(0)
    try:
        E, _ = h3.gen(dict(copy.deepcopy(tocfg(p0)), hook=hook))
        os.write(W['w'], pickle.dumps(score(sim.parse(E.lines[W['n0']:]), W['S0'])))
    except Exception as e:
        pass
    os._exit(0)
TEMP = 0.03
P1 = dict(L={14: ['v9', 't0'], 15: ['k11'], 16: ['v10'], 17: ['k12', 'u0'], 18: ['v11', 'e0'], 19: ['oa', 'ob'], 20: ['k13', 'u1'], 21: ['oc', 'od'], 22: ['v12'], 23: ['k14'],
         24: ['v13', 'u2'], 25: ['k15', 'p0'], 26: ['v14', 'u3'], 27: ['t1', 'c0', 'u4'], 28: ['v15', 'u5'], 29: ['a1.0', 'a1.1'], 30: ['u8', 'u9'], 31: ['e1', 'a2.0'], 32: []},
    cm=dict({j: 4 for j in range(20, 30)}, **{31: 8, 32: 8}) if False else {**{j: 4 for j in range(20, 30)}, 31: 8, 32: 8},
    keep=[6, 7, 10, 11, 12, 13, 14, 15], uorder=[0, 1, 2, 3, 8, 9, 4, 5, 6, 7, 10, 11, 12, 13, 14, 15], pub=24,
    bars=[(56 + g, u) for g, u in {20: [1], 60: [], 92: [3], 116: [], 148: [], 172: []}.items()],
    ld=[(a, 56 + g, s) for a, g, s in [('a2.1', -1, 1), ('u6', 21, 1), ('a3.0', 26, 1), ('a3.1', 30, 1), ('u7', 36, 2), ('p1', 46, 1), ('c1', 62, 1), ('a5.0', 62, 1), ('a5.1', 66, 1), ('u10', 72, 2), ('u11', 80, 2), ('p2', 93, 1),
          ('a6.0', 94, 1), ('a6.1', 98, 1), ('u12', 103, 1), ('u13', 108, 1),
          ('c2', 117, 1), ('p3', 117, 1), ('a7.0', 118, 1), ('a7.1', 122, 1), ('u14', 127, 2), ('u15', 135, 2), ('c3', 143, 1),
          ('g4', 180, 1), ('g1', 212, 1), ('g2', 216, 1), ('g3', 220, 1)]],
    ld2=[('ts', 60, 1), ('z0', 160, 1), ('h4', 270, 1)], btag={30: ['u3']})
P2 = copy.deepcopy(P1)
P2.update(L={14: ['v9', 't0'], 15: ['k11'], 16: ['v10'], 17: ['k12'], 18: ['v11', 'u0', 'e0', 'u1'], 19: ['k13'], 20: ['v12'], 21: ['k14'], 22: ['v13', 'oa'], 23: ['k15', 'ob'],
         24: ['v14', 'oc'], 25: ['od', 't1'], 26: ['v15'], 27: ['u2', 'u3'], 28: ['u4', 'u5'], 29: ['p0'], 30: ['c0', 'a1.0', 'a1.1'], 31: ['u8', 'u9'], 32: ['e1']},
    cm={22: 4, 23: 4, 24: 6, 25: 6, 26: 4, 27: 6, 28: 6, 29: 4, 32: 4}, pub=27, btag={30: ['u2', 'u3']})
P2['ld'] = [('a2.0', 40, 1)] + P2['ld']
P3 = eval(open('p3.txt').read())
P3.update(L={14: ['v9', 't0'], 15: ['k11'], 16: ['v10'], 17: ['k12'], 18: ['v11'], 19: ['k13', 'u0', 'e0'], 20: ['v12', 'oa'], 21: ['k14', 'ob'], 22: ['v13', 'oc', 'u1'], 23: ['k15', 'od'],
         24: ['v14'], 25: ['t1', 'u2'], 26: ['v15'], 27: ['u3', 'p0'], 28: ['u4', 'u5'], 29: ['c0', 'a1.0'], 30: ['a1.1', 'u8', 'a2.0'], 31: ['u6', 'e1'], 32: ['u9']},
    cm={22: 6, 23: 6, 24: 2, 25: 4, 26: 2, 27: 6, 28: 8, 29: 6, 30: 4, 31: 10, 32: 10}, pub=26, btag={30: ['u2', 'u3']})
if __name__ == '__main__':
    p = eval(open(sys.argv[1]).read()) if os.path.exists(sys.argv[1]) else globals()[sys.argv[1]]
    search(p, sys.argv[2], float(sys.argv[3]), int(sys.argv[4]) if len(sys.argv) > 4 else 0)
```

```python
from srch import *
from n4 import ST3
LREF = {14: ['v9', 'k11', 't0'], 15: [], 16: ['v10', 'u0'], 17: ['k12', 'e0'], 18: ['v11', 'u1'], 19: ['k13', 't1'], 20: ['v12'], 21: ['k14', 'oa'], 22: ['v13', 'ob'], 23: ['k15', 'oc'],
        24: ['v14', 'od', 'u2'], 25: [], 26: ['v15', 'u3', 'u4'], 27: ['p0'], 28: ['u5', 'u6'], 29: ['c0', 'a1', 'p2'], 30: ['u8', 'u9'], 31: ['a2', 'c2'], 32: []}
CMREF = {20: 4, 21: 10, 22: 10, 23: 10, 24: 6, 30: 4, 31: 10, 32: 8}
def H1(L=LREF, cm=CMREF, pub=26, g=(204, 208, 216), b=(20, 55, 95, 130)):
    o = 62
    return dict(L=copy.deepcopy(L), cm=dict(cm), pub=pub, keep=[6, 7, 10, 11, 12, 13, 14, 15], uorder=[0, 1, 2, 3, 4, 5, 8, 9, 6, 7, 10, 11, 12, 13, 14, 15],
        bars=[(o + b[0], [1]), (o + b[1], [3]), (o + b[2], []), (o + b[3], [])],
        ld=[(a, o + x, s) for a, x, s in [('e1', -1, 1), ('a3', 2, 2), ('u7', 22, 1.5), ('u10', 29, 1.5), ('u11', 36, 1.5), ('u12', 43, 1.5), ('p1', 56, 1), ('u13', 58, 2), ('u14', 66, 2), ('c1', 76, 1), ('a5', 76, 1.5),
                                          ('u15', 97, 1.5), ('p3', 104, 1), ('a6', 105, 1.5), ('a7', 120, 1.5), ('c3', 134, 1), ('g4', 168, 1), ('g1', g[0], 1), ('g2', g[1], 1), ('g3', g[2], 1)]],
        ld2=[('ts', o + 88, 1), ('z0', o + 136, 1), ('h4', o + 202, 1)], btag={30: ['u3', 'u4', 'u5', 'u6']},
        stamps={o + 22: 'm1', o + 58: 'm2', o + 114: 'm3', o + 170: 'm4', o + 194: 'm5'})
if __name__ == '__main__':
    build('z_k.s', dict(tocfg(H1()), **ST3))
    build('z_k0.s', tocfg(H1()))
    ST5 = dict(stamps=0.5, stl=['start', 's15', 's31', 's32', 'm1', 'm2', 'pw1', 'pc1', 'm3', 'm4', 'm5', 'hw4', 'hc4', 'oend', 'hc1', 'hc2', 'hc3', 'fin'])
    build('z_l.s', dict(tocfg(H1()), **ST5))
```

```python
from emit import *
import math, struct

def f32bits(x):
    return struct.unpack('<I', struct.pack('<f', x))[0]

O_BASE = 1 << 20
SL = 16384

class Alloc:
    def __init__(self, start): self.n = start
    def get(self, k=1, al=1):
        self.n = (self.n + al - 1) // al * al
        r = self.n; self.n += k; return r

def gen(opt):
    stamps = opt.get('stamps', False)
    kvpol = opt.get('kvpol', 'nt')
    qpol = opt.get('qpol', '')
    thresh = opt.get('thresh', 4096.0)
    DC = opt.get('dmacost', 5)
    DC2 = opt.get('dc2')
    if DC2 is not None: DC = 5.01
    GORD = opt.get('gord', 0)
    def ec(f): return DC2 if (DC2 is not None and f[1] == DC) else f[1]
    def kind(f):
        if f[1] == DC: return 'm'
        if callable(f[0]): return 'd' if f[0].__name__ == 'f_ds' else ('z' if f[1] == 0 else 's' if f[0].__name__ in ('first', '<lambda>', 'br') else 'x')
        t = f[0].strip()
        if '\n' in t: return 'x'
        return 'e' if t.startswith(('v_exp', 'v_rcp')) else 'v' if t.startswith('v_') else 'd' if t.startswith('ds_') else 's' if t.startswith('s_') else 'm'
    def gorder(sel):
        out = []; prev = 'M'; npos = 0
        sel = list(sel)
        while sel:
            seen = set(); heads = []
            for i, (q, f) in enumerate(sel):
                if q not in seen: seen.add(q); heads.append(i)
            if GORD == 1: pref = 'zdsxevm'
            elif GORD == 2: pref = 'zdsxevm' if npos < 2 else ('zdsmxve' if prev == 'e' else 'zexvdsm')
            elif GORD == 3: pref = 'zdsxevm' if npos < 1 else ('zdsmxve' if prev == 'e' else 'zexvdsm')
            elif GORD == 4: pref = 'zdsxvem'
            elif GORD == 5: pref = 'zdsmxev'
            elif GORD == 6: pref = 'zexvdsm'
            elif GORD == 7: pref = 'zmdsxev'
            i = min(heads, key=lambda i: pref.index(kind(sel[i][1])))
            q, f = sel.pop(i); out.append(f)
            if kind(f) != 'z': prev = kind(f); npos += 1
        return out
    E = Emit()
    va = Alloc(1)
    KA = va.get(8); VA = va.get(4); WA = va.get(4); KD = va.get(4); VD = va.get(1); WD = va.get(4); OD = 0
    RL = va.get(2, 2)
    L1 = va.get(1); L2 = va.get(1); LA = va.get(1); LB = va.get(1)
    XA = va.get(4, 4); XD = va.get(4, 4)
    S = [va.get(16, 4), va.get(16, 4)]
    NEG = va.get(16, 4)
    P = [va.get(8, 4), va.get(8, 4)]
    T = va.get(8, 4)
    WFV = va.get(8, 4)
    EP = va.get(8, 4)
    QACC = va.get(64, 4)
    Q = va.get(32, 4)
    KF = va.get(32, 4)
    assert va.n <= 256, va.n
    X = 0; O1 = 144; VF = 208; WFA = 240
    WF = [('a', WFA + 4 * i) for i in range(4)] + [('v', WFV), ('v', WFV + 4), ('v', EP), ('v', EP + 4)]
    NWF = len(WF)
    ACC = 0
    assert Q == QACC + 64
    O2 = QACC + 32
    OF = {0: ('a', 80), 1: ('a', 112), 2: ('a', 144), 3: ('a', 176), 4: ('v', QACC), 5: ('a', 80), 6: ('v', KF), 7: ('a', VF)}
    OF.update(opt.get('of2', {}))
    UD = WD; PV_ = XD; PD = XD + 1; ED = XD + 2; EA = XD + 3
    SX, SW, SK, SV, SO = 4, 8, 12, 16, 20
    SWO, SOR, SPL = SX, SW, 68
    SG, SD = SV, SK
    sW4K, sXC, sWC, sOFF, sTH, sRET, sSC, sTMP = 24, 25, 26, 27, 28, 30, 32, 34
    sR1, sA, sB, sN, sM, sHG, sE, sMK = 92, 93, 94, 95, 96, 97, 98, 99
    nst = [0]
    STR = list(range(40, 64)) + list(range(72, 80))
    stn = []
    def stamp(name='', lvl=1):
        E.raw(f"    ;@ {name}")
        if stamps and (lvl <= stamps or name in opt.get('stl', ())):
            for ck in (['s_memtime', 's_memrealtime'] if opt.get('clk') == 'both' else [opt.get('clk', 's_memrealtime')]):
                E(f"{ck} s[100:101]")
                E.raw("    s_waitcnt lgkmcnt(0)"); E.lgkm = []
                E(f"s_mov_b32 s{STR[nst[0]]}, s100")
                nst[0] += 1; stn.append(name)
    c = math.log2(math.e) / math.sqrt(128.0)
    ADJ = opt.get('adj', 0)
    HU = 1 if ADJ else 16

    PREF = dict(k=[0, 1, 2, 3], v=[4, 5, 6], w=[7, 8, 9, 6], x=[5, 6], u=[7, 8, 9], e=[9, 8, 7])
    PREF.update(opt.get('pref', {}))
    st = dict(epoch=0, live=[], lastread={}, nread={}, visible=set(), issued=set(), addr={})
    NREADS = {'x': 4, 'w': 32, 'k': 16, 'v': 32, 'u': 32, 'e': 32}
    cur = dict(plan=None, var='')
    def size(item): return SL
    def overl(a, sz): return [p for p in st['live'] if st['addr'][p] < a + sz and a < st['addr'][p] + size(p)]
    def dead(p, item):
        if st['nread'].get(p, 0) != NREADS[p[0]]: return False
        if p[0] == 'x': return True
        return st['epoch'] > st['lastread'][p]
    def on_issue(item):
        ov = dict(opt.get('slotmap', {})); ov.update((cur['plan'] or {}).get('slotmap', {}))
        cands = [ov[item]] if item in ov else PREF[item[0]]
        sz = size(item)
        fr = [c_ for c_ in cands if all(dead(p, item) for p in overl(c_ * sz, sz))]
        assert fr, (item, cands, [(p, st['addr'][p]) for p in st['live']])
        a = fr[0] * sz
        for p in overl(a, sz):
            if p[0] == 'x':
                E.wait_lgkm(len(E.lgkm) - 1 - max([i for i, d in enumerate(E.lgkm) if ('tag', p) in d], default=-1))
            st['live'].remove(p)
        st['live'].append(item); st['issued'].add(item); st['addr'][item] = a
        return a
    def on_read(item):
        assert item in st['live'], item
        if item[0] == 'x':
            E.wait_tag(item)
        else:
            assert item in st['visible'], item
        st['nread'][item] = st['nread'].get(item, 0) + 1
        st['lastread'][item] = st['epoch']
        return st['addr'][item]
    def lds_read(fn, item):
        def f_ds():
            a = on_read(item)
            t = fn(a)
            off = int(t.split('offset:')[1]); assert 0 <= off < 65536, t
            E(t)
            E.lgkm[-1].add(('tag', item))
        return (f_ds, opt.get('dscost', 1))
    BARVM = [[], set()]
    TS = dict(ok=False, rel=None, done=set(), sum=False, red=set())
    def barrier(*tags):
        for _ in range(opt.get('tc', '').count(chr(ord('A') + st['epoch']))): E.raw("    ;@ tcall")
        E.wait_lgkm(0)
        stamp(f"B{st['epoch']}a", 3)
        if '*' in tags: E.wait_vm(0, force=True); TS['vm0'] = st['epoch'] + 1
        E.wait_tag(*tags)
        stamp(f"B{st['epoch']}b", 3)
        E("s_barrier")
        stamp(f"B{st['epoch']}c", 3)
        st['epoch'] += 1
        BARVM[0] = list(E.vm); BARVM[1] = set(st['issued'])
        pend = {t for t, d in E.vm}
        for it in st['issued']:
            if it not in pend: st['visible'].add(it)
    def put(fl):
        for f in fl:
            if callable(f[0]): f[0]()
            else: E(f[0], f[2] if len(f) > 2 else None)

    E(f"""
    s_cmp_ge_u32 s2, 256
    s_cbranch_scc1 K1_END
    s_load_dwordx8 s[64:71], s[0:1], 0
    s_load_dwordx8 s[72:79], s[0:1], 40
    s_load_dwordx2 s[80:81], s[0:1], 96
    s_load_dwordx2 s[84:85], s[0:1], 32
    s_load_dwordx2 s[86:87], s[0:1], 72
    s_load_dwordx4 s[88:91], s[0:1], 80
    """)
    stamp('start')
    if opt.get('cpf'):
        E.raw("    s_getpc_b64 s[100:101]")
        E.label("K1_PC")
        E(f"""
        s_lshr_b32 s39, s2, 3
        s_lshl_b32 s39, s39, 11
        v_and_b32 v{EP}, 15, v0
        v_lshlrev_b32 v{EP}, 7, v{EP}
        v_add_u32 v{EP}, s39, v{EP}
        v_min_u32 v{EP}, K1_LAST-K1_PC, v{EP}
        v_mov_b32 v{EP+1}, s101
        v_add_co_u32 v{EP}, vcc, s100, v{EP}
        v_addc_co_u32 v{EP+1}, vcc, 0, v{EP+1}, vcc
        global_load_dword v{T+7}, v[{EP}:{EP+1}], off
        """)
    E(f"""
    v_lshrrev_b32 v{T}, 6, v0
    v_and_b32 v0, 63, v0
    v_readfirstlane_b32 s35, v{T}
    s_and_b32 s36, s2, 7
    s_lshr_b32 s37, s2, 3
    s_lshr_b32 s38, s36, 2
    s_and_b32 s36, s36, 3
    s_lshl_b32 s36, s36, 2
    s_and_b32 s39, s37, 3
    s_xor_b32 s39, s39, {opt.get('mx', 0)}
    s_add_u32 s36, s36, s39
    s_lshr_b32 s37, s37, 2
    s_lshl_b32 s{sW4K}, s35, 12
    s_xor_b32 s39, s39, {opt.get('rx', 0)}
    s_lshl_b32 s39, s39, 1
    s_add_u32 s39, s39, s37
    s_cmp_ge_u32 s39, 9
    s_cselect_b32 s{sTMP}, 9, 0
    s_sub_u32 s39, s39, s{sTMP}
    s_mul_i32 s39, s39, {opt.get('rot', 1)}
    s_lshl_b32 s{sXC}, s39, 7
    s_lshl_b32 s{sWC}, s39, 19
    """)
    if opt.get('kvrot'):
        E({1: "s_mov_b32 s29, s37", 2: "s_mov_b32 s29, s36", 3: "s_xor_b32 s29, s36, s37"}[opt['kvrot']])
        E("s_and_b32 s29, s29, 7")
        E("s_lshl_b32 s29, s29, 14")
    TC = opt.get('tc', '')
    E.raw("    ;@ tinit")
    for _ in range(TC.count('a')): E.raw("    ;@ tcall")
    t0, t1, t2, t3, t4, t5 = T, T + 1, T + 2, T + 3, T + 4, T + 5
    E(f"""
    v_lshrrev_b32 v{t0}, 3, v0
    s_lshl_b32 s{sTMP}, s35, 5
    v_add_u32 v{t0}, s{sTMP}, v{t0}
    v_mul_u32_u24 v{t0}, 1152, v{t0}
    v_and_b32 v{t1}, 7, v0
    v_lshrrev_b32 v{t2}, 4, v0
    v_xor_b32 v{t3}, v{t1}, v{t2}
    v_xor_b32 v{t4}, 4, v{t3}
    v_lshlrev_b32 v{t3}, 4, v{t3}
    v_lshlrev_b32 v{t4}, 4, v{t4}
    v_add_u32 v{XD}, v{t0}, v{t3}
    v_add_u32 v{XD+1}, v{t0}, v{t4}
    v_add_u32 v{XD+2}, {16*1152-2048}, v{XD}
    v_add_u32 v{XD+3}, {24*1152-3072}, v{XD+1}
    v_add_u32 v{XD+1}, {8*1152-1024}, v{XD+1}
    v_and_b32 v{t1}, 15, v0
    v_lshlrev_b32 v{t3}, 2, v{t2}
    v_xor_b32 v{t3}, v{t1}, v{t3}
    v_lshlrev_b32 v{t3}, 4, v{t3}
    s_lshl_b32 s{sTMP}, s35, 4
    v_add_u32 v{t0}, s{sTMP}, v{t2}
    v_lshlrev_b32 v{t4}, 13, v{t0}
    v_add_u32 v{WD}, v{t4}, v{t3}
    v_add_u32 v{WD+1}, {4*8192-1024}, v{WD}
    v_add_u32 v{WD+2}, {8*8192-2048}, v{WD}
    v_add_u32 v{WD+3}, {12*8192-3072}, v{WD}
    v_lshlrev_b32 v{t4}, 8, v{t0}
    v_add_u32 v{VD}, v{t4}, v{t3}
    """)
    for n in range(4):
        E(f"""
        v_add_u32 v{t3}, {4*n}, v{t2}
        v_xor_b32 v{t3}, v{t1}, v{t3}
        v_lshlrev_b32 v{t3}, 4, v{t3}
        v_add_u32 v{KD+n}, v{t4}, v{t3}
        """)
    for _ in range(TC.count('b')): E.raw("    ;@ tcall")
    E.raw("    s_waitcnt lgkmcnt(0)")
    E(f"""
    s_cmp_eq_u32 s38, 0
    s_cselect_b32 s{SX}, s64, s72
    s_cselect_b32 s{SX+1}, s65, s73
    s_cselect_b32 s{SK}, s66, s74
    s_cselect_b32 s{SK+1}, s67, s75
    s_cselect_b32 s{SV}, s68, s76
    s_cselect_b32 s{SV+1}, s69, s77
    s_cselect_b32 s{SW}, s70, s78
    s_cselect_b32 s{SW+1}, s71, s79
    s_mul_i32 s{sTMP}, s37, 147456
    s_add_u32 s{SX}, s{SX}, s{sTMP}
    s_addc_u32 s{SX+1}, s{SX+1}, 0
    s_mov_b32 s{SX+2}, 147456
    s_mov_b32 s{SX+3}, 0x20000
    s_lshl_b32 s{sTMP}, s36, {8+ADJ}
    s_add_u32 s{SW}, s{SW}, s{sTMP}
    s_addc_u32 s{SW+1}, s{SW+1}, 0
    s_sub_u32 s{SW+2}, {576*8192}, s{sTMP}
    s_mov_b32 s{SW+3}, 0x20000
    s_lshl_b32 s{sTMP}, s37, {5-ADJ}
    s_add_u32 s{sTMP}, s{sTMP}, s36
    s_lshl_b32 s82, s{sTMP}, {17+ADJ}
    s_add_u32 s{SK}, s{SK}, s82
    s_addc_u32 s{SK+1}, s{SK+1}, 0
    s_mov_b32 s{SK+2}, {(HU+1)*131072}
    s_mov_b32 s{SK+3}, 0x20000
    s_add_u32 s{SV}, s{SV}, s82
    s_addc_u32 s{SV+1}, s{SV+1}, 0
    s_mov_b32 s{SV+2}, {(HU+1)*131072}
    s_mov_b32 s{SV+3}, 0x20000
    """)
    def adv(s, step, lim):
        E(f"""
        s_add_u32 s{s}, s{s}, {step}
        s_cmp_eq_u32 s{s}, {lim}
        s_cselect_b32 s{s}, 0, s{s}
        """)
    LOCK = {}
    def dma(item):
        f = dma0(item)
        lk = 'a' if item[0] == 'a' else 'm' if (item[0] in 'xwkvuet' and item != 'ts') else None
        if lk is None: return f
        def acq(): assert lk not in LOCK, (item, LOCK); LOCK[lk] = item
        def rel(): del LOCK[lk]
        return [(acq, 0)] + f + [(rel, 0)]
    def dma0(item):
        if item[0] == 'o': return st_o(item)
        if item[0] == 'y': return st_y(int(item[1:]))
        if item[0] == 'q': return st_q(int(item[1:]))
        if item[0] == 'j': return touch_y(int(item[1:]))
        if item[0] == 'J': return touch_r(int(item[1]), item[2:])
        if item[0] == 'W': return wb_l2()
        if item[0] == 'a': return ld_a(item)
        if item == 'ts': return tail_setup()
        k, i = item[0], int(item[1:])
        if k == 'g': return ld_g(i)
        if k == 'h': return red_g(i)
        if k == 'z': return sum0()
        if k == 'e': return ld_e(i)
        if k == 't': return touch_u(i)
        if k == 'r': return rd_x(i)
        if k == 'n': return snap(i)
        if k == 'u': return ld_u(i)
        if k == 'p': return poll_issue(i)
        if k == 'c': return poll_check(i)
        def first():
            a = on_issue(item)
            E(f"s_add_u32 m0, s{sW4K}, {a}")
        f = [(first, 1)]
        if k == 'x':
            for n in range(4):
                f.append((f"buffer_load_dwordx4 v{XD+n}, s[{SX}:{SX+3}], s{sXC} offen offset:{1024*n} {qpol} lds", DC, item))
            f.append((lambda: adv(sXC, 128, 1152), 3))
        elif k == 'w':
            f.append((f"s_add_u32 s{sOFF}, s{sWC}, {(i//9)*256*HU}", 1))
            for n in range(4):
                f.append((f"buffer_load_dwordx4 v{WD+n}, s[{SW}:{SW+3}], s{sOFF} offen offset:{1024*n} {qpol} lds", DC, item))
            f.append((lambda: adv(sWC, 1 << 19, 9 << 19), 3))
        else:
            if opt.get('kvrot'): f.append((f"s_xor_b32 s{sOFF}, s29, {(i>>3)*HU*131072 + (i&7)*16384}", 1))
            else: f.append((f"s_mov_b32 s{sOFF}, {(i>>3)*HU*131072 + (i&7)*16384}", 1))
            for n in range(4):
                if k == 'k': f.append((f"buffer_load_dwordx4 v{KD+n}, s[{SK}:{SK+3}], s{sOFF} offen offset:{1024*n} {kvpol} lds", DC, item))
                else: f.append((f"buffer_load_dwordx4 v{VD}, s[{SV}:{SV+3}], s{sOFF} offen offset:{1024*n} {kvpol} lds", DC, item))
        return f
    XB, VB, WB = 3 * SL, 3 * SL, 6 * SL
    F_BASE = 0x1c0000
    LOC = opt.get('loc', 0); sXC_ = 3; YS = opt.get('ys', 32 if opt.get('r3') else 16 if LOC in (1, 2) else 0); O2S = opt.get('o2s', 16); WBC = opt.get('wbc', 0)
    sSN = [64, 64, 65, 64, 64, 64]
    def fl_off(u):
        if u != 2:
            E(f"s_lshl_b32 s{sB}, s{sHG}, 8")
        else:
            E(f"s_and_b32 s{sB}, s{sM}, 1")
            E(f"s_lshl_b32 s{sB}, s{sB}, 8")
            E(f"s_add_u32 s{sB}, s{sB}, 1024")
    def snap(k):
        def g0():
            assert 'x8' in st['issued']
            E(f"v_and_b32 v{PV_}, 0x1f0, v{OD}")
            E(f"v_lshrrev_b32 v{PV_}, 2, v{PV_}")
            for u in (0, 2):
                fl_off(u)
                E(f"buffer_load_dword v{RL+u//2}, v{PV_}, s[{SPL}:{SPL+3}], s{sB} offen sc1", "sn")
            st['issued'].add('n0')
        def g1():
            assert 'n0' in st['issued'] and cur['j'] < 16
            for u in (0, 2):
                E(f"v_and_b32 v{RL+u//2}, 1, v{RL+u//2}")
                E(f"v_cmp_eq_u32_e64 s[100:101], 0, v{RL+u//2}")
                E(f"s_mov_b32 s{sSN[u]}, s100")
            st['issued'].add('n1')
        return [(g0, 2 * DC + 4)] if k == 0 else [(g1, 7)]
    def setup_rest():
        E(f"""
        s_mov_b32 s{sTH}, {hex(f32bits(thresh))}
        s_mov_b32 s{sSC}, {hex(f32bits(c))}
        s_mov_b32 s{sSC+1}, {hex(f32bits(c))}
        s_lshl_b32 s{sTMP}, s38, 3
        s_add_u32 s{sTMP}, s{sTMP}, s37
        s_add_u32 s{sTMP}, s{sTMP}, 1
        s_lshl_b32 s{sTMP}, s{sTMP}, 21
        s_add_u32 s82, s80, s{sTMP}
        s_addc_u32 s83, s81, 0
        s_lshl_b32 s{sTMP}, s36, 15
        s_add_u32 s{SO}, s82, s{sTMP}
        s_addc_u32 s{SO+1}, s83, 0
        s_mov_b32 s{SO+2}, {(max(YS, 16)+1)*32768}
        s_mov_b32 s{SO+3}, 0x20000
        v_and_b32 v{t0}, 31, v0
        v_lshrrev_b32 v{t3}, 5, v0
        v_lshlrev_b32 v{t4}, 8, v{t0}
        v_xor_b32 v{t5}, v{t3}, v{t1}
        """)
        for s in range(8):
            E(f"""
            v_xor_b32 v{KA+s}, {2*s}, v{t5}
            v_lshlrev_b32 v{KA+s}, 4, v{KA+s}
            v_add_u32 v{KA+s}, v{KA+s}, v{t4}
            """)
        E(f"""
        v_lshrrev_b32 v{t5}, 1, v{t1}
        v_xor_b32 v{t5}, v{t3}, v{t5}
        v_lshlrev_b32 v{t4}, 7, v{t0}
        s_add_u32 s{sTMP}, s{sW4K}, {XB}
        v_add_u32 v{t4}, s{sTMP}, v{t4}
        """)
        for s in range(4):
            E(f"""
            v_xor_b32 v{XA+s}, {2*s}, v{t5}
            v_lshlrev_b32 v{XA+s}, 4, v{XA+s}
            v_add_u32 v{XA+s}, v{XA+s}, v{t4}
            """)
        E(f"""
        v_lshrrev_b32 v{t0}, 2, v{t1}
        v_and_b32 v{t4}, 1, v0
        v_lshlrev_b32 v{t4}, 4, v{t4}
        v_and_b32 v{t5}, 2, v0
        v_lshlrev_b32 v{t5}, 2, v{t5}
        v_add_u32 v{t4}, v{t4}, v{t5}
        v_and_b32 v{t5}, 16, v0
        v_lshlrev_b32 v{t5}, 1, v{t5}
        v_add_u32 v{t4}, v{t4}, v{t5}
        v_lshlrev_b32 v{t5}, 8, v{t0}
        v_add_u32 v{t4}, v{t4}, v{t5}
        v_lshlrev_b32 v{t3}, 10, v{t3}
        """)
        for t in range(4):
            E(f"""
            v_xor_b32 v{t5}, {t}, v{t0}
            v_lshlrev_b32 v{t5}, 6, v{t5}
            v_add_u32 v{t5}, v{t5}, v{t4}
            v_add_u32 v{t5}, v{t5}, v{t3}
            v_add_u32 v{VA+t}, {VB}, v{t5}
            v_add_u32 v{t5}, v{t5}, v{t3}
            v_add_u32 v{WA+t}, {WB}, v{t5}
            """)
        E(f"""
        v_lshlrev_b32 v{OD}, 4, v0
        s_lshl_b32 s{sTMP}, s35, 13
        v_add_u32 v{OD}, s{sTMP}, v{OD}
        s_and_b32 s{sM}, s36, 3
        s_lshr_b32 s{sHG}, s36, 2
        s_add_u32 s{SPL}, s82, {F_BASE}
        s_addc_u32 s{SPL+1}, s83, 0
        s_mov_b32 s{SPL+2}, 2048
        s_mov_b32 s{SPL+3}, 0x20000
        """)

    def rd_x(q):
        return [lds_read(lambda sl, s=s: f"ds_read_b128 a[{X+16*q+4*s}:{X+16*q+4*s+3}], v{XA+s} offset:{sl - XB}", f"x{q}") for s in range(4)]
    def wst(q, f):
        if q in opt.get('tmajor', ()): return f % 4, f // 4
        return f // 4, f % 4
    def rd_w(q, f, ri):
        s, t = wst(q, f)
        k, r = WF[ri % NWF]
        return [lds_read(lambda sl, jj=jj: f"ds_read_b64_tr_b16 {k}[{r+2*jj}:{r+2*jj+1}], v{WA+t} offset:{sl - WB + (16*s+4*jj)*256}", f"w{q}") for jj in range(2)]
    def mf_q(q, f, ri):
        s, t = wst(q, f)
        k, r = WF[ri % NWF]
        cq = q % 9
        acc = R('v', QACC + 16 * t, 16)
        src = '0' if (cq == 0 and s == 0) else acc
        return f"v_mfma_f32_32x32x16_bf16 {acc}, {k}[{r}:{r+3}], a[{X+16*cq+4*s}:{X+16*cq+4*s+3}], {src}"
    def rd_k(n, s):
        G, hf = n >> 1, n & 1
        return [lds_read(lambda sl: f"ds_read_b128 v[{KF+4*s}:{KF+4*s+3}], v{KA+s} offset:{sl + hf*8192}", f"k{G}")]
    def rd_v(n, f, order):
        G, hf = n >> 1, n & 1
        t, s2 = order[f]
        return [lds_read(lambda sl, jj=jj: f"ds_read_b64_tr_b16 a[{VF+4*f+2*jj}:{VF+4*f+2*jj+1}], v{VA+t} offset:{sl - VB + hf*8192 + (16*s2+8*jj)*256}", f"v{G}") for jj in range(2)]
    STD = [(f % 4, f // 4) for f in range(8)]
    LAST = [(f // 2, f % 2) for f in range(8)]
    def pv_order(n): return LAST if n % 16 == 15 else STD
    def mf_qk(n, s):
        d = R('v', S[n % 2], 16)
        src = d if s else ('0' if n % 16 == 0 else R('v', NEG, 16))
        return f"v_mfma_f32_32x32x16_bf16 {d}, v[{KF+4*s}:{KF+4*s+3}], {R('v', (Q if n < 16 else QACC) + 4*s, 4)}, {src}"
    def oacc(u, t): return R('a', O1 + 16 * t, 16) if u == 0 else R('v', O2 + 16 * t, 16)
    def mf_pv(n, f):
        t, s2 = pv_order(n)[f]
        d = oacc(n >> 4, t)
        src = '0' if (n % 16 == 0 and s2 == 0) else d
        p = P[n % 2] + 4 * s2
        return f"v_mfma_f32_32x32x16_bf16 {d}, a[{VF+4*f}:{VF+4*f+3}], v[{p}:{p+3}], {src}"
    def cvt_q(D):
        f = []
        for i in range(32):
            if D == Q or opt.get('epk'): f.append((f"v_pk_mul_f32 v[{QACC+2*i}:{QACC+2*i+1}], v[{QACC+2*i}:{QACC+2*i+1}], s[{sSC}:{sSC+1}]", 1))
            else: f += [(f"v_mul_f32 v{QACC+2*i+e}, s{sSC}, v{QACC+2*i+e}", 1) for e in range(2)]
            if i >= 2: f.append((f"v_cvt_pk_bf16_f32 v{D+i-2}, v{QACC+2*i-4}, v{QACC+2*i-3}", 1))
        for i in (30, 31): f.append((f"v_cvt_pk_bf16_f32 v{D+i}, v{QACC+2*i}, v{QACC+2*i+1}", 1))
        return f
    def max_tree(s, dst, tmp):
        f = [(f"v_max3_f32 v{dst}, v{s}, v{s+1}, v{s+2}", 1), (f"v_max3_f32 v{tmp}, v{s+3}, v{s+4}, v{s+5}", 1)]
        for i in range(6, 16, 4):
            f.append((f"v_max3_f32 v{dst}, v{dst}, v{s+i}, v{s+i+1}", 1))
            if i + 3 < 16: f.append((f"v_max3_f32 v{tmp}, v{tmp}, v{s+i+2}, v{s+i+3}", 1))
        f.append((f"v_max_f32 v{dst}, v{dst}, v{tmp}", 1))
        f.append((f"v_mov_b32 v{tmp}, v{dst}", 1))
        f.append((f"v_permlane32_swap_b32 v{dst}, v{tmp}", 3))
        f.append((f"v_max_f32 v{dst}, v{dst}, v{tmp}", 1))
        return f
    def first_max(n):
        s = S[n % 2]
        f = max_tree(s, LA, LB)
        f.append((f"v_sub_f32 v{NEG}, 0, v{LA}", 1))
        for i in range(1, 16): f.append((f"v_mov_b32 v{NEG+i}, v{NEG}", 1))
        g = [(f"v_sub_f32 v{s+i}, v{s+i}, v{LA}", 1) for i in range(16)]
        return f, g
    rare = {}
    stubs = []
    def softmax_items(n):
        s = S[n % 2]; p = P[n % 2]; L = L1 if n < 16 else L2
        ex = [(f"v_exp_f32 v{T+k%8}, v{s+k}", 2) for k in range(16)]
        ad = []
        for k in range(16):
            acc = LA if k % 2 == 0 else LB
            if k < 2: ad.append(None)
            elif k < 4: ad.append((f"v_add_f32 v{acc}, v{T+(k-2)%8}, v{T+k%8}", 1))
            else: ad.append((f"v_add_f32 v{acc}, v{acc}, v{T+k%8}", 1))
        cv = [(f"v_cvt_pk_bf16_f32 v{p+e}, v{T+(2*e)%8}, v{T+(2*e+1)%8}", 1) for e in range(8)]
        tail = []
        if n % 16 == 0:
            tail.append((f"v_add_f32 v{L}, v{LA}, v{LB}", 1))
        else:
            key = (n % 2, n >> 4, n % 16 != 15)
            rare[key] = f"K1_RARE_{key[0]}{key[1]}{int(key[2])}"
            tail.append((f"v_add_f32 v{LA}, v{LA}, v{LB}", 1))
            tail.append((f"v_cmp_nge_f32 vcc, s{sTH}, v{LA}", 1))
            def br(n=n, key=key):
                nm = f"{n}{cur['var']}"
                E(f"s_cbranch_vccnz K1_STUB_{nm}")
                E.label(f"K1_BACK_{nm}")
                stubs.append((nm, rare[key]))
            tail.append((br, 1))
            tail.append((f"v_add_f32 v{L}, v{L}, v{LA}", 1))
        return ex, ad, cv, tail
    def softmax_stream(n):
        ex, ad, cv, tail = softmax_items(n)
        f = []
        LAG = opt.get('smlag', 2)
        for k in range(16 + LAG):
            if k < 16: f.append(ex[k])
            kk = k - LAG
            if kk >= 0:
                if ad[kk]: f.append(ad[kk])
                if kk % 2 == 1: f.append(cv[kk // 2])
        return f, tail
    opol = opt.get('opol', 'sc1')
    epi_done = set()
    duals = []
    def dual(txt, tag, near):
        assert 0 in polls
        n = len(duals); duals.append(txt)
        E(f"s_cmp_lg_u32 s{sXC_}, 0")
        E(f"s_cbranch_scc1 K1_DF{n}")
        E(f"{txt} {near}", tag)
        E.label(f"K1_DB{n}")
    def o_store(u, fr):
        k, r = OF[4 * u]; r += 4 * fr
        def g():
            assert u == 0 or O2S != YS or (TS['rel'] == 3 and 3 in polls)
            assert (u, fr) in epi_done; E(f"s_mov_b32 s{sTMP}, {u*O2S*32768 + (fr//4)*4096}"); st['issued'].add(f"o{u}.{fr}")
            t_ = f"buffer_store_dwordx4 {k}[{r}:{r+3}], v{OD}, s[{SO}:{SO+3}], s{sTMP} offen offset:{(fr%4)*1024}"
            if LOC >= 2 and u == 1: dual(t_, "o1", opt.get('o2pol', opt.get('ypol', '')))
            else: E(f"{t_} {opol}", f"o{u}" + ('b' if LOC == 3 and fr >= 4 else ''))
        return [(g, DC + 1, None, lambda: (u, fr) in epi_done)]
    def st_o(item):
        assert not opt.get('qclr')
        return o_store(0, int(item[1:]))
    def y_txt(fr, pol):
        k, r = OF[0]; r += 4 * fr
        return (f"s_mov_b32 s{sTMP}, {YS*32768 + (fr//4)*4096}", f"buffer_store_dwordx4 {k}[{r}:{r+3}], v{OD}, s[{SO}:{SO+3}], s{sTMP} offen offset:{(fr%4)*1024} {pol}")
    def st_y(fr):
        def g():
            assert LOC and (0, fr) in epi_done
            a_, b_ = y_txt(fr, opt.get('ypol', ''))
            E(a_); st['issued'].add(f"y0.{fr}"); E(b_, "y0")
        return [(g, DC + 1, None, lambda: (0, fr) in epi_done)]
    def touch_y(h):
        def g():
            assert cur['j'] > 16 and all(f"y0.{fr}" in st['issued'] for fr in range(4 * h, 4 * h + 4)) and 'a1.4' not in st['issued']
            E(f"""
            v_and_b32 v{L1}, 0x1f0, v{OD}
            v_lshlrev_b32 v{L1}, 3, v{L1}
            s_lshl_b32 s{sTMP}, s35, 13
            s_add_u32 s{sTMP}, s{sTMP}, {YS*32768 + h*4096}
            """)
            E(f"buffer_load_dword a{142+h}, v{L1}, s[{SO}:{SO+3}], s{sTMP} offen {opt.get('jpol', '')}", f"j{h}")
        return [(g, DC + 4)]
    def touch_r(r, h=''):
        def g():
            j = cur.get('j', -1); assert j != 16
            D = L2 if j < 16 else L1
            if j < 0 and h == 'b': D = L1
            E(f"""
            v_and_b32 v{D}, {0x1f0 if h else 0x3f0}, v{OD}
            v_lshlrev_b32 v{D}, 3, v{D}
            s_lshl_b32 s{sTMP}, s35, 13
            """)
            if r or h == 'b': E(f"s_add_u32 s{sTMP}, s{sTMP}, {r*16*32768 + (4096 if h == 'b' else 0)}")
            dst = opt.get('jdst', {}).get(r, f"v{D}")
            E(f"buffer_load_dword {dst}, v{D}, s[{SO}:{SO+3}], s{sTMP} offen {opt.get('jpol', '')}", f"J{r}")
        return [(g, DC + 4)]
    def wb_l2():
        def g():
            assert TS.get('pub0')
            E(f"s_cmp_lg_u32 s35, {opt.get('wbw', 0)}")
            E("s_cbranch_scc1 K1_WB")
            E("buffer_wbl2 sc1")
            E.label("K1_WB")
            st['issued'].add('W0')
        return [(g, DC)]
    def st_q(fr):
        def g():
            assert KA == 1
            so = '0'
            if fr >= 4: E(f"s_movk_i32 s{sTMP}, 4096"); so = f"s{sTMP}"
            st['issued'].add(f"o0.{fr}")
            E(f"buffer_store_dwordx4 v[2:5], v{OD}, s[{SO}:{SO+3}], {so} offen offset:{(fr%4)*1024} {opol}", "o0")
        return [(g, DC + 1)]
    def epi_items(u, fr, pk):
        t, s2 = fr // 2, fr % 2
        D = EP if u == 0 else QACC + 4 * fr
        f = []
        if u == 0:
            for i in range(8): f.append((f"v_accvgpr_read_b32 v{EP+i}, a{O1+16*t+8*s2+i}", 1))
            src = EP
        else:
            src = O2 + 16 * t + 8 * s2
        if pk:
            for i in range(4): f.append((f"v_pk_mul_f32 v[{src+2*i}:{src+2*i+1}], v[{src+2*i}:{src+2*i+1}], v[{RL}:{RL+1}] op_sel_hi:[1,0]", 1))
        else:
            for i in range(8): f.append((f"v_mul_f32 v{src+i}, v{src+i}, v{RL}", 1))
        for i in range(4): f.append((f"v_cvt_pk_bf16_f32 v{D+i}, v{src+2*i}, v{src+2*i+1}", 1))
        if u == 0:
            if not opt.get('qclr'):
                for i in (0, 2): f.append((f"v_and_b32 v{D+i}, -2, v{D+i}", 1))
            for i in range(4): f.append((f"v_accvgpr_write_b32 a{OF[0][1]+4*fr+i}, v{D+i}", 1))
        if u == 1 and O2S == 0:
            for i in (0, 2): f.append((f"v_and_b32 v{D+i}, -2, v{D+i}", 1))
        f.append((lambda: epi_done.add((u, fr)), 0))
        if u == 1: f += o_store(1, fr)
        return f
    def rl_items(L):
        return [(f"v_mov_b32 v{RL+1}, v{L}", 1), (f"v_mov_b32 v{RL}, v{L}", 1), (f"v_permlane32_swap_b32 v{RL}, v{RL+1}", 3),
                (f"v_add_f32 v{RL}, v{RL}, v{RL+1}", 1), (f"v_rcp_f32 v{RL}, v{RL}", 2)]
    def items(l): return [f for it in l for f in dma(it)]
    def items_lo(l):
        its = []; lo = []
        for it in l:
            nm, _, g = it.partition('@')
            f = dma(nm); its += f; lo += [int(g or 0)] * len(f)
        return its, lo

    class Strm:
        def __init__(self, its, g0=0, g1=None, lo=None, asap=False, hard=False, hi=None, prio=0):
            self.its = list(its); self.g0 = g0; self.g1 = g1; self.lo = lo; self.asap = asap; self.hard = hard; self.hi = hi; self.prio = prio
    def schedule(mf, streams, fixed=None, cap0=None):
        n = len(mf)
        fixed = fixed or {}
        Q_ = []
        total = sum(ec(f) for v in fixed.values() for f in v)
        defer = GORD and (opt.get('gall', 1) or not any(len(f) > 3 for sm in streams for f in sm.its))
        for sm in streams:
            g1 = n if sm.g1 is None else min(sm.g1, n)
            g0 = min(sm.g0, g1 - 1)
            tot = sum(ec(f) for f in sm.its); acc = 0; l = []
            total += tot
            prev = 0
            hi = list(sm.hi) if sm.hi else [n] * len(sm.its)
            for i in range(len(hi) - 2, -1, -1): hi[i] = min(hi[i], hi[i + 1])
            for i, f in enumerate(sm.its):
                lo = max(g0, sm.lo[i] if sm.lo else 0, prev); prev = lo
                due = lo if sm.asap else max(lo, g0 + (acc + ec(f) * 0.5) * (g1 - g0) / max(tot, 1) - 0.5)
                acc += ec(f)
                assert lo <= hi[i], (f, lo, hi[i])
                l.append((f, min(lo, n - 1), due - sm.prio, min(hi[i], max(g1 - 1, min(lo, n - 1))), sm.hard))
            Q_.append(l)
        cap = max(opt.get('cap', 6), total / n) if callable(cap0) else max(cap0 or opt.get('cap', 6), total / n)
        carry = 0.0
        for g in range(n):
            if callable(cap0): cap = cap0(g)
            m = mf[g]
            if callable(m): m()
            else: E(m)
            used = 0
            for f in fixed.get(g, []): put([f]); used += ec(f)
            sel = []
            lim = cap + carry
            while True:
                best = None
                for l in Q_:
                    if not l or l[0][1] > g: continue
                    f, lo, due, hi, hard = l[0]
                    if len(f) > 3 and (any(q == id(l) for q, _ in sel) or not f[3]()): continue
                    forced = hi <= g or (hard and due <= g)
                    if not forced:
                        if due > g + opt.get('early', 1.5): continue
                        if used + ec(f) > lim + 0.01 and not (used == 0): continue
                    key = (0 if forced else 1, due)
                    if best is None or key < best[0]: best = (key, l)
                if best is None:
                    if sel and any(l and len(l[0][0]) > 3 for l in Q_):
                        put(gorder(sel)); sel = []; continue
                    break
                f = best[1].pop(0)[0]
                if defer: sel.append((id(best[1]), f))
                else: put([f])
                used += ec(f)
            put(gorder(sel))
            carry = max(0.0, min(lim - used, cap - int(cap)))
        for l in Q_: assert not l

    CS = dict(fr=[], nm=0, nr=0, u=False, m0=0)
    def cs_tiles(upto):
        return sorted({d[0] for d in CS['fr'][CS['nr']:upto]}, key=lambda x: int(x[1:]))
    def cs_take(cm, ra):
        m0 = CS['nm']; CS['nm'] = m0 + cm; CS['m0'] = m0
        assert CS['nm'] <= len(CS['fr'])
        mf = [CS['fr'][i][2](i) for i in range(m0, m0 + cm)]
        r1 = min(m0 + cm + ra, len(CS['fr']))
        rd = []
        for i in range(CS['nr'], r1):
            rd.append((i, CS['fr'][i][1](i), i - NWF - m0, CS['fr'][i][0]))
        CS['nr'] = max(CS['nr'], r1)
        return mf, rd, m0
    def q_frags(qs): return [(f"w{q}", (lambda i, q=q, f=f: rd_w(q, f, i)), (lambda i, q=q, f=f: mf_q(q, f, i))) for q in qs for f in range(16)]

    UB = dict(ok=False, set=False, set2=False)
    def oproj_setup():
        f = []
        def srd1():
            assert 'w17' in st['issued']
            E(f"""
            s_cmp_eq_u32 s38, 0
            s_cselect_b32 s{SWO}, s84, s86
            s_cselect_b32 s{SWO+1}, s85, s87
            s_mul_i32 s{sN}, s{sHG}, {(512<<ADJ)*1152}
            s_add_u32 s{SWO}, s{SWO}, s{sN}
            s_addc_u32 s{SWO+1}, s{SWO+1}, 0
            s_sub_u32 s{SWO+2}, {4096*1152}, s{sN}
            """)
        f.append((srd1, 7))
        def srd2():
            E(f"""
            s_lshl_b32 s{sN}, s{sM}, 15
            s_sub_u32 s{SOR}, s{SO}, s{sN}
            s_subb_u32 s{SOR+1}, s{SO+1}, 0
            s_mov_b32 s{SOR+2}, {(max(YS, 16)+4)*32768}
            """)
            if LOC: E(f"s_getreg_b32 s{sXC_}, hwreg(HW_REG_XCC_ID, 0, 4)")
        f.append((srd2, 4))
        def se():
            E(f"""
            s_lshr_b32 s{sN}, s35, 1
            s_add_u32 s{sN}, s{sN}, s{sM}
            s_and_b32 s{sN}, s{sN}, 3
            s_lshl_b32 s{sN}, s{sN}, {1+ADJ}
            s_and_b32 s{sE}, s35, 1
            s_add_u32 s{sN}, s{sN}, s{sE}
            s_mul_i32 s{sN}, s{sN}, {64*1152}
            s_and_b32 s{sE}, s{sM}, 1
            s_lshl_b32 s{sE}, s{sE}, 6
            s_add_u32 s{sE}, s{sE}, s{sN}
            s_add_u32 s{sE}, s{sE}, 1024
            s_lshl_b32 s{sMK}, s{sM}, 8
            """)
        f.append((se, 12))
        txt = f"""
        v_lshrrev_b32 v{UD+1}, 13, v{WD}
        v_and_b32 v{UD}, 0xff, v{WD}
        v_mul_u32_u24 v{UD+1}, 1152, v{UD+1}
        v_add3_u32 v{UD}, v{UD}, v{UD+1}, s{sMK}
        v_add_u32 v{UD+1}, {4*1152-1024}, v{UD}
        v_add_u32 v{UD+2}, {8*1152-2048}, v{UD}
        v_add_u32 v{UD+3}, {12*1152-3072}, v{UD}
        v_bfe_u32 v{ED}, v{OD}, 6, 4
        v_mul_u32_u24 v{ED}, 1152, v{ED}
        v_and_b32 v{PD}, 0x30, v{OD}
        v_add_u32 v{ED}, v{ED}, v{PD}
        v_and_b32 v{EA}, 0x2d0, v{OD}
        v_and_b32 v{PD}, 0x20, v{OD}
        v_lshrrev_b32 v{PD}, 2, v{PD}
        v_add_u32 v{EA}, v{EA}, v{PD}
        v_and_b32 v{PD}, 0x100, v{OD}
        v_lshrrev_b32 v{PD}, 3, v{PD}
        v_add_u32 v{EA}, v{EA}, v{PD}
        v_add_u32 v{EA}, {WB}, v{EA}
        """
        f += [(l.strip(), 1) for l in txt.strip().split('\n')]
        f.append((lambda: UB.update(set=True), 0))
        return f
    def oproj_setup2():
        def g():
            assert UB['set'] and CS['nr'] == len(CS['fr']) and not CS['u']
            E(f"s_lshl_b32 s{sN}, s{sHG}, 6")
            for t in range(4): E(f"v_xor_b32 v{WA+t}, s{sN}, v{WA+t}")
            E(f"s_and_b32 s{sN}, s{sM}, 2")
            E(f"s_lshl_b32 s{sN}, s{sN}, 4")
            E(f"v_xor_b32 v{EA}, s{sN}, v{EA}")
        f = [(g, 8)]
        f += [(f"v_subrev_u32 v{XA+t}, {WB}, v{WA+t}", 1) for t in range(4)]
        f.append((lambda: UB.update(set2=True), 0))
        return f
    def ubase_setup():
        UB['ok'] = True
        return [(f"v_subrev_u32 v{KA+t}, {WB - 3*SL}, v{WA+t}", 1) for t in range(4)] + [(f"v_subrev_u32 v{KA+4}, {WB - 2*SL}, v{EA}", 1)]
    def publish(u):
        def g():
            assert 'n1' in st['issued'] and 'p' not in LOCK
            tg = 'y0' if (LOC in (1, 2) and u == 0) else f"o{u&1}"
            if LOC == 3 and u in (0, 2, 4):
                assert all(f"o0.{fr}" in BARVM[1] for fr in range(4 if u == 0 else 8)) and not [t for t, d in BARVM[0] if t in PTAG[u]]
            if u == 2 and WBC: assert 'W0' in BARVM[1] and TS.get('vm0') == st['epoch'] and YS == 0 and not opt.get('qclr')
            elif u < 3 and not (LOC == 3 and u == 0): assert all(f"{tg}.{fr}" in BARVM[1] for fr in range(8)) and not [t for t, d in BARVM[0] if t == tg]
            if u == 0: TS['pub0'] = True
            if u == 5: assert all(f"a{h}.{fr}" in BARVM[1] for h in (5, 6, 7) for fr in range(8)) and not [t for t, d in BARVM[0] if t in ('a5', 'a6', 'a7')]
            fl_off(u)
            if u == 2: TS['clr'] = True
            if u == 3 or (u == 1 and LOC in (0, 3) and all(f"a{h}.{fr}" in BARVM[1] for h in (1, 2, 3) for fr in range(8)) and not [t for t, d in BARVM[0] if t in ('a1', 'a2', 'a3')]):
                assert all(f"a{h}.{fr}" in BARVM[1] for h in (1, 2, 3) for fr in range(8)) and not [t for t, d in BARVM[0] if t in ('a1', 'a2', 'a3')]
                TS['rel'] = u
            if u != 2: E(f"s_add_u32 s100, s{sM}, {[0, 4, 0, 8, 12, 16][u]}")
            else:
                E(f"s_and_b32 s100, s{sM}, 2")
                E(f"s_lshl1_add_u32 s100, s100, s{sHG}")
            E(f"s_lshl2_add_u32 s{sB}, s100, s{sB}")
            E(f"s_lshr_b32 s100, s{sSN[u]}, s100")
            if LOC and u == 0:
                E("s_and_b32 s100, s100, 1")
                E(f"s_lshl1_add_u32 s100, s{sXC_}, s100")
            E(f"v_mov_b32 v{PD}, s100")
            E(f"v_lshlrev_b32 v{RL+1}, 8, v{OD}")
            t_ = f"buffer_store_dword v{PD}, v{RL+1}, s[{SPL}:{SPL+3}], s{sB} offen"
            if LOC >= 2 and u in (1, 3, 4, 5) and 0 in polls: dual(t_, f"fl{u}", opt.get('fpol', ''))
            else: E(f"{t_} sc1", f"fl{u}")
            stamp(f'pb{u}', 3)
        return [(g, DC + 6)]
    def poll_ld(u, pol='sc1'):
        return f"buffer_load_dword v{PD}, v{PV_}, s[{SPL}:{SPL+3}], s{sB} offen {pol}"
    def poll_issue(u):
        def g():
            assert 'p' not in LOCK; LOCK['p'] = u
            fl_off(u)
            E(poll_ld(u, opt.get('ppol', 'sc1') if u in (1, 3) else 'sc1'), f"pl{u}")
        return [(g, DC)]
    polls = []
    def poll_test(u):
        D = RL + 1 if (LOC and u == 0) else PD
        return f"""
            v_and_b32 v{D}, 1, v{PD}
            v_cmp_ne_u32_e64 s[100:101], 0, v{D}
            s_nop 0
            s_xor_b32 s100, s100, s{sSN[u]}
            s_and_b32 s100, s100, {[0x0f, 0xf0, 0xff, 0xf00, 0xf000, 0xf0000][u]}
            """
    def poll_check(u):
        def g():
            assert LOCK.pop('p') == u
            stamp(f'pw{u}', 3)
            fl_off(u)
            E(poll_test(u))
            E(f"s_cbranch_scc0 K1_PBACK_{u}")
            E.raw(f"""    ;[
    s_mov_b32 s{sRET}, 0
K1_PLOOP_{u}:
    {poll_ld(u)}
    s_add_u32 s{sRET}, s{sRET}, 1
    s_waitcnt vmcnt(0)
    s_cmp_gt_u32 s{sRET}, 0x30000
    s_cbranch_scc1 K1_PBACK_{u}
    {poll_test(u).strip()}
    s_cbranch_scc1 K1_PLOOP_{u}
    ;]""")
            E.label(f"K1_PBACK_{u}")
            if LOC and u == 0:
                E(f"""
                v_bfe_u32 v{RL+1}, v{PD}, 1, 4
                v_cmp_ne_u32_e64 s[100:101], s{sXC_}, v{RL+1}
                s_nop 0
                s_and_b32 s{sXC_}, s100, 15
                """)
                if LOC < 3:
                    E("s_cbranch_scc1 K1_FAR")
                    E.label("K1_NEAR")
            polls.append(u)
            stamp(f'pc{u}', 3)
        return [(g, 7)]
    def rot(hs):
        E(f"s_add_u32 s{sN}, s{sM}, {hs & 3}")
        E(f"s_and_b32 s{sN}, s{sN}, 3")
    upol = opt.get('upol', '')
    def ld_u(c):
        def first():
            assert UB['set']
            a = on_issue(f"u{c}")
            rot(c >> 1)
            E(f"s_mul_i32 s{sOFF}, s{sN}, {(128<<ADJ)*1152}")
            E(f"s_add_u32 s{sOFF}, s{sOFF}, {(c >> 3)*HU*128*1152 + (c & 1)*64*1152}")
            E(f"s_add_u32 m0, s{sW4K}, {a}")
        return [(first, 5)] + [(f"buffer_load_dwordx4 v{UD+i}, s[{SWO}:{SWO+3}], s{sOFF} offen offset:{1024*i} {upol} lds", DC, f"u{c}") for i in range(4)]
    def touch_u(c):
        def g():
            early = not UB['set']
            assert cur.get('j', -1) != 16
            D = L1 if cur.get('j', -1) > 16 or (early and c == 1 and 'j' not in cur) else L2
            S_ = SWO
            if early:
                assert 'n1' not in st['issued']
                S_ = 64
                E(f"""
                s_cmp_eq_u32 s38, 0
                s_cselect_b32 s64, s84, s86
                s_cselect_b32 s65, s85, s87
                s_mov_b32 s66, {4096*1152}
                s_mov_b32 s67, 0x20000
                s_lshl_b32 s{sN}, s36, {3+ADJ}
                """)
            else: E(f"s_lshl_b32 s{sN}, s{sM}, {3+ADJ}")
            E(f"""
            s_add_u32 s{sN}, s{sN}, s37
            s_lshl2_add_u32 s{sN}, s{sN}, s35
            s_mul_i32 s{sOFF}, s{sN}, {4*1152}
            s_add_u32 s{sOFF}, s{sOFF}, {c*HU*128*1152}
            v_and_b32 v{D}, 0x3f0, v{OD}
            v_min_u32 v{D}, {35*16}, v{D}
            v_lshlrev_b32 v{D}, 3, v{D}
            """)
            dst = f"v{D}" if (early or not opt.get('tagpr', 1) or 'a1.0' in st['issued'] or cur['j'] < 14) else "a143"
            if dst[0] == 'a': assert cur['j'] >= 14 and 'a1.0' not in st['issued']
            E(f"buffer_load_dword {dst}, v{D}, s[{S_}:{S_+3}], s{sOFF} offen", f"t{c}")
        return [(g, 8 + DC)]
    def ld_e(c):
        def first():
            assert UB['set']
            a = on_issue(f"e{c}")
            E(f"s_add_u32 m0, s{sW4K}, {a}")
        f = [(first, 1)]
        for i in range(4):
            f.append((f"s_add_u32 s{sOFF}, s{sE}, {c*HU*128*1152 + i*(16*1152-1024)}", 1))
            f.append((f"buffer_load_dwordx4 v{ED}, s[{SWO}:{SWO+3}], s{sOFF} offen offset:{1024*i} {upol} lds", DC, f"e{c}"))
        return f
    def ld_a(item):
        hs, _, part = item[1:].partition('.')
        hs = int(hs)
        frs = range(8) if part == '' else range(4 * int(part), 4 * int(part) + 4)
        k, r = OF[hs]
        def first():
            for h2 in range(hs):
                if OF[h2] == OF[hs]:
                    assert CS['u'] and not any(d[3] == h2 for d in CS['fr'][max(CS['m0'], mfp[0]):]), (hs, h2)
                    if h2 == 0: assert all(f"o0.{fr}" in st['issued'] for fr in range(8)) or ((opt.get('qclr') or WBC) and 0 in polls)
            if k == 'a' and O1 <= r < O1 + 64: assert all((0, fr) in epi_done for fr in range(8))
            if (k, r) == ('a', VF): assert cur['plan'] is None
            if (k, r) == ('v', KF): assert cur.get('j', 0) >= 31
            assert (hs >> 2) in polls and hs % 4
            assert LOC < 3 or hs > 3 or frs[-1] < 4 or 4 in polls
            rot(hs)
            E(f"s_lshl_b32 s{sA}, s{sN}, 15")
            off = (O2S if hs >> 2 else YS) * 32768 + (4096 if frs[0] == 4 else 0)
            if off: E(f"s_add_u32 s{sA}, s{sA}, {off}")
        f = [(first, 4)]
        for fr in frs:
            if fr == 4 and frs[0] == 0: f.append((f"s_add_u32 s{sA}, s{sA}, 4096", 1))
            f.append((f"buffer_load_dwordx4 {k}[{r+4*fr}:{r+4*fr+3}], v{OD}, s[{SOR}:{SOR+3}], s{sA} offen offset:{(fr%4)*1024} {opt.get('apol', 'sc1')}", DC, f"a{hs}"))
            f.append((lambda fr=fr: st['issued'].add(f"a{hs}.{fr}"), 0))
        return f
    def rd_u(c, s, t, ri):
        k, r = WF[ri % NWF]
        def fn(a, jj):
            assert UB['set2']
            if t == 4:
                if a >= WB: b, o = EA, WB
                else:
                    assert UB['ok'] and a >= 2 * SL
                    b, o = KA + 4, 2 * SL
                return f"ds_read_b64_tr_b16 {k}[{r+2*jj}:{r+2*jj+1}], v{b} offset:{a - o + (c & 3)*4096 + (16*s+4*jj)*64}"
            if a >= WB: b, o = WA, WB
            elif a < 4 * SL: b, o = XA, 0
            else:
                assert UB['ok']
                b, o = KA, 3 * SL
            return f"ds_read_b64_tr_b16 {k}[{r+2*jj}:{r+2*jj+1}], v{b+t} offset:{a - o + (16*s+4*jj)*256}"
        return [lds_read(lambda a, jj=jj: fn(a, jj), f"e{c>>3}" if t == 4 else f"u{c}") for jj in range(2)]
    FR = NEG; SUM = FR; SUMX = T; PM = P[0]
    assert P[1] == P[0] + 8
    def mf_u(c, s, t, ri, first, fresh):
        k, r = WF[ri % NWF]
        hs = c >> 1; fr = 4 * (c & 1) + s
        kb, rb = OF[hs]; rb += 4 * fr
        acc = R('v', FR, 16) if fresh else R('a', ACC + 16 * t, 16)
        def g():
            assert ((hs >> 2, fr) in epi_done) if hs % 4 == 0 else (f"a{hs}.{fr}" in st['issued']), (c, s, t)
            assert not fresh or TS['sum'] == 2
            E(f"v_mfma_f32_32x32x16_bf16 {acc}, {k}[{r}:{r+3}], {kb}[{rb}:{rb+3}], {'0' if first else acc}")
        return g
    def u_frags():
        cs = opt['uorder']; keep = opt['keep']; ntm = opt.get('ntm', 2)
        tri = []
        tl = lambda c: [t for t in range(5 if (c & 7) < 4 else 4) if not (t == 0 and c in keep)]
        for c in cs[:len(cs) - ntm]: tri += [(c, s, t, False) for s in range(4) for t in tl(c)]
        for t in (4, 0, 1, 2, 3): tri += [(c, s, t, False) for c in cs[len(cs) - ntm:] if t in tl(c) for s in range(4)]
        tri += [(c, s, 0, True) for c in keep for s in range(4)]
        assert len(tri) == 288 and len(set(x[:3] for x in tri)) == 288
        l = []; seen = set()
        for c, s, t, fresh in tri:
            key = 5 if fresh else t
            l.append((f"e{c>>3}" if t == 4 else f"u{c}", (lambda i, c=c, s=s, t=t: rd_u(c, s, t, i)),
                      (lambda i, c=c, s=s, t=t, fi=(key not in seen and not fresh), fresh=fresh: mf_u(c, s, t, i, fi, fresh)), c >> 1, key))
            seen.add(key)
        return l
    def last_of(key): return max(i for i, d in enumerate(CS['fr']) if d[4] == key)
    PT = [S[0], S[1]]
    DA, GX = VA, VA + 1
    GR = O2
    GT = O2 + 52
    sPX, sGH, sK8, sWM = sXC, sWC, 39, 66
    nps = [0]
    mfp = [0]
    def pstore(t):
        def chk():
            assert ok() and cur['j'] == 33, (t, TS, polls)
        ok = lambda: TS['ok'] and (TS['rel'] in polls or YS) and (O2S or 5 in polls) and TS.get('clr')
        f = [(chk, 0, None, ok)]
        tm = PT[nps[0] % 2]; nps[0] += 1
        for h in range(2):
            for i in range(8): f.append((f"v_accvgpr_read_b32 v{tm+8*h+i}, a{ACC+16*t+8*h+i}", 1))
            for i in range(4): f.append((f"v_cvt_pk_bf16_f32 v{tm+8*h+i}, v{tm+8*h+2*i}, v{tm+8*h+2*i+1}", 1))
            for i in (0, 2): f.append((f"v_or_b32 v{tm+8*h+i}, 1, v{tm+8*h+i}", 1))
            k = 2 * (t - 1) + h
            def stf(h=h, k=k):
                if t == 4:
                    so = f"s{sPX}"; off = 0
                    if h: E(f"s_xor_b32 s{sTMP}, s{sPX}, 1024"); so = f"s{sTMP}"
                elif k >= 4: E(f"s_movk_i32 s{sTMP}, 4096"); so = f"s{sTMP}"; off = (k % 4) * 1024
                else: so = '0'; off = k * 1024
                E(f"buffer_store_dwordx4 v[{tm+8*h}:{tm+8*h+3}], v{OD}, s[{SO}:{SO+3}], {so} offen offset:{off} sc1", f"ps{t}")
                if h: TS['done'].add(t)
            f.append((stf, DC))
        return f
    def tail_setup():
        def g1():
            assert 'k15' in st['issued'] and 'v15' in st['issued'] and cur['j'] >= 32
            E(f"""
            s_mov_b32 s{SG}, s82
            s_mov_b32 s{SG+1}, s83
            s_mov_b32 s{SG+2}, {16*32768}
            s_lshl_b32 s{sGH}, s36, 15
            s_and_b32 s{sPX}, s{sM}, 2
            s_lshl_b32 s{sPX}, s{sPX}, 9
            s_add_u32 s{sPX}, s{sPX}, 6144
            """)
        def g2():
            E(f"""
            s_cmp_eq_u32 s35, s{sHG}
            s_cselect_b32 s{sN}, s{sPX}, 0x40000000
            s_cselect_b64 s[{sWM}:{sWM+1}], -1, 0
            v_add_u32 v{GX}, s{sN}, v{OD}
            v_bfe_u32 v{DA}, v{OD}, 4, 5
            s_lshl_b32 s{sN}, s35, 5
            v_add_u32 v{DA}, s{sN}, v{DA}
            v_mul_u32_u24 v{DA}, 2304, v{DA}
            v_bfe_u32 v{DA+2}, v{OD}, 9, 1
            v_lshl_add_u32 v{DA}, v{DA+2}, 4, v{DA}
            """)
        def g3():
            E(f"""
            s_lshl2_add_u32 s{sN}, s{sM}, s{sHG}
            s_lshl_b32 s{sN}, s{sN}, 6
            s_and_b32 s{sR1}, s{sM}, 1
            s_lshl_b32 s{sR1}, s{sR1}, 1
            s_lshr_b32 s{sTMP}, s{sM}, 1
            s_add_u32 s{sR1}, s{sR1}, s{sTMP}
            s_lshl_b32 s{sR1}, s{sR1}, 5
            s_add_u32 s{sR1}, s{sR1}, 1024
            s_sub_u32 s{sR1}, s{sR1}, s{sN}
            s_cmp_eq_u32 s35, s{sHG}
            s_cselect_b32 s{sR1}, s{sR1}, 0x40000000
            s_mul_i32 s{sTMP}, s37, {128*2304}
            s_add_u32 s{sN}, s{sN}, s{sTMP}
            s_mul_i32 s{sTMP}, s38, 1152
            s_add_u32 s{sN}, s{sN}, s{sTMP}
            s_add_u32 s{SD}, s88, s{sN}
            s_addc_u32 s{SD+1}, s89, 0
            s_sub_u32 s{SD+2}, {1024*2304}, s{sN}
            """)
            TS['ok'] = True
        def cj(): assert cur['j'] == 33
        txt = f"""
        v_bfe_u32 v{GT}, v{OD}, 7, 2
        v_bfe_u32 v{GT+1}, v{OD}, 5, 1
        v_lshl_add_u32 v{GT}, v{GT}, 1, v{GT+1}
        v_bfe_u32 v{GT+1}, v{OD}, 6, 1
        v_bfe_u32 v{GT+2}, v{OD}, 9, 1
        v_xor_b32 v{GT+1}, v{GT+1}, v{GT+2}
        v_lshl_add_u32 v{GT}, v{GT+1}, 3, v{GT}
        v_and_b32 v{GT+1}, 16, v{OD}
        v_mov_b32 v{GT+2}, 0x3f80
        v_lshlrev_b32 v{GT+1}, v{GT+1}, v{GT+2}
        """
        f = [(cj, 0)] + [(l.strip(), 1) for l in txt.strip().split('\n')]
        for j in range(8):
            def g(j=j):
                E(f"v_cmp_eq_u32_e64 s[100:101], {j}, v{GT}")
                E(f"v_cndmask_b32_e64 v{PM+j}, 0, v{GT+1}, s[100:101]")
            f.append((g, 3))
        return f + [(g1, 6), (g2, 8), (g3, 10)]
    def g_loads(t):
        l = []
        pol = opt.get('rpol', 'sc1')
        if t < 4:
            for h in range(2):
                k = 2 * (t - 1) + h; d = GR + 8 * (t - 1) + 4 * h
                l.append((f"s_xor_b32 s{sMK}, s{sGH}, {(4*t << 15) + (k // 4) * 4096}",
                          f"buffer_load_dwordx4 v[{d}:{d+3}], v{OD}, s[{SG}:{SG+3}], s{sMK} offen offset:{(k%4)*1024} {pol}"))
        else:
            for n in range(1, 8):
                d = GR + 24 + 4 * (n - 1)
                l.append((f"s_xor_b32 s{sMK}, s{sGH}, {2*n << 15}", f"buffer_load_dwordx4 v[{d}:{d+3}], v{GX}, s[{SG}:{SG+3}], s{sMK} offen {pol}"))
        return l
    def g_regs(t): return list(range(GR + 8 * (t - 1), GR + 8 * t)) if t < 4 else list(range(GR + 24, GR + 52))
    def g_test(t):
        r = g_regs(t)[::2]; l = []
        l.append(f"v_bitop3_b32 v{GT}, v{r[0]}, v{r[1]}, 1 bitop3:0x80")
        for i in range(2, len(r), 2): l.append(f"v_bitop3_b32 v{GT}, v{r[i]}, v{r[i+1]}, v{GT} bitop3:0x80")
        return l
    def g_br(t):
        return [f"v_cmp_eq_u32 vcc, 0, v{GT}", "s_nop 0", (f"s_and_b64 vcc, vcc, s[{sWM}:{sWM+1}]" if t == 4 else "s_or_b64 vcc, vcc, vcc")]
    def ld_g(t):
        f = []
        for a_, b_ in g_loads(t):
            def g(a_=a_, b_=b_):
                assert TS['ok'] and 2 in polls and all((1, fr) in epi_done for fr in range(8)) and cur['j'] == 33
                E(a_); E(b_, f"g{t}")
            f.append((g, DC + 1))
        f.append((lambda: st['issued'].add(f"g{t}"), 0))
        return f
    def sum0():
        def chk():
            assert mfp[0] > last_of(0) and cur['j'] == 33; TS['sum'] = True
        return [(chk, 0, None, lambda: mfp[0] > last_of(0) + 2)] + [(f"v_accvgpr_read_b32 v{SUM+i}, a{ACC+i}", 1) for i in range(16)] + [(lambda: TS.update(sum=2), 0)]
    retr = []
    def red_g(t):
        def chk():
            assert f"g{t}" in st['issued'] and (TS['sum'] == 2 or t == 4) and (TS['done'] == {1, 2, 3, 4} or opt.get('earlyred'))
            assert t in TS['done']
            stamp(f'hw{t}', 3)
        f = [(chk, 0, None, lambda: f"g{t}" in st['issued'] and (TS['done'] == {1, 2, 3, 4} or (t == 4 and opt.get('earlyred') and 4 in TS['done'])))] + [(x, 1) for x in g_test(t)]
        def br():
            for x in g_br(t): E(x)
            E(f"s_cbranch_scc0 K1_RBACK_{t}")
            tl_ = [t] + [x for x in (1, 2, 3) if t < 4 and x != t and f"g{x}" in st['issued'] and x not in TS['red'] and opt.get('rall', 1)]
            nl = "\n    "
            E.raw(f"""    ;[
    s_mov_b32 s{sRET}, 0
K1_RLOOP_{t}:
    {nl.join(a_ + nl + b_ for x in tl_ for a_, b_ in g_loads(x))}
    s_add_u32 s{sRET}, s{sRET}, 1
    s_waitcnt vmcnt(0)
    s_cmp_gt_u32 s{sRET}, 0x30000
    s_cbranch_scc1 K1_RBACK_{t}
    {nl.join(g_test(t) + g_br(t))}
    s_cbranch_scc1 K1_RLOOP_{t}
    ;]""")
            E.label(f"K1_RBACK_{t}")
            stamp(f'hc{t}', 3)
        f.append((br, 4))
        r = g_regs(t)
        acc = R('a', ACC + 64, 16) if t == 4 else R('v', SUM, 16)
        for q in range(len(r) // 4):
            pm = PM + (0 if t == 4 else 4 * q)
            f.append((f"v_mfma_f32_32x32x16_bf16 {acc}, v[{pm}:{pm+3}], v[{r[4*q]}:{r[4*q]+3}], {acc}", 3))
        if t == 4:
            f.append((lambda: TS.update(x4=mfp[0]), 0))
            f.append((lambda: None, 0, None, lambda: mfp[0] >= min(TS['x4'] + 2, len(CS['fr']))))
            f += [(f"v_accvgpr_read_b32 v{SUMX+i}, a{ACC+64+i}", 1) for i in range(8)]
        if t == 4:
            for i in range(4): f.append((f"v_cvt_pk_bf16_f32 v{SUMX+i}, v{SUMX+2*i}, v{SUMX+2*i+1}", 1))
            f.append((f"buffer_store_dwordx4 v[{SUMX}:{SUMX+3}], v{DA}, s[{SD}:{SD+3}], s{sR1} offen {opt.get('dpol', '')}", DC, "d4"))
        f.append((lambda: TS['red'].add(t), 0))
        return f

    RLAG = opt.get('rlag', 0)
    def merge(att, cm):
        na, nc = len(att), cm
        seq = []; ia = ic = 0
        while ia < na or ic < nc:
            if ic < nc and (ia >= na or (ic + 1) * na <= ia * nc + opt.get('cbias', 0) * nc): seq.append(('c', ic)); ic += 1
            else: seq.append(att[ia]); ia += 1
        return seq
    def cread_stream(rd, cpos, bpos, newt, m0):
        its = []; lo = []; hi = []
        for i, reads, after, tile in rd:
            g = cpos[after] + RLAG if after >= 0 else 0
            if tile in newt: g = max(g, bpos)
            assert i - m0 >= len(cpos) or cpos[i - m0] > g, "fragment read after its use"
            h = 10**6 if i - m0 >= len(cpos) else max(g, cpos[i - m0] - 3)
            for x in reads: its.append(x); lo.append(g); hi.append(h)
        return Strm(its, lo=lo, asap=True, hi=hi)

    def p0(plan):
        PREF.update(plan.get('pref0', {}))
        stamp('i0', 3)
        for it in plan['init']: put(dma(it))
        stamp('i1', 3)
        for _ in range(TC.count('e')): E.raw("    ;@ tcall")
        for it in plan.get('init1', []): put(dma(it))
        setup_rest()
        stamp('i2', 3)
        for _ in range(TC.count('c')): E.raw("    ;@ tcall")
        E.raw("    ;@ tdisp")
        stamp('i3', 3)
        for it in plan.get('init2', []): put(dma(it))
        for _ in range(TC.count('d')): E.raw("    ;@ tcall")
        stamp('iss')
        xr = plan.get('xread', {q - 1: [q] for q in range(9)})
        for q in xr.get(-1, []): put(rd_x(q))
        put(items(plan['ld'].get(('q', -1), [])))
        CS.update(fr=q_frags(range(9)), nm=0, nr=0)
        LAGP = plan.get('lagp', 8)
        for q in range(10):
            cm = 16 - LAGP if q == 0 else (16 if q < 9 else LAGP)
            if cm == 0: continue
            tags = [f"w{q}"] if q < 9 else ["k0"] + plan['prew']
            fixed = {}; bp = 0
            if q == 0 or LAGP == 0:
                barrier(*tags)
                if q == 0: stamp('b0')
                _, rd, _ = cs_take(0, NWF)
                for r in rd: put(r[1])
            else:
                bp = plan.get('bposp', 2)
                fixed[bp] = [(lambda tags=tags: barrier(*tags), 2)]
            mf, rd, m0 = cs_take(cm, LAGP)
            cpos = list(range(cm))
            sts = [cread_stream(rd, cpos, bp, tags, m0), Strm(items(plan['ld'].get(('q', q), [])), g0=bp, g1=plan.get('pspan', 16))]
            if q < 9: sts.append(Strm([x for qq in xr.get(q, []) for x in rd_x(qq)], g0=cm - 2))
            if q == 9:
                sts.append(Strm([x for s in range(8) for x in rd_k(0, s)] + items(plan['ld'].get('pre', [])), g0=bp))
            schedule(mf, sts, fixed)
            stamp(f'c{q}', 2)
        stamp('p0')
        if LAGP == 0:
            barrier("k0", *plan['prew'])
            for s in range(8): put(rd_k(0, s))
            put(items(plan['ld'].get('pre', [])))
        CS.update(fr=q_frags(range(9, 18)), nm=0, nr=0)
        _, rd, _ = cs_take(0, NWF)
        put(cvt_q(Q))
        schedule([mf_qk(0, s) for s in range(8)], [Strm([rd_k(1, s)[0] for s in range(8)], lo=list(range(8)), asap=True),
                                                   Strm([x for r in rd for x in r[1]])])
        f, g = first_max(0)
        cm = plan['cm'][-1]
        mf, rd, m0 = cs_take(cm, plan.get('ra', 8))
        schedule(mf, [cread_stream(rd, list(range(cm)), 0, (), m0), Strm(f + g, g0=1), Strm(items(plan['ld'].get('pre2', [])))])
        stamp('pre')
    EPI = opt.get('epi', {16: [0], 17: [1, 2, 3], 18: [4, 5], 19: [6, 7]})
    PTAG = {0: ['y0' if LOC in (1, 2) else 'o0'], 1: ['o1'], 2: ['*'] if WBC else ['o0', 'o0b'], 3: ['a1', 'a2', 'a3'], 4: ['o0', 'o0b'], 5: ['a5', 'a6', 'a7']}
    HALF = {}
    def step(j, plan):
        if j == 14 and opt.get('hook'): opt['hook'](opt, plan, E)
        PUB = opt.get('pub', 18)
        cur['j'] = j
        hasqk = j + 1 < 32; haspv = j >= 1; hassm = j < 32
        if j == 16:
            att = [('pv', f) for f in range(8)] + [('qk', s) for s in range(8)]
        elif hasqk and haspv:
            att = [('qk', 0)]
            for s in range(1, 8): att += [('qk', s), ('pv', s - 1)]
            att += [('pv', 7)]
        elif hasqk: att = [('qk', s) for s in range(8)]
        else: att = [('pv', f) for f in range(8)]
        if j == plan.get('ustart'):
            assert CS['nm'] == len(CS['fr']) and j > max(EPI)
            CS.update(fr=u_frags(), nm=0, nr=0, u=True)
        cmd = plan.get('cm', {}); ra = plan.get('ra', 8)
        cm = cmd.get(j, 0)
        bpos = -1; newt = ()
        fixed = {}
        if (j % 2 == 0 and j <= opt.get('lastbar', 30)) or j in opt.get('xbar', {}):
            G = j // 2
            bpos = opt.get('xbar', {}).get(j, opt.get('bpos', 2))
            newt = cs_tiles(CS['nm'] + cm + cmd.get(j + 1, 0) + ra)
            newt = [t for t in newt if t not in st['visible'] and t in st['issued']]
            newt += [t for t in plan.get('btag', {}).get(j, []) if t not in newt]
            tags = ([f"k{G+1}", f"v{G}"] if j % 2 == 0 else []) + newt
            pl = opt['pubs'].get(j, []) if 'pubs' in opt else ([0, 2] if j == PUB else [])
            for u in pl: tags += PTAG[u]
            fixed[bpos] = [(lambda tags=tags: barrier(*tags), 2)]
            for u in pl: fixed[bpos] += publish(u)
        if j in plan.get('pref', {}): PREF.update(plan['pref'][j])
        while ra > 0 and any(t not in st['visible'] and t not in newt for t in cs_tiles(CS['nm'] + cm + ra)): ra -= 1
        ahead = CS['nr'] - CS['nm']
        cmf, rd, m0 = cs_take(cm, ra)
        sk = min(len(att) - 1, max(bpos, 0) + 3) if ahead < 2 else 0
        seq = att[:sk] + merge(att[sk:], cm)
        n = len(seq)
        mf = [mf_qk(j + 1, i) if k == 'qk' else mf_pv(j - 1, i) if k == 'pv' else cmf[i] for k, i in seq]
        cpos = [g for g, (k, i) in enumerate(seq) if k == 'c']
        lastatt = max(g for g, (k, i) in enumerate(seq) if k != 'c')
        sts = []
        if hassm:
            sm, tail = softmax_stream(j)
            if j == 16:
                f, g = first_max(16)
                q0 = min(gi for gi, (k, i) in enumerate(seq) if k == 'qk')
                a_ = rl_items(L1) + f; b_ = g + sm + tail
                sts.append(Strm(a_ + b_, 0, n, hi=[q0 - 2] * len(a_) + [n] * len(b_)))
            else:
                lo = [0] * (len(sm) + len(tail))
                if len(tail) > 1:
                    lo[-2] = lastatt
                sts.append(Strm(sm + tail, 0, n, lo=lo))
        its = []; lo = []
        for gi, (k, i) in enumerate(seq):
            g = min(max(gi + RLAG, bpos if j % 2 == 0 else 0), n - 1)
            r = []
            if k == 'qk' and j + 2 < 32: r = rd_k(j + 2, i)
            if k == 'pv' and j < 32: r = rd_v(j, i, pv_order(j))
            its += r; lo += [g] * len(r)
        sts.append(Strm(its, lo=lo, asap=True))
        if j == 0:
            sts.append(Strm([x for f in range(8) for x in rd_v(0, f, STD)], bpos, n))
        sts.append(cread_stream(rd, cpos, bpos, newt, m0))
        if j in EPI:
            sts.append(Strm([x for fr in EPI[j] for x in epi_items(0, fr, opt.get('epk', False))], 8 if j == 16 else 0, n))
        if j == opt.get('osetup', 15):
            assert not [x for x in plan['ld'].get(('s', j), []) if x[0] in 'ueapcyz']
            sts.append(Strm(oproj_setup(), 0, n))
        if j == 15: sts.append(Strm(oproj_setup2(), 0, n))
        if j == 14:
            assert CS['nm'] == len(CS['fr'])
            sts.append(Strm(cvt_q(QACC), (cpos[-1] if cpos else -1) + 3, n))
        if j == 30:
            fixed.setdefault(0, []).extend(ubase_setup())
        if j % 2: bpos = -1
        g0, g1 = plan.get('span', {}).get(j, (bpos + 1, n))
        l_ = plan['ld'].get(('s', j), [])
        if l_ and l_[0][0] == '/':
            sp = float(l_[0][1:]); cu = float(bpos + 1); its = []; lo = []
            for it in l_[1:]:
                nm, _, g_ = it.partition('@')
                if g_: cu = max(cu, float(g_))
                part = None
                if ':' in nm: nm, part = nm.split(':')
                if part == 'b': fs = HALF.pop(nm)
                else: fs = dma(nm)
                if part == 'a':
                    k_ = [i for i, f in enumerate(fs) if f[1] >= DC and not (callable(f[0]) and f[0].__name__ == 'first')]
                    HALF[nm] = fs[k_[2]:]; fs = fs[:k_[2]]
                for f in fs:
                    big = f[1] >= DC and not (callable(f[0]) and f[0].__name__ == 'first')
                    its.append(f); lo.append(min(max(int(cu) - (0 if big else 1), bpos + 1), n - 1))
                    if big: cu += sp
            sts.append(Strm(its, lo=lo, asap=True, prio=opt.get('xprio', 3)))
        else:
            its, lo = items_lo(l_)
            sts.append(Strm(its, max(g0, bpos + 1), min(g1, n), lo=lo))
        if j == 32:
            put(rl_items(L2))
            pv = [g for g, (k, i) in enumerate(seq) if k == 'pv']
            its = []; lo = []
            for t in range(4):
                e = epi_items(1, 2*t, opt.get('epk', False)) + epi_items(1, 2*t+1, opt.get('epk', False))
                its += e; lo += [min(pv[2*t+1] + 2, n - 1)] * len(e)
            sts.append(Strm(its, lo=lo, asap=True))
        schedule(mf, sts, fixed)
        stamp(f's{j}', 1 if j in (15, 31) else 2)
    import copy
    fronts = opt['fronts']; JOIN = opt.get('join', 15); back = opt['back']
    def front(plan, var):
        cur['plan'] = plan; cur['var'] = var
        p0(plan)
        for j in range(JOIN): step(j, plan)
        cur['plan'] = None; cur['var'] = ''
    if len(fronts) == 1:
        front(fronts[0], '')
    else:
        E(f"s_bitcmp1_b32 s2, {opt.get('pbit', 3)}")
        E("s_cbranch_scc1 K1_P0B")
        save = (copy.deepcopy(st), list(E.vm), list(E.lgkm), nst[0], list(stn))
        front(fronts[0], 'a')
        endA = (copy.deepcopy(st), [t for t, d in E.vm], list(stn))
        E.wait_lgkm(0)
        E("s_branch K1_P0J")
        E.label("K1_P0B")
        st.clear(); st.update(copy.deepcopy(save[0])); E.vm = list(save[1]); E.lgkm = list(save[2]); nst[0] = save[3]; stn[:] = save[4]
        front(fronts[1], 'b')
        E.wait_lgkm(0)
        E.label("K1_P0J")
        E.nop(12)
        A_, B_ = endA[1], [t for t, d in E.vm]
        n = min(len(A_), len(B_))
        assert A_[len(A_)-n:] == B_[len(B_)-n:], (A_, B_)
        if len(A_) > len(B_): E.vm = [(t, set()) for t in A_]
        assert endA[2] == stn
        SA = endA[0]
        assert SA['issued'] == st['issued'], (SA['issued'] ^ st['issued'])
        assert SA['epoch'] == st['epoch']
        for p in set(SA['live']) | set(st['live']):
            full = lambda s_: s_['nread'].get(p, 0) == NREADS[p[0]]
            assert SA['nread'].get(p, 0) == st['nread'].get(p, 0), p
            if not full(st) or SA['lastread'][p] == SA['epoch'] or st['lastread'][p] == st['epoch']:
                assert p in SA['live'] and p in st['live'] and SA['addr'][p] == st['addr'][p], p
                if p in st['lastread']: st['lastread'][p] = max(st['lastread'][p], SA['lastread'][p])
        st['visible'] &= SA['visible']
    back = opt['back']
    cur['plan'] = back
    for j in range(JOIN, 33): step(j, back)
    cur['plan'] = None; cur['j'] = 33
    PREF['u'] = opt.get('tailu', [7, 8, 9, 0, 1, 2, 3, 4, 5, 6]); PREF['e'] = opt.get('taile', [4, 5, 6, 7, 8, 9, 2, 3])
    ops = opt['tail']
    pq = sorted((1, 2, 3, 4), key=last_of)
    PLAG = opt.get('plag', 2)
    for oi, op in enumerate(ops):
        if op[0] == 'mf':
            cm = op[1] if op[1] >= 0 else len(CS['fr']) - CS['nm'] + op[1] + 1
            ra = 8
            while ra > 0 and any(t not in st['visible'] for t in cs_tiles(CS['nm'] + cm + ra)): ra -= 1
            if CS['nr'] < min(CS['nm'] + 2, len(CS['fr'])):
                _, rd, _ = cs_take(0, NWF)
                for r in rd: put(r[1])
            mf, rd, m0 = cs_take(cm, ra)
            def cnt(m):
                def g(): m(); mfp[0] += 1
                return g
            mfp[0] = m0
            mf = [cnt(m) for m in mf]
            sts = [cread_stream(rd, list(range(cm)), 0, (), m0)]
            kw = op[-1] if isinstance(op[-1], dict) else {}
            for l_ in op[2:]:
                if isinstance(l_, dict): continue
                its, lo = items_lo(l_)
                sts.append(Strm(its, lo=lo, asap=kw.get('asap', False)))
            its = []; lo = []
            while pq and last_of(pq[0]) + PLAG < m0 + cm - kw.get('pmargin', 3) and not kw.get('nops'):
                t = pq.pop(0)
                e = pstore(t); its += e; lo += [max(kw.get('plo', 0), last_of(t) + PLAG - m0)] * len(e)
            sts.append(Strm(its, lo=lo, asap=True))
            schedule(mf, sts, cap0=kw.get('cap'))
        elif op[0] == 'bar':
            nx = 0
            for o2 in ops[oi + 1:]:
                if o2[0] == 'bar': break
                if o2[0] == 'mf': nx = max(nx + o2[1], 0) if o2[1] >= 0 else len(CS['fr']) - CS['nm'] + o2[1] + 1
            need = [t for t in cs_tiles(CS['nm'] + nx) if t not in st['visible']]
            assert all(t in st['issued'] for t in need), need
            barrier(*op[1:], *need)
        elif op[0] == 'T':
            T2 = op[1]; m0 = CS['nm']; cm = len(CS['fr']) - m0
            bars = sorted(T2['bars'])
            pos = {it[0]: it[1] + 3 * it[2] for l_ in T2['st'] for it in l_}
            vis = {}; btags = {b: [] for b in bars}
            for i in range(CS['nr'], len(CS['fr'])):
                tl_ = CS['fr'][i][0]
                if tl_ in vis or tl_ in st['visible']: continue
                c_ = [b for b in bars if b < i - m0 and b > pos.get(tl_, -2)]
                assert c_, tl_
                c2 = [b for b in c_ if b <= i - m0 - 3]
                vis[tl_] = c2[-1] if c2 else c_[0]
                btags[vis[tl_]].append(tl_)
            def bar_items(b):
                tags = list(btags[b]); f = []
                for u in T2['bars'][b]:
                    if isinstance(u, str): f.append((lambda u=u: stamp(u), 0)); continue
                    tags += PTAG[u]
                    f += publish(u)
                return [(lambda: barrier(*tags), 2)] + f
            for l_ in T2['st']:
                for it in l_:
                    if it[1] < -1: put(dma(it[0]))
            if -1 in bars: put(bar_items(-1))
            for l_ in T2['st']:
                for it in l_:
                    if it[1] == -1: put(dma(it[0]))
            if CS['nr'] < CS['nm'] + 2:
                ra = NWF
                while any(t not in st['visible'] for t in cs_tiles(CS['nm'] + ra)): ra -= 1
                _, rd, _ = cs_take(0, ra)
                for r in rd: put(r[1])
            mf, rd, m0 = cs_take(cm, 0)
            def cnt(m):
                def g(): m(); mfp[0] += 1
                return g
            mfp[0] = m0
            mf = [cnt(m) for m in mf]
            its = []; lo = []; hi = []
            for i, reads, after, tile in rd:
                g = max(after, 0, vis.get(tile, 0))
                assert i - m0 > g
                for x in reads: its.append(x); lo.append(g); hi.append(max(g, i - m0 - 3))
            sts = [Strm(its, lo=lo, asap=True, hi=hi)]
            for l_ in T2['st']:
                its = []; lo = []
                for nm, g, sp in l_:
                    if g < 0: continue
                    k_ = 0
                    for f in dma(nm):
                        its.append(f); lo.append(int(g + k_ * sp))
                        if f[1] >= DC: k_ += 1
                sts.append(Strm(its, lo=lo, asap=True))
            its = []; lo = []
            for t in pq:
                e = pstore(t); its += e; lo += [max(T2.get('plo', 0), last_of(t) + PLAG - m0)] * len(e)
            sts.append(Strm(its, lo=lo, asap=True, prio=20))
            fixed = {b: bar_items(b) for b in bars if b >= 0}
            for g, nm in T2.get('stamps', {}).items(): fixed.setdefault(g if g >= 0 else cm + g, []).append((lambda nm=nm: stamp(nm), 0))
            c8 = cm - T2.get('c8', 64)
            schedule(mf, sts, fixed, cap0=lambda g: T2.get('capa', 6) if g < c8 else T2.get('cap', 8))
        elif op[0] == 'pub': put(publish(op[1]))
        elif op[0] == 'ld': put(items(op[1]))
        elif op[0] == 'st': stamp(op[1])
        elif op[0] == 'fr':
            assert CS['nm'] == len(CS['fr']) and TS['sum']
            stamp('oend')
            TS['red'].add(0)
        elif op[0] == 'out':
            assert TS['red'] >= {0, 1, 2, 3}
            for h in range(2):
                for i in range(4): E(f"v_cvt_pk_bf16_f32 v{SUM+8*h+i}, v{SUM+8*h+2*i}, v{SUM+8*h+2*i+1}")
                E(f"buffer_store_dwordx4 v[{SUM+8*h}:{SUM+8*h+3}], v{DA}, s[{SD}:{SD+3}], 0 offen offset:{32*h} {opt.get('dpol', '')}", "d0")
            TS['red'].add(5)
        else: raise ValueError(op)
    assert TS['red'] == {0, 1, 2, 3, 4, 5}
    if opt.get('hook'): return E, None
    E.label("K1_FIN")
    if stamps:
        E.wait_vm(0, force=True)
        stamp('fin')
        E(f"""
        s_cmp_lg_u32 s35, 0
        s_cbranch_scc1 K1_END
        s_lshl_b32 s{sTMP}, s2, 7
        s_add_u32 s{sTMP}, s{sTMP}, 65536
        s_add_u32 s{SO}, s80, s{sTMP}
        s_addc_u32 s{SO+1}, s81, 0
        s_mov_b32 s{SO+2}, 128
        v_mov_b32 v1, 0
        """)
        for i in range(nst[0]):
            E(f"v_mov_b32 v2, s{STR[i]}")
            E(f"buffer_store_dword v2, v1, s[{SO}:{SO+3}], 0 offen offset:{4*i}")
            E.wait_vm(0)
    E.label("K1_END")
    E.label("K1_LAST")
    E("s_endpgm")
    for n, t_ in enumerate(duals):
        E.label(f"K1_DF{n}")
        E.raw(f"    s_nop 4\n    {t_} sc1\n    s_branch K1_DB{n}")
    if LOC in (1, 2):
        E.label("K1_FAR")
        nl = "\n    "
        E.raw("    " + nl.join(x for fr in range(8) for x in y_txt(fr, 'sc1')))
        E.raw(f"""    s_waitcnt vmcnt(0)
    s_barrier
    s_add_u32 s100, s{sM}, 12
    s_lshl2_add_u32 s{sTMP}, s100, s{sB}
    s_lshr_b32 s100, s{sSN[4]}, s100
    v_mov_b32 v{PD}, s100
    v_lshlrev_b32 v{RL+1}, 8, v{OD}
    buffer_store_dword v{PD}, v{RL+1}, s[{SPL}:{SPL+3}], s{sTMP} offen sc1
    s_mov_b32 s{sRET}, 0
    s_waitcnt vmcnt(0)
K1_FLOOP:
    {poll_ld(4)}
    s_add_u32 s{sRET}, s{sRET}, 1
    s_waitcnt vmcnt(0)
    s_cmp_gt_u32 s{sRET}, 0x30000
    s_cbranch_scc1 K1_NEAR
    {poll_test(4).strip()}
    s_cbranch_scc1 K1_FLOOP
    s_branch K1_NEAR""")
    for n, lab in stubs:
        E.label(f"K1_STUB_{n}")
        E.raw(f"    s_call_b64 s[{sRET}:{sRET+1}], {lab}")
        E.raw(f"    s_branch K1_BACK_{n}")
    for key, lab in rare.items():
        par, u, fix = key
        s = S[par]; sn = S[1 - par]; p = P[par]; L = L1 if u == 0 else L2
        Rr = Emit()
        Rr.label(lab)
        Rr.nop(16)
        for f in max_tree(s, LA, LB): Rr(f[0])
        Rr(f"v_max_f32 v{LA}, 0, v{LA}")
        Rr(f"v_sub_f32 v{LB}, 0, v{LA}")
        Rr(f"v_exp_f32 v{LB}, v{LB}")
        for i in range(16):
            Rr(f"v_sub_f32 v{s+i}, v{s+i}, v{LA}")
            Rr(f"v_sub_f32 v{NEG+i}, v{NEG+i}, v{LA}")
            if fix: Rr(f"v_sub_f32 v{sn+i}, v{sn+i}, v{LA}")
        Rr(f"v_mul_f32 v{L}, v{L}, v{LB}")
        for i in range(64):
            if u == 0:
                Rr(f"v_accvgpr_read_b32 v{T}, a{O1+i}")
                Rr(f"v_mul_f32 v{T}, v{T}, v{LB}")
                Rr(f"v_accvgpr_write_b32 a{O1+i}, v{T}")
            else:
                Rr(f"v_mul_f32 v{O2+i}, v{O2+i}, v{LB}")
        Rr(f"v_mov_b32 v{LA}, 0")
        for e in range(8):
            Rr(f"v_exp_f32 v{T}, v{s+2*e}")
            Rr(f"v_exp_f32 v{T+1}, v{s+2*e+1}")
            Rr(f"v_add_f32 v{LA}, v{LA}, v{T}")
            Rr(f"v_add_f32 v{LA}, v{LA}, v{T+1}")
            Rr(f"v_cvt_pk_bf16_f32 v{p+e}, v{T}, v{T+1}")
        Rr.nop(4)
        Rr(f"s_setpc_b64 s[{sRET}:{sRET+1}]")
        E.lines += Rr.lines
    return E, dict(nops=E.nops, waits=E.nwait, count=E.count, vgpr=va.n, nst=nst[0], stn=stn)

if __name__ == '__main__':
    pass
```

```python
from n7 import *
from pt import ptouch
STG = dict(stamps=0.5, stl=['start', 'iss', 'b0', 'c2', 'c5', 'p0', 'pre', 's3', 's7', 's11', 's15', 's19', 's23', 's27', 's31', 's32', 'm1', 'm2', 'm3', 'm4', 'm5', 'oend', 'hc3', 'fin'])
STI = dict(stamps=0.5, stl=['start', 'i0', 'i1', 'i2', 'i3', 'iss', 'B0a', 'B0b', 'b0', 'c0', 'c1', 'c2', 'c5', 'p0', 's15', 's31', 'fin'])
def bp(out, o, **kw):
    build(out, o)
    t = ptouch(open(out).read(), **kw); open(out, 'w').write(t)
def split(o, n):
    f = o['fronts'][0]; i = f['init']; f['init'] = i[:n]; f['init2'] = i[n:]; return o
if __name__ == '__main__':
    bp('y_i0.s', dict(tocfg(H1()), **STI), touch=False)
    bp('y_i1.s', dict(split(tocfg(H1()), 3), tc='bcc', **STI))
    bp('y_i2.s', dict(split(tocfg(H1()), 3), tc='ccc', **STI))
    bp('y_i3.s', dict(split(tocfg(H1()), 2), tc='ccc', **STI))
    bp('y_i4.s', dict(split(tocfg(H1()), 3), **STI), touch=False)
```

```python
from n10 import *
def split3(o, n, n1):
    f = o['fronts'][0]; i = f['init']; f['init'] = i[:n]; f['init1'] = i[n:n1]; f['init2'] = i[n1:]; return o
V = dict(a=(3, 4, 'ecc'), b=(3, 4, 'eBC'), c=(2, 4, 'ecc'), d=(2, 2, 'ccc'), e=(3, 4, 'ecB'))
if __name__ == '__main__':
    for k, (n, n1, tc) in V.items():
        bp(f'y_j{k}.s', dict(split3(tocfg(H1()), n, n1), tc=tc, **STI))
        bp(f'y_j{k}0.s', dict(split3(tocfg(H1()), n, n1), tc=tc))
```

```python
from n11 import *
STC = dict(stamps=0.5, clk='both', stl=['start', 'p0', 's2', 's5', 's8', 's11', 's14', 's17', 's20', 's23', 's26', 's29', 's32', 'm3', 'oend', 'fin'])
if __name__ == '__main__':
    bp('y_ca.s', dict(split3(tocfg(H1()), 2, 2), tc='ccc', **STC))
    build('y_cb.s', dict(tocfg(H1()), **STC))
```

```python
from n12 import *
def base(**kw): return dict(split3(tocfg(H1()), 2, 2), tc='ccc', **kw)
STP = dict(stamps=0.5, stl=['start', 'b0', 'c0', 'c1', 'c2', 'c3', 'c4', 'c5', 'c6', 'c7', 'c8', 'p0', 'pre', 's15', 's31', 'fin'])
if __name__ == '__main__':
    bp('y_m0.s', base(**STP))
    bp('y_m1.s', base(rx=1, **STP))
    bp('y_m2.s', base(kvrot=2, **STP))
    bp('y_m3.s', base(kvrot=3, **STP))
```

```python
from n13 import *
def pre8(o):
    f = o['fronts'][0]; f['cm'][-1] = 8; f['cm'][1] += 1; f['cm'][3] += 1; f['prew'] = ['w9']; return o
if __name__ == '__main__':
    bp('y_m0.s', base(**STP))
    bp('y_m1.s', base(adj=1, **STP))
    bp('y_m2.s', pre8(base(adj=1, **STP)))
```

```python
from n14 import *
def B1(**kw): return pre8(base(adj=1, **kw))
if __name__ == '__main__':
    bp('x_a0.s', B1())
    bp('x_a1.s', B1(apol=''))
    bp('x_a2.s', B1(opol='sc0 sc1'))
    bp('x_a3.s', B1(opol='sc1 nt'))
    bp('x_a4.s', B1(opol='sc0 sc1', apol='sc0'))
```

```python
from n15 import *
def fin_(p, t0=None, sm=True, **kw):
    o = pre8(dict(split3(tocfg(p), 2, 2), tc='ccc', adj=1, **kw))
    ld = o['fronts'][0]['ld']
    if t0 is not None: ld[('s', t0)] = ld[('s', t0)] + ['t0']
    if sm: ld[('s', 12)] = ['v8']; ld[('s', 13)] = ['k10']
    return o
def D4():
    o = 40
    L = {14: ['v9'], 15: ['k11'], 16: ['u0', 'e0', 'v10'], 17: ['k12@8'], 18: ['u1'], 19: ['v11'], 20: ['k13'], 21: ['v12'], 22: ['k14'], 23: ['v13'], 24: ['k15'], 25: ['v14@6'],
         26: ['t1@8', 'u2'], 27: ['v15@6'], 28: ['u3', 'o0', 'o1', 'o2'], 29: ['u8', 'o3', 'o4', 'o5'], 30: ['u9', 'e1', 'o6', 'o7'], 31: ['u4', 'u5'], 32: []}
    cm = {20: 4, 21: 10, 22: 10, 23: 10, 24: 6}
    return dict(L=L, cm=cm, pub=32, xpos=0, keep=[6, 7, 10, 11, 12, 13, 14, 15], uorder=[0, 1, 8, 9, 2, 3, 4, 5, 6, 7, 10, 11, 12, 13, 14, 15],
        bars=[(o + 24, [1]), (o + 76, []), (o + 108, [3]), (o + 132, []), (o + 164, [])],
        ld=[(a, o + x, s) for a, x, s in [('p0', 0, 1), ('c0', 10, 1), ('a1', 10, 1), ('u6', 26, 1.5), ('u7', 32, 1.5), ('a2', 40, 1.5), ('p2', 54, 1), ('a3', 56, 1.5), ('c2', 70, 1), ('p1', 70, 1),
                                          ('u10', 78, 1), ('u11', 82, 1), ('c1', 88, 1), ('a5', 88, 1.5), ('u12', 110, 1), ('u13', 114, 1), ('a6', 118, 1.5), ('p3', 133, 1), ('u14', 134, 1), ('u15', 138, 1), ('a7', 143, 1.5), ('c3', 156, 1),
                                          ('g4', 190, 1), ('g1', 226, 1), ('g2', 230, 1), ('g3', 238, 1)]],
        ld2=[('ts', o + 100, 1), ('z0', o + 158, 1), ('h4', o + 224, 1)], btag={32: ['u2', 'u3', 'u8', 'u9', 'e1']},
        stamps={o + 40: 'm1', o + 80: 'm2', o + 136: 'm3', o + 192: 'm4', o + 216: 'm5'})
STD = dict(stamps=0.5, clk='both', stl=['start', 'p0', 's4', 's9', 's13', 's16', 's19', 's22', 's25', 's28', 's32', 'm1', 'm3', 'm4', 'oend', 'fin'])
if __name__ == '__main__':
    bp('x_d4.s', fin_(D4(), t0=1, **STD))
    bp('x_h1.s', fin_(H1(), sm=False, **STD))
```

```python
from n16 import *
KV5 = {14: ['v9'], 15: ['k11'], 16: ['u0', 'e0', 'v10'], 17: ['k12'], 18: ['u1', 'v11'], 19: ['k13'], 20: ['v12@4'], 21: ['k14@6'], 22: ['v13@8'], 23: ['k15@10'], 24: ['v14@12'], 25: []}
def D5(var=0):
    o = 40
    L = dict(KV5)
    if var == 0:
        L.update({26: ['v15', 'u2', 'u3'], 27: ['o0', 'o1', 'o2'], 28: ['u8', 'u9', 'o3', 'o4', 'o5'], 29: ['o6', 'o7'], 30: ['e1', 'u4'], 31: ['u5'], 32: ['p0']}); pub = 31
        head = [('c0', -1, 1), ('a1', 0, 1)]
    cm = {20: 4, 21: 10, 22: 10, 23: 10, 24: 6}
    return dict(L=L, cm=cm, pub=pub, xpos=2, keep=[6, 7, 10, 11, 12, 13, 14, 15], uorder=[0, 1, 8, 9, 2, 3, 4, 5, 6, 7, 10, 11, 12, 13, 14, 15],
        bars=[(o - 1, []), (o + 24, [1]), (o + 76, []), (o + 108, [3]), (o + 132, []), (o + 164, [])],
        ld=[(a, o + x, s) for a, x, s in head + [('u6', 12, 1.5), ('u7', 26, 1.5), ('a2', 34, 1.5), ('p2', 48, 1), ('a3', 50, 1.5), ('c2', 66, 1), ('p1', 66, 1),
                                          ('u10', 78, 1), ('u11', 82, 1), ('c1', 88, 1), ('a5', 88, 1.5), ('u12', 110, 1), ('u13', 114, 1), ('a6', 118, 1.5), ('p3', 133, 1), ('u14', 134, 1), ('u15', 138, 1), ('a7', 143, 1.5), ('c3', 156, 1),
                                          ('g4', 190, 1), ('g1', 226, 1), ('g2', 230, 1), ('g3', 238, 1)]],
        ld2=[('ts', o + 100, 1), ('z0', o + 158, 1), ('h4', o + 224, 1)], btag={31: ['u2', 'u3', 'u8', 'u9']},
        stamps={o + 40: 'm1', o + 80: 'm2', o + 136: 'm3', o + 192: 'm4', o + 216: 'm5'})
if __name__ == '__main__':
    bp('x_d5.s', fin_(D5(), t0=1, **STD))
```

```python
from n17 import *
def D6(var):
    o = 40
    L = dict(KV5)
    uo = [0, 1, 8, 9, 2, 3, 4, 5, 6, 7, 10, 11, 12, 13, 14, 15]
    cm = {20: 4, 21: 10, 22: 10, 23: 10, 24: 6}
    rest = [('u10', 78, 1), ('u11', 82, 1), ('c1', 88, 1), ('a5', 88, 1.5), ('u12', 110, 1), ('u13', 114, 1), ('a6', 118, 1.5), ('p3', 133, 1), ('u14', 134, 1), ('u15', 138, 1), ('a7', 143, 1.5), ('c3', 156, 1),
            ('g4', 192, 1), ('g1', 226, 1), ('g2', 230, 1), ('g3', 238, 1)]
    bars = [24, 76, 108, 132, 164]
    if var == 'A':
        L.update({26: ['v15', 'u8'], 27: ['o0', 'o1', 'o2', 'u9'], 28: ['o3', 'o4', 'o5', 'u2'], 29: ['o6', 'o7', 'u3'], 30: ['e1', 'u4'], 31: ['u5'], 32: []}); pub = 31; xp = 4
        head = [('p0', -1, 1), ('c0', 14, 1), ('a1', 14, 1), ('u6', 26, 1.5), ('u7', 32, 1.5), ('a2', 40, 1.5), ('p2', 54, 1), ('a3', 55, 1.5), ('c2', 70, 1), ('p1', 70, 1)]
        bt = {31: ['u2', 'u3', 'u8', 'u9', 'e1']}
    if var == 'B':
        L.update({25: ['o0', 'o1', 'o2', 'o3'], 26: ['v15', 'u2'], 27: ['o4', 'o5', 'o6', 'o7', 'u3'], 28: ['u8'], 29: ['u9'], 30: ['e1', 'u4', 'p0@12'], 31: ['c0@6', 'a1'], 32: ['u5']}); pub = 29; xp = 6
        head = [('a2', 4, 1.5), ('u6', 26, 1.5), ('u7', 32, 1.5), ('p2', 40, 1), ('a3', 41, 1.5), ('c2', 60, 1), ('p1', 66, 1)]
        bt = {30: ['u2', 'u3', 'u8', 'u9']}; uo = [0, 1, 2, 3, 8, 9, 4, 5, 6, 7, 10, 11, 12, 13, 14, 15]
    if var == 'C':
        L.update({26: ['v15', 'u8'], 27: ['o0', 'o1', 'o2', 'o3', 'u9'], 28: ['o4', 'o5', 'o6', 'o7', 'u2'], 29: ['u3'], 30: ['e1', 'u4'], 31: ['u5', 'p0@6'], 32: []}); pub = 30; xp = 2
        head = [('c0', -1, 1), ('a1', 0, 1), ('u6', 26, 1.5), ('u7', 32, 1.5), ('a2', 40, 1.5), ('p2', 54, 1), ('a3', 55, 1.5), ('c2', 70, 1), ('p1', 70, 1)]
        bt = {30: ['u2', 'u8', 'u9']}; bars = [-1] + bars
    pb = {24: [1], 108: [3]}
    return dict(L=L, cm=cm, pub=pub, xpos=xp, keep=[6, 7, 10, 11, 12, 13, 14, 15], uorder=uo,
        bars=[(o + b, pb.get(b, [])) for b in bars], ld=[(a, o + x, s) for a, x, s in head + rest],
        ld2=[('ts', o + 100, 1), ('z0', o + 158, 1), ('h4', o + 224, 1)], btag=bt,
        stamps={o + 40: 'm1', o + 80: 'm2', o + 136: 'm3', o + 192: 'm4', o + 216: 'm5'})
STE = dict(stamps=0.5, clk='both', stl=['start', 'p0', 's13', 's16', 's19', 's22', 's25', 's28', 's30', 's32', 'm1', 'm2', 'm3', 'm4', 'oend', 'fin'])
if __name__ == '__main__':
    for v in 'ABC': bp(f'x_e{v}.s', fin_(D6(v), t0=1, **STE))
    bp('x_eq.s', fin_(eval(open('q1.txt').read()), t0=1, **STE))
    bp('x_h1.s', fin_(H1(), sm=False, **STE))
```

```python
from n18 import *
def fin2(p, tp=None, sm=True, **kw):
    o = fin_(p, sm=sm, **kw)
    ld = o['fronts'][0]['ld']
    for it, (key, pos) in (tp or {}).items():
        l = list(ld.get(key, [])); l.insert(pos, it); ld[key] = l
    return o
KV7 = {14: ['v9'], 15: ['k11'], 16: ['u0', 'e0', 'v10'], 17: ['k12'], 18: ['u1', 'v11'], 19: ['k13'], 20: ['v12@4'], 21: ['k14@12'], 22: ['v13@20'], 23: [], 24: ['k15@3'], 25: ['v14@10']}
def D7(var):
    o = 40
    L = dict(KV7)
    uo = [0, 1, 8, 9, 2, 3, 4, 5, 6, 7, 10, 11, 12, 13, 14, 15]
    cm = {20: 4, 21: 10, 22: 10, 23: 10, 24: 6}
    rest = [('u10', 78, 1), ('u11', 82, 1), ('c1', 88, 1), ('a5', 88, 1.5), ('u12', 110, 1), ('u13', 114, 1), ('a6', 118, 1.5), ('p3', 133, 1), ('u14', 134, 1), ('u15', 138, 1), ('a7', 143, 1.5), ('c3', 156, 1),
            ('g4', 192, 1), ('g1', 226, 1), ('g2', 230, 1), ('g3', 238, 1)]
    bars = [24, 76, 108, 132, 164]
    if var == 'A':
        L.update({26: ['u8'], 27: ['v15@4', 'u9'], 28: ['o0@4', 'o1', 'o2', 'u2'], 29: ['o3', 'o4', 'o5', 'u3'], 30: ['o6', 'o7', 'e1', 'u4'], 31: ['u5'], 32: []}); pub = 32; xp = 0
        head = [('p0', 2, 1), ('c0', 16, 1), ('a1', 16, 1), ('u6', 26, 1.5), ('u7', 32, 1.5), ('a2', 40, 1.5), ('p2', 54, 1), ('a3', 55, 1.5), ('c2', 70, 1), ('p1', 70, 1)]
        bt = {32: ['u2', 'u3', 'u8', 'u9', 'e1']}
    if var == 'B':
        L.update({23: ['o0@8', 'o1'], 26: ['u8', 'o2', 'o3'], 27: ['v15@4', 'u9'], 28: ['o4@4', 'o5', 'u2'], 29: ['o6', 'o7', 'u3'], 30: ['e1', 'u4'], 31: ['u5'], 32: []}); pub = 31; xp = 4
        head = [('p0', -1, 1), ('c0', 14, 1), ('a1', 14, 1), ('u6', 26, 1.5), ('u7', 32, 1.5), ('a2', 40, 1.5), ('p2', 54, 1), ('a3', 55, 1.5), ('c2', 70, 1), ('p1', 70, 1)]
        bt = {31: ['u2', 'u3', 'u8', 'u9', 'e1']}
    pb = {24: [1], 108: [3]}
    return dict(L=L, cm=cm, pub=pub, xpos=xp, keep=[6, 7, 10, 11, 12, 13, 14, 15], uorder=uo,
        bars=[(o + b, pb.get(b, [])) for b in bars], ld=[(a, o + x, s) for a, x, s in head + rest],
        ld2=[('ts', o + 100, 1), ('z0', o + 158, 1), ('h4', o + 224, 1)], btag=bt,
        stamps={o + 40: 'm1', o + 80: 'm2', o + 136: 'm3', o + 192: 'm4', o + 216: 'm5'})
TP1 = {'t0': (('q', 5), 2), 't1': (('q', 6), 2)}
TP2 = {'t0': (('q', 4), 3), 't1': (('q', 6), 2)}
if __name__ == '__main__':
    bp('x_fA.s', fin2(D7('A'), TP1, **STE))
    bp('x_fB.s', fin2(D7('B'), TP1, **STE))
    bp('x_fC.s', fin2(D7('A'), TP2, **STE))
    bp('x_fD.s', fin2(D6('A'), TP1, **STE))
```

```python
from n19 import *
import srch
def tocfg2(p):
    q = dict(p); q['pub'] = 0
    q['kw'] = dict(p.get('kw', {}), pubs=p['pubs'], loc=p.get('loc', 1))
    if p.get('xbar'): q['kw']['xbar'] = p['xbar']
    o = tocfg(q)
    if 'pref' in p: o['back']['pref'] = p['pref']
    return o
def fin3(p, t0=None, sm=True, **kw):
    o = pre8(dict(split3(tocfg2(p), 2, 2), tc='ccc', adj=1, **kw))
    ld = o['fronts'][0]['ld']
    if t0 is not None: ld[('s', t0)] = ld[('s', t0)] + ['t0']
    if sm: ld[('s', 12)] = ['v8']; ld[('s', 13)] = ['k10']
    return o
def G1(var='A'):
    L = {14: ['v9', 't0'], 15: ['k11'], 16: ['u0', 'e0', 'v10'], 17: ['k12', 'y0', 'y1'], 18: ['u1', 'y2', 'y3', 'v11', 'y4'], 19: ['y5', 'y6', 'y7', 'k13'],
         20: ['v12@4'], 21: ['k14@6', 't1'], 22: ['u2', 'p0', 'v13@8'], 23: ['c0@8', 'a1', 'k15@14'], 24: ['u3', 'v14@10'], 25: ['a2'], 26: ['u4', 'u5', 'v15'], 27: ['a3'],
         28: ['u6', 'u7'], 29: ['o0', 'o1', 'o2', 'o3'], 30: ['u8', 'u9', 'e1', 'p3@20'], 31: ['o4', 'o5', 'o6', 'o7', 'c3@16'], 32: []}
    cm = {20: 4, 21: 10, 22: 10, 23: 10, 24: 6, 25: 10, 26: 10, 27: 10, 28: 10, 29: 10, 30: 10, 31: 10, 32: 8}
    o = sum(cm.values())
    return dict(L=L, cm=cm, pubs={21: [0], 30: [3]}, xbar={21: 2}, keep=[6, 7, 10, 11, 12, 13, 14, 15], uorder=list(range(16)),
        bars=[(o + 12, [1, 2]), (o + 54, []), (o + 84, [])],
        ld=[(a, o + x, s) for a, x, s in [('u10', -1, 1), ('u11', 14, 1), ('u12', 18, 1), ('u13', 22, 1), ('p1', 30, 1), ('c1', 44, 1), ('a5', 44, 1), ('u14', 56, 1), ('u15', 60, 1), ('a6', 64, 1), ('p2', 72, 1), ('a7', 74, 1), ('c2', 100, 1),
                                          ('g4', 112, 1), ('g1', 148, 1), ('g2', 152, 1), ('g3', 160, 1)]],
        ld2=[('ts', o + 30, 1), ('z0', o + 80, 1), ('h4', o + 146, 1)], btag={30: ['u6', 'u7']},
        stamps={o + 18: 'm1', o + 58: 'm2', o + 90: 'm3', o + 138: 'm4'})
STF = dict(stamps=0.5, clk='both', stl=['start', 'p0', 's13', 's16', 's19', 's22', 's25', 's28', 's30', 's32', 'm1', 'm2', 'm3', 'm4', 'oend', 'fin'])
if __name__ == '__main__':
    bp('w_a.s', fin3(G1(), **STF))
    bp('w_b.s', fin3(G1(), apol='sc0', **STF))
```

```python
from n20 import *
STH = dict(stamps=0.5, stl=['start', 's13', 's14', 's15', 's16', 's17', 's18', 's19', 's20', 'pb0', 's21', 's22', 'pw0', 'pc0', 's23', 's24', 's25', 's26', 's27', 's28', 's29', 's30', 'pw3', 'pc3', 's31', 's32', 'pb1', 'pw1', 'pc1', 'm3', 'oend', 'fin'])
if __name__ == '__main__':
    bp('w_c.s', fin3(G1(), **STH))
    p = G1(); p['L'][21] = ['k14@6']
    bp('w_d.s', fin3(p, **STH))
    bp('w_e.s', fin3(p, ypol='nt', **STH))
    bp('w_f.s', fin3(p, ypol='sc0', **STH))
```

```python
from n21 import *
def fin4(p, **kw):
    o = fin3(p, **kw)
    f = o['fronts'][0]
    for j, l in p.get('F', {}).items(): f['ld'][('s', j) if isinstance(j, int) else j] = l
    if 'init2' in p: f['init2'] = p['init2']
    o['back']['ustart'] = p.get('ustart', 20); o['osetup'] = p.get('osetup', 13)
    o['back']['slotmap'] = p.get('slotmap', {})
    o['tail'][0][1].update(p.get('T', {}))
    return o
QS = [f'q{i}' for i in range(8)]
def G2(clr='p0', cmx=(10, 10, 8), tl=None, **kw):
    L = {14: ['v9'], 15: ['u0', 'k11'], 16: ['e0', 'v10', 'y0'], 17: ['k12', 'y1', 'y2', 'y3'], 18: ['u1', 'v11', 'y4', 'y5', 'y6', 'y7'], 19: ['k13@4'],
         20: ['v12@4'], 21: ['p0@6', 'k14'], 22: ['u2', 'c0@8', 'a1.0', 'v13'], 23: ['k15@8'], 24: ['u3', 'a1.1', 'v14'], 25: ['v15@8'], 26: ['u4', 'u5', 'a2'], 27: ['t1', 'a3'],
         28: ['u6', 'u7'], 29: [], 30: ['u8', 'u9', 'e1'], 31: ['p3', 'c3@12'], 32: []}
    cm = {19: 4, 20: 10, 21: 10, 22: 10, 23: 6, 24: 8, 25: 10, 26: 10, 27: 10, 28: 10, 29: 10, 30: cmx[0], 31: cmx[1], 32: cmx[2]}
    o = 136
    n0 = sum(cm.values())
    p = dict(L=L, cm=cm, loc=2, pubs={20: [0], 30: [3]}, keep=[6, 7, 10, 11, 12, 13, 14, 15], uorder=list(range(16)), ustart=19, osetup=11,
        F={12: ['v8', 't0']}, slotmap={'v15': 3}, pref={24: dict(u=[7, 8, 6, 0, 1, 2, 9]), 30: dict(u=[7, 8, 9, 0, 1, 2, 3, 4, 5, 6], e=[4, 5, 6, 9, 8, 7])},
        kw=dict(epi={16: [0, 1], 17: [2, 3, 4], 18: [5, 6, 7]}, pref=dict(k=[3, 0, 1, 2], v=[6, 5, 4], x=[4, 5], w=[7, 8, 9])),
        bars=[(n0 + 6, [1]), (o + 36, []), (o + 66, []), (o + 90, [])],
        ld=[('u10', n0 + 8, 1), ('u11', n0 + 12, 1), ('p1', n0 + 18, 1), ('c1', n0 + 30, 1), ('a5', n0 + 30, 1), ('u12', n0 + 40, 1), ('u13', n0 + 44, 1)] +
           [(a, o + x, s) for a, x, s in [('a6', 40, 1), ('u14', 50, 1), ('u15', 54, 1), ('a7', 60, 1), ('g4', 94, 1), ('g1', 130, 1), ('g2', 134, 1), ('g3', 142, 1)]],
        ld2=[('ts', o + 12, 1), ('z0', o + 62, 1), ('h4', o + 128, 1)], btag={18: ['u0', 'e0'], 30: ['u6', 'u7']},
        stamps={o: 'm1', o + 40: 'm2', o + 72: 'm3', o + 120: 'm4'})
    if clr == 'p0':
        p['init2'] = ['x1', 'w1'] + QS
        p['pubs'][8] = [2]; p['L'][14] = ['p2', 'v9']; p['L'][17] = ['c2'] + p['L'][17]
    if clr == 'a2':
        p['L'][27] = ['t1', 'a3', 'o0', 'o1', 'o2', 'o3']; p['L'][28] = ['u6', 'u7', 'o4', 'o5', 'o6', 'o7']
        p['bars'][0] = (n0 + 6, [1, 2]); p['ld'] = p['ld'][:-4] + [('p2', o + 70, 1), ('c2', o + 92, 1)] + p['ld'][-4:]
    p.update(kw)
    return p
STJ = dict(stamps=0.5, stl=['start', 'p0', 's11', 's13', 's15', 's16', 's17', 's18', 's19', 's20', 's21', 'pw0', 'pc0', 's22', 's23', 's24', 's25', 's26', 's27', 's28', 's29', 's30', 's31', 's32', 'pb1', 'pw1', 'pc1', 'm2', 'm3', 'm4', 'oend', 'fin'])
if __name__ == '__main__':
    bp('w_g.s', fin4(G2('p0'), **STJ))
    bp('w_h.s', fin4(G2('a2'), **STJ))
    bp('w_i.s', fin4(G2('p0'), ppol='sc0', apol='sc0', **STJ))
```

```python
from n22 import *
def G3(cmx=(10, 10, 8), **kw):
    p = G2('a2', cmx)
    L = {14: ['v9'], 15: ['u0', 'k11@8'], 16: ['e0', 'y0', 'v10@12'], 17: ['y1', 'y2', 'y3'], 18: ['u1', 'k12', 'y4', 'y5', 'y6', 'y7'], 19: ['v11@8'],
         20: ['u2@6', 'k13@12'], 21: ['p0@14', 'v12@16'], 22: ['u3@10', 'k14@18'], 23: ['c0', 'a1.0@6', 'v13@16'], 24: ['u4@8', 'k15@16'], 25: ['a1.1@10', 'v14@18'], 26: ['u5', 'a2.0@14'], 27: ['v15', 't1', 'a2.1@14'],
         28: ['u6', 'u7', 'a3'], 29: ['o0', 'o1', 'o2', 'o3', 'o4', 'o5', 'o6', 'o7'], 30: ['u8', 'u9', 'e1'], 31: ['p3', 'u10', 'c3@12'], 32: []}
    cm = {19: 4, 20: 8, 21: 8, 22: 8, 23: 6, 24: 6, 25: 10, 26: 10, 27: 10, 28: 10, 29: 10, 30: cmx[0], 31: cmx[1], 32: cmx[2]}
    o = 136; n0 = sum(cm.values())
    p.update(L=L, cm=cm, slotmap={}, pref={20: dict(u=[7, 8, 0, 1, 2, 3, 6, 9]), 30: dict(u=[7, 8, 9, 0, 1, 2, 3, 4, 5, 6], e=[4, 5, 6, 9, 8, 7])},
        bars=[(n0 + 6, [1, 2]), (o + 36, []), (o + 66, [])],
        ld=[('u11', n0 + 8, 1), ('u12', n0 + 12, 1), ('p1', n0 + 18, 1), ('u13', n0 + 20, 1), ('c1', n0 + 30, 1), ('a5', n0 + 30, 1)] +
           [(a, o + x, s) for a, x, s in [('u14', 38, 1), ('u15', 42, 1), ('a6', 46, 1), ('a7', 58, 1), ('p2', 68, 1), ('c2', 92, 1), ('g4', 94, 1), ('g1', 130, 1), ('g2', 134, 1), ('g3', 142, 1)]])
    p.update(kw)
    return p
if __name__ == '__main__':
    bp('w_j.s', fin4(G3(), **STJ))
    bp('w_k.s', fin4(G3((6, 6, 4)), **STJ))
    bp('w_j0.s', fin4(G3()))
```

```python
from n23 import *
def G3j(**kw):
    p = G3(**kw)
    p['L'][17] += ['j0']; p['L'][18] += ['j1']
    return p
if __name__ == '__main__':
    bp('w_l0.s', fin4(G3j()))
    bp('w_m0.s', fin4(G3j(), jpol='sc0'))
    bp('w_n0.s', fin4(G3(), kvpol=''))
    bp('w_o0.s', fin4(G3(), kvpol='sc1 nt'))
    bp('w_l.s', fin4(G3j(), **STJ))
```

```python
from n24 import *
def G4(ylate=False, cmx=(10, 10, 8), **kw):
    p = G2('a2', cmx)
    L = {14: ['v9'], 15: ['u0', 'k11'], 16: ['e0', 'v10', 'y0'], 17: ['k12', 'y1', 'y2', 'y3'], 18: ['u1', 'v11', 'y4', 'y5', 'y6', 'y7'], 19: ['k13@4'],
         20: ['v12@4'], 21: ['k14@4'], 22: ['v13@4'], 23: ['k15@4'], 24: ['p0', 'v14@4'], 25: ['v15@4', 't1'], 26: ['c0@6', 'u2@8', 'a1.0'], 27: ['u3', 'a1.1', 'u4'],
         28: ['u5', 'a2', 'u6'], 29: ['a3', 'o0', 'o1', 'o2', 'o3'], 30: ['u7', 'o4', 'o5', 'o6', 'o7'], 31: ['u8'], 32: []}
    cm = {19: 4, 20: 6, 21: 6, 22: 6, 23: 6, 24: 6, 25: 6, 28: 10, 29: 10, 30: cmx[0], 31: cmx[1], 32: cmx[2]}
    pubs = {22: [0]}; xbar = {}
    if ylate:
        for j in (16, 17, 18): L[j] = [x for x in L[j] if x[0] != 'y']
        L[24] = ['v14@4']; L[25] = ['y0', 'y1', 'y2', 'y3', 'y4', 'y5', 'y6', 'y7', 'v15', 't1']; L[26] = ['u2@8', 'u3']; L[27] = ['u4', 'p0@10']; L[28] = ['c0@6', 'a1', 'u5', 'u6']
        L[29] = ['a2', 'a3']; L[30] = ['u7'] + O(0, 8)
        pubs = {27: [0]}; xbar = {27: 0}; cm[28] = 0
    o = 136; n0 = sum(cm.values())
    p.update(L=L, cm=cm, pubs=pubs, xbar=xbar, btag={18: ['u0', 'e0'], 30: ['u5', 'u6']},
        bars=[(n0 + 8, [1, 2]), (o - 6, []), (o + 36, []), (o + 66, [])],
        ld=[('u9', n0 + 10, 1), ('e1', n0 + 14, 1), ('u10', n0 + 18, 1), ('p1', n0 + 24, 1), ('u11', n0 + 26, 1), ('c1', n0 + 40, 1), ('a5', n0 + 40, 1.5)] +
           [(a, o + x, s) for a, x, s in [('u12', 6, 1), ('u13', 12, 1), ('a6', 18, 1.5), ('u14', 38, 1), ('u15', 42, 1), ('a7', 48, 1), ('p2', 60, 1), ('c2', 84, 1), ('g4', 94, 1), ('g1', 130, 1), ('g2', 134, 1), ('g3', 142, 1)]])
    p['kw']['r3'] = 1
    p.update(kw)
    return p
if __name__ == '__main__':
    bp('w_p0.s', fin4(G3(), apol='sc0'))
    bp('w_q0.s', fin4(G4()))
    bp('w_r0.s', fin4(G4(True)))
    bp('w_q.s', fin4(G4(), **STJ))
    bp('w_r.s', fin4(G4(True), **STJ))
```

```python
from n25 import *
if __name__ == '__main__':
    p = G3(); p['F'][1] = ['n0', 'J1']
    bp('w_s.s', fin4(p, **STJ)); bp('w_s0.s', fin4(p))
    p = G2('a2'); p['F'][1] = ['n0', 'J1']
    bp('w_t.s', fin4(p, **STJ))
```

```python
from n26 import *
def G5(q=2, cmx=(8, 8, 8, 8, 0), L2={}, **kw):
    p = G2('a2')
    L = {14: ['k10@4'], 15: ['u0', 'v9@8'], 16: ['e0', 'k11@8', 'y0'], 17: ['y1', 'v10@8', 'y2', 'y3'], 18: ['u1', 'k12@8', 'y4', 'y5', 'y6', 'y7'], 19: ['v11@8'],
         20: ['u2@6', 'k13@12'], 21: ['p0@8', 'v12@10'], 22: ['u3', 'c0@17', 'a1.0', 'k14'], 23: ['a1.1@6', 'v13@14'], 24: ['u4@6', 'k15@13'], 25: ['a2.0@6', 'v14@13'], 26: ['u5', 'a2.1', 'v15@14'], 27: ['a3.0@16'],
         28: ['u6@6', 'a3.1@12', 'u7@16', 't1'], 29: [], 30: ['p3@18'], 31: ['u8', 'u9', 'e1', 'c3@12'], 32: []}
    L.update(L2)
    cm = {19: 4, 20: 10, 21: 10, 22: 10, 23: 6, 24: 10, 25: 10, 26: 10, 27: 10, 28: cmx[0], 29: cmx[1], 30: cmx[2], 31: cmx[3], 32: cmx[4]}
    o = 136; n0 = sum(cm.values())
    p.update(L=L, cm=cm, slotmap={}, pref={20: dict(u=[7, 8, 0, 1, 2, 3, 6, 9]), 30: dict(u=[7, 8, 9, 0, 1, 2, 3, 4, 5, 6], e=[4, 5, 6, 9, 8, 7])},
        F={1: ['n0', 'J1'], 12: ['v8'], 13: ['t0']}, pubs={20: [0], 30: [3, 2]},
        bars=[(n0 + 6, [1]), (o + 36, []), (o + 66, [])],
        ld=[('u10', n0 - 1, 1), ('u11', n0 + 8, 1), ('u12', n0 + 12, 1), ('p1', n0 + 18, 1), ('u13', n0 + 20, 1), ('c1', n0 + 30, 1), ('a5', n0 + 30, 1), ('p2', n0 + 40, 1), ('a6', n0 + 42, 1)] +
           [(a, o + x, s) for a, x, s in [('u14', 38, 1), ('u15', 42, 1), ('c2', 48, 1), ('a7', 48, 1), ('g4', 94, 1), ('g1', 130, 1), ('g2', 134, 1), ('g3', 142, 1)]])
    p['kw']['qclr'] = 1
    p['Q'] = q
    p.update(kw)
    return p
def fin5(p, **kw):
    o = fin4(p, **kw)
    q = p['Q']
    for i in range(8):
        j = q + i if isinstance(q, int) else q[i]
        d = o['fronts'][0]['ld'] if j < 15 else o['back']['ld']
        d[('s', j)] = d[('s', j)] + [f'q{i}']
    return o
if __name__ == '__main__':
    bp('w_u.s', fin5(G5(2), **STJ)); bp('w_u0.s', fin5(G5(2)))
    bp('w_v.s', fin5(G5(19), **STJ)); bp('w_v0.s', fin5(G5(19)))
```

```python
from n27 import *
if __name__ == '__main__':
    p = G3(); p['F'][1] = ['n0', 'J1']
    bp('w_w0.s', fin4(p, ypol='sc1')); bp('w_w.s', fin4(p, ypol='sc1', **STJ))
    bp('w_x0.s', fin4(p, ypol='sc0 sc1'))
    bp('w_y0.s', fin4(p, ypol='sc1', jpol='sc1'))
    bp('w_z0.s', fin4(p, ypol='nt'))
```

```python
from n28 import *
def G6(var='A', wb=26, cmx=(10, 10, 8), L2={}, **kw):
    p = G3(cmx)
    L = p['L']
    L.update({26: ['u5', 'a2.0@14'], 27: ['v15', 'a2.1@14'], 28: ['u6@6', 'a3.0@14', 'u7'], 29: ['a3.1', 't1'], 30: ['p3@18'], 31: ['u8', 'u9', 'e1', 'c3@14'], 32: []})
    p['F'][1] = ['n0', 'J0']
    o = 136; n0 = sum(p['cm'].values())
    p['kw'].update(ys=0, wbc=1, o2s=0 if var == 'A' else 16)
    if var == 'A':
        p['bars'] = [(n0 + 6, [1, 2]), (o + 36, []), (o + 64, [5])]
        p['ld'] = [('u10', n0 + 8, 1), ('u11', n0 + 12, 1), ('p1', n0 + 18, 1), ('u12', n0 + 20, 1), ('u13', n0 + 24, 1), ('c1', n0 + 30, 1), ('a5', n0 + 30, 1), ('a6', n0 + 40, 1), ('a7', n0 + 50, 1)] + \
           [(a, o + x, s) for a, x, s in [('u14', 38, 1), ('u15', 42, 1), ('p5', 76, 1), ('c5', 88, 1), ('p2', 88, 1), ('c2', 108, 1), ('g4', 110, 1), ('g1', 130, 1), ('g2', 134, 1), ('g3', 142, 1)]]
        p['ld2'] = [('ts', o + 60, 1), ('z0', o + 80, 1), ('h4', o + 140, 1)]
    else:
        L.update({28: ['u6@6', 'a3.0@14', 'u7', 'J1'], 29: ['t1'], 30: ['a3.1@12'], 31: ['u8', 'u9', 'e1']})
        p['pubs'] = {20: [0]}; p['kw']['jdst'] = {1: 'a207'}
        p['bars'] = [(n0 + 6, [1, 2, 3]), (o + 36, []), (o + 66, [])]
        p['ld'] = [('u10', n0 + 8, 1), ('u11', n0 + 12, 1), ('p1', n0 + 18, 1), ('u12', n0 + 20, 1), ('u13', n0 + 24, 1), ('c1', n0 + 30, 1), ('p3', n0 + 30, 1), ('a5', n0 + 31, 1), ('a6', n0 + 40, 1), ('c3', n0 + 50, 1), ('p2', n0 + 50, 1)] + \
           [(a, o + x, s) for a, x, s in [('u14', 38, 1), ('u15', 42, 1), ('a7', 46, 1), ('c2', 70, 1), ('g4', 94, 1), ('g1', 130, 1), ('g2', 134, 1), ('g3', 142, 1)]]
    p['T'] = dict(capa=7)
    L.update(L2)
    L[wb] = L[wb] + ['W0']
    p.update(kw)
    return p
if __name__ == '__main__':
    bp('v_a.s', fin4(G6('A', 27), **STJ)); bp('v_a0.s', fin4(G6('A', 27)))
    bp('v_b.s', fin4(G6('B', 27), **STJ)); bp('v_b0.s', fin4(G6('B', 27)))
    bp('v_c.s', fin4(G6('A', 24), **STJ))
```

```python
from n29 import *
ST0 = dict(stamps=0.5, stl=['start', 'fin'])
if __name__ == '__main__':
    p = G3(); p['F'][1] = ['n0', 'J1']
    bp('v_d.s', fin4(p, **ST0))
    bp('v_e.s', fin4(p, o2pol='nt', **ST0))
    bp('v_f.s', fin4(p, ypol='nt', **ST0))
    bp('v_g.s', fin4(p, o2pol='sc1', **ST0))
    bp('v_h.s', fin_(H1(), sm=False, **ST0))
    bp('v_i.s', fin_(H1(), sm=False, dpol='sc1', **ST0))
    bp('v_j.s', fin_(H1(), sm=False, dpol='nt', **ST0))
```

```python
from n30 import *
def G7(cmx=(10, 10, 8), L2={}, pub2=30, g=(94, 130, 134, 142, 128), cm2={}, **kw):
    p = G3(cmx)
    L = p['L']
    L.update({26: ['u5', 'a2.0@14'], 27: ['v15'] + QS + ['a2.1@18'], 28: ['u6@6', 'a3.0@14', 'u7'], 29: ['a3.1', 't1'], 30: ['p3@18'], 31: ['u8', 'u9', 'e1', 'c3@14'], 32: []})
    p['F'][1] = ['n0', 'J1']
    p['cm'].update(cm2)
    o = 136; n0 = sum(p['cm'].values())
    p['kw'].update(qclr=1)
    p['pubs'] = {20: [0], 30: [3, 2] if pub2 == 30 else [3]}
    p['bars'] = [(n0 + 6, [1] if pub2 == 30 else [1, 2]), (o + 36, []), (o + 66, [])]
    p['ld'] = [('u10', n0 + 8, 1), ('u11', n0 + 12, 1), ('p1', n0 + 18, 1), ('u12', n0 + 20, 1), ('u13', n0 + 24, 1), ('c1', n0 + 30, 1), ('a5', n0 + 30, 1), ('a6', n0 + 40, 1), ('p2', n0 + 50, 1)] + \
           [(a, o + x, s) for a, x, s in [('u14', 38, 1), ('u15', 42, 1), ('a7', 46, 1), ('c2', 70, 1), ('g4', g[0], 1), ('g1', g[1], 1), ('g2', g[2], 1), ('g3', g[3], 1)]]
    p['ld2'] = [('ts', o + 50, 1), ('z0', o + 76, 1), ('h4', o + g[4], 1)]
    p['T'] = dict(capa=7)
    L.update(L2)
    p.update(kw)
    return p
if __name__ == '__main__':
    bp('v_k.s', fin4(G7(), **STJ)); bp('v_k0.s', fin4(G7(), **ST0))
    p = G7(L2={27: ['v15', 'a2.1@14'], 29: ['a3.1', 't1'] + QS}, pub2=33)
    bp('v_l.s', fin4(p, **STJ)); bp('v_l0.s', fin4(p, **ST0))
    p = G7(L2={27: ['v15', 'a2.1@14'], 28: ['u6@6', 'a3', 'u7'], 29: ['t1'] + QS}, pub2=33)
    bp('v_m.s', fin4(p, **STJ)); bp('v_m0.s', fin4(p, **ST0))
```

```python
from n31 import *
def GL(**kw): return G7(L2={27: ['v15', 'a2.1@14'], 29: ['a3.1', 't1'] + QS}, pub2=33, **kw)
if __name__ == '__main__':
    bp('v_n.s', fin4(GL(), stamps=0.5, clk='both', stl=['start', 's23', 'B22a', 'B22b', 'B22c', 's24', 's25', 'B23a', 'B23b', 'B23c', 's26', 's27', 'B24a', 'B24b', 'B24c', 's28']))
    bp('v_o.s', fin4(GL(), stamps=0.5, clk='both', stl=['start', 's15', 'B18b', 's16', 's17', 'B19a', 'B19b', 's18', 's19', 'B20a', 'B20b', 's20', 's21', 'B21a', 'B21b', 's22']))
    bp('v_p.s', fin4(GL(), stamps=0.5, clk='both', stl=['start', 's28', 's29', 'B25a', 'B25b', 's30', 'pw3', 'pc3', 's32', 'pb1', 'pc1', 'm2', 'm3', 'm4', 'oend', 'fin']))
```

```python
from n32 import *
def G8(t1=27, cmx=(10, 10, 8), L2={}, g=(100, 130, 134, 142, 128), cm2={}, sp=2, **kw):
    p = G7(cmx, pub2=33, g=g, cm2=cm2)
    L = p['L']
    L.update({20: ['u2', 'k13'], 21: ['p0@10', 'v12'], 22: ['u3', 'k14'], 23: ['c0', 'a1.0', 'v13'], 24: ['u4', 'k15'], 25: ['a1.1', 'v14'], 26: ['u5', 'a2.0'],
              27: ['v15', 'a2.1'], 28: ['a3', 'u6'], 29: ['u7'] + QS[:4] + ['p3'], 30: QS[4:] + ['u8', 'u9'], 31: ['e1', 'u10', 'c3'], 32: []})
    if t1: L[t1] = L[t1][:2] + ['t1'] + L[t1][2:] if t1 == 21 else L[t1][:1] + ['t1'] + L[t1][1:]
    o = 136; n0 = sum(p['cm'].values())
    p['pubs'] = {20: [0], 29: [3]}; p['xbar'] = {29: 8}
    p['bars'] = [(n0 + 6, [1, 2]), (o + 36, []), (o + 73, [])]
    p['ld'] = [('u11', n0 + 7, sp), ('p1', n0 + 16, 1), ('u12', n0 + 17, sp), ('u13', n0 + 25, sp), ('c1', n0 + 32, 1), ('a5', n0 + 33, sp), ('u14', n0 + 49, sp), ('p2', n0 + 57, 1), ('a6', n0 + 58, sp), ('u15', n0 + 74, sp), ('c2', n0 + 82, 1), ('a7', n0 + 83, sp)] + \
           [(a, o + x, s) for a, x, s in [('g4', g[0], 1), ('g1', g[1], 1), ('g2', g[2], 1), ('g3', g[3], 1)]]
    p['ld2'] = [('ts', n0, 1), ('z0', o + 84, 1), ('h4', o + g[4], 1)]
    p['T'] = dict(capa=7)
    L.update(L2)
    p.update(kw)
    return p
if __name__ == '__main__':
    bp('v_q.s', fin4(G8(27), **STJ))
    bp('v_r.s', fin4(G8(0), **STJ))
    bp('v_s.s', fin4(G8(21), **STJ))
```

```python
from n33 import *
def G9(sp='/2', L2={}, **kw):
    L = {20: [sp, 'u2@8', 'k13'], 21: [sp, 'v12', 'p0@20'], 22: [sp, 'u3@4', 'c0@12', 'a1.0', 'k14:a'], 23: [sp, 'k14:b', 'v13'], 24: [sp, 'u4', 'a1.1', 'k15:a'], 25: [sp, 'k15:b', 'v14'],
         26: [sp, 'u5', 'a2.0', 'v15'], 27: [sp, 't1'], 28: [sp, 'a2.1@8', 'a3.0'], 29: [sp, 'a3.1', 'u6', 'u7'], 30: [sp, 'u8', 'u9', 'p3', 'e1'], 31: [sp] + QS + ['c3'], 32: []}
    L.update(L2)
    p = G8(0, L2=L, **kw)
    p['pubs'] = {20: [0], 30: [3]}; p['xbar'] = {}
    n0 = sum(p['cm'].values())
    p['ld'] = [('u10', n0 - 1, 1)] + p['ld']
    return p
if __name__ == '__main__':
    bp('u_a.s', fin4(G9(), **STJ))
    bp('u_b.s', fin4(G9(cm2={20: 10, 21: 10, 22: 10, 23: 6, 24: 10}, cmx=(6, 6, 6)), **STJ))
```

```python
from n34 import *
STK = dict(stamps=0.5, clk='both', stl=['start', 'p0', 's2', 's5', 's8', 's11', 's14', 's17', 's20', 's23', 's26', 's29', 's32', 'm3', 'oend', 'fin'])
def GB(**kw): return G9(cm2={20: 10, 21: 10, 22: 10, 23: 6, 24: 10}, cmx=(6, 6, 6), **kw)
if __name__ == '__main__':
    bp('u_bk.s', fin4(GB(), **STK))
    bp('u_lk.s', fin4(GL(), **STK))
```

```python
from n35 import *
def V1(sp='/2', L2={}, cm2={}, cmx=(8, 8, 6), tsp=2, g=(100, 130, 134, 142, 128), pubs=None, xbar=None, **kw):
    p = G3(cmx)
    L = p['L']
    L.update({16: ['e0', 'o0', 'v10@12'], 17: ['o1', 'o2', 'o3'], 18: ['u1', 'k12', 'o4', 'o5'], 19: ['o6', 'o7', 'v11@8'],
         20: [sp, 'u2@8', 'k13'], 21: [sp, 'v12', 'p0@20'], 22: [sp, 'u4@4', 'c0@12', 'a1.0', 'k14:a'], 23: [sp, 'k14:b', 'v13'], 24: [sp, 'u6', 'a2.0', 'k15:a'], 25: [sp, 'k15:b', 'v14'],
         26: [sp, 'p4', 'u3', 'a3.0', 'v15'], 27: [sp, 'J1@6'], 28: [sp, 'c4', 'a1.1@8', 't1@20'], 29: [sp, 'u5@6', 'a2.1'], 30: [sp, 'u7', 'a3.1', 'u8'], 31: [sp, 'u9', 'e1'], 32: []})
    L.update(L2)
    p['cm'].update({20: 10, 21: 10, 22: 10, 23: 6, 24: 6, 25: 10, 26: 10, 27: 10, 28: 6, 29: 6}); p['cm'].update(cm2)
    o = 136; n0 = sum(p['cm'].values())
    p.update(loc=3, pubs=pubs or {20: [0], 24: [4, 2]}, xbar=xbar or {}, uorder=[0, 1, 2, 4, 6, 3, 5, 7] + list(range(8, 16)), btag={18: ['u0', 'e0'], 30: ['u5']})
    p['kw']['jdst'] = {1: 'a207'}
    sp = tsp
    p['bars'] = [(n0 + 6, [1]), (o + 36, []), (o + 73, [])]
    p['ld'] = [('u10', n0 + 7, sp), ('p1', n0 + 16, 1), ('u11', n0 + 17, sp), ('u12', n0 + 25, sp), ('c1', n0 + 32, 1), ('p2', n0 + 32, 1), ('a5', n0 + 33, sp), ('u13', n0 + 49, sp), ('c2', n0 + 57, 1), ('a6', n0 + 58, sp), ('u14', n0 + 74, sp), ('u15', n0 + 82, sp), ('a7', n0 + 90, sp)] + \
           [(a, o + x, s) for a, x, s in [('g4', g[0], 1), ('g1', g[1], 1), ('g2', g[2], 1), ('g3', g[3], 1)]]
    p['ld2'] = [('ts', n0, 1), ('z0', o + 84, 1), ('h4', o + g[4], 1)]
    p['T'] = dict(capa=7, plo=o + 84 - n0)
    p.update(kw)
    return p
if __name__ == '__main__':
    bp('r_a.s', fin4(V1(), **STJ))
    bp('r_ak.s', fin4(V1(), **STK))
```

```python
from n36 import *
def GJ(F, **kw):
    p = GB(**kw); p['F'][1] = ['n0']; p['F'].update(F); return p
if __name__ == '__main__':
    bp('r_b.s', fin4(GJ({('q', 5): ['w7', 'x7', 'J1']}), **STK))
    bp('r_c.s', fin4(GJ({('q', 5): ['w7', 'x7', 'J1a'], ('q', 6): ['w8', 'x8', 'J1b']}), **STK))
    bp('r_d.s', fin4(GJ({('q', 6): ['w8', 'x8', 'J1b'], 1: ['n0', 'J1a']}), **STK))
    bp('r_e.s', fin4(GJ({'pre': ['w11', 'J1']}), **STK))
```

```python
from n37 import *
LJ14 = {14: ['J1@4'], 15: ['u0', 'v9@8'], 16: ['e0', 'k11@10'], 17: ['v10', 'y0', 'y1', 'y2', 'y3'], 18: ['u1', 'k12', 'y4', 'y5', 'y6', 'y7'], 19: ['v11@8']}
LJ14b = {14: ['v9', 'J1'], 15: ['u0@8'], 16: ['e0', 'k11@10'], 17: ['v10', 'y0', 'y1', 'y2', 'y3'], 18: ['u1', 'k12', 'y4', 'y5', 'y6', 'y7'], 19: ['v11@8']}
if __name__ == '__main__':
    bp('r_f.s', fin4(GJ({}, L2=LJ14), **STK))
    bp('r_g.s', fin4(GJ({}, L2=LJ14b), **STK))
    bp('r_h.s', fin4(GJ({12: ['v8'], 1: ['t0', 'n0']}, L2=LJ14), **STK))
    bp('r_i.s', fin4(GJ({}), **STK))
```

```python
from n38 import *
def GX(sp='/2', L2={}, F={}, cm2={}, cmx=(8, 8, 6), g=(100, 130, 134, 142), h4=None, tsp=2, x19=3, **kw):
    L = {14: ['J1@4'], 15: ['u0', 'v9@8'], 16: ['e0', 'k11@10'], 17: ['v10', 'y0', 'y1', 'y2', 'y3'], 18: ['u1', 'y4', 'y5', 'y6', 'y7'], 19: [sp, f'k12@{x19+1}', 'v11'],
         26: [sp, 'a2.0', 'v15'], 27: [sp, 'a2.1@12'], 28: [sp, 'u5@6', 'a3.0', 'u6:a'], 29: [sp, 'u6:b', 'a3.1', 'u7'], 30: [sp, 'u8', 'u9', 'p3', 'e1:a'], 31: ['/1.5', 'e1:b'] + QS + ['c3'], 32: []}
    L.update(L2)
    c = {20: 10, 21: 10, 22: 10, 23: 6, 24: 10, 28: 8, 29: 8}; c.update(cm2)
    p = G9(L2=L, cm2=c, cmx=cmx)
    p['F'].update({1: ['t1', 'n0']}); p['F'].update(F)
    p['pubs'] = {19: [0], 30: [3]}; p['xbar'] = {19: x19}
    o = 136; n0 = sum(p['cm'].values()); s = tsp
    p['bars'] = [(n0 + 6, [1, 2]), (o + 36, []), (o + 76, [])]
    p['ld'] = [('u10', n0 + 7, s), ('p1', n0 + 16, 1), ('u11', n0 + 17, s), ('u12', n0 + 25, s), ('c1', n0 + 32, 1), ('a5', n0 + 33, s), ('u13', n0 + 47, s), ('p2', n0 + 55, 1), ('a6', n0 + 56, s), ('u14', n0 + 70, s), ('u15', n0 + 78, s), ('c2', n0 + 86, 1), ('a7', n0 + 86, s)] + \
           [(a, o + x, 1) for a, x in [('g4', g[0]), ('g1', g[1]), ('g2', g[2]), ('g3', g[3])]]
    p['ld2'] = [('ts', n0, 1), ('z0', o + 60, 1)] + ([('h4', o + h4, 1)] if h4 else [])
    p['T'] = dict(capa=7, plo=102)
    p['h4end'] = not h4
    p.update(kw)
    return p
def fin6(p, **kw):
    o = fin4(p, **kw)
    if p.get('h4end'): o['tail'] = [o['tail'][0], ('fr',), ('ld', ['h1', 'h2', 'h3']), ('out',), ('ld', ['h4'])]
    return o
if __name__ == '__main__':
    bp('q_a.s', fin6(GX(g=(128, 136, 138, 142)), **STJ))
    bp('q_b.s', fin6(GX(g=(100, 130, 134, 142), h4=134), **STJ))
```

```python
from n39 import *
if __name__ == '__main__':
    bp('r_h0.s', fin4(GJ({12: ['v8'], 1: ['t0', 'n0']}, L2=LJ14)))
    bp('r_f0.s', fin4(GJ({}, L2=LJ14)))
    bp('q_a0.s', fin6(GX(g=(128, 136, 138, 142))))
    bp('u_b0x.s', fin4(GB()))
```

```python
from n40 import *
STP = dict(stamps=0.5, stl=['start', 'i0', 'i1', 'i2', 'i3', 'iss', 'b0'] + [f'c{i}' for i in range(10)] + ['pre'] + [f's{i}' for i in range(0, 13)] + ['fin'])
if __name__ == '__main__':
    bp('p_a.s', fin4(GB(), **STP))
```

```python
from n41 import *
import re
def hack(f):
    s = open(f).read().replace('s_lshl_b32 s82, s34, 18', 's_mov_b32 s82, 0').replace(' nt lds', ' lds'); open(f, 'w').write(s)
if __name__ == '__main__':
    for nm, kw in dict(h=dict(dmacost=2), i=dict(dmacost=2, cap=5), j=dict(dmacost=3, cap=5.5), k=dict(dmacost=1, cap=5)).items():
        bp(f'hk_{nm}.s', fin4(GB(), **STK, **kw)); hack(f'hk_{nm}.s')
```

```python
from n42 import *
if __name__ == '__main__':
    bp('u_b0y.s', fin4(GB()))
    for nm, kw in dict(a=dict(dc2=2), b=dict(dc2=2, gord=1), c=dict(dc2=2, gord=2), d=dict(dc2=2, gord=3), e=dict(dc2=2, gord=4), f=dict(dc2=2, gord=5), g=dict(dc2=2, gord=6), h=dict(dc2=1, gord=1), i=dict(dc2=2, gord=7), j=dict(gord=1)).items():
        bp(f'g_{nm}.s', fin4(GB(), **STK, **kw)); hack(f'g_{nm}.s')
```

```python
from n43 import *
if __name__ == '__main__':
    for nm, kw in dict(a=dict(dc2=2, gord=5), b=dict(dc2=2, gord=7), c=dict(dc2=1, gord=5), d=dict(dc2=3, gord=5), e=dict(dc2=2, gord=5, cap=5), f=dict(dc2=1, gord=5, cap=5), g=dict(dc2=2, gord=5, cap=7), h=dict(dc2=2, gord=5, early=0.5), i=dict(dc2=2, gord=5, early=3), j=dict(dc2=2, gord=5, bpos=0), k=dict(dc2=2, gord=5, bpos=1)).items():
        try:
            bp(f'g2_{nm}.s', fin4(GB(), **STK, **kw)); hack(f'g2_{nm}.s')
        except AssertionError as e: print(nm, 'FAIL', str(e)[:100])
```

```python
from n44 import *
import n7, n15
GO = dict(dc2=2, gord=5)
if __name__ == '__main__':
    build('z_k0y.s', n7.tocfg(n7.H1()))
    build('z_g0.s', dict(n7.tocfg(n7.H1()), **GO))
    build('z_gk.s', dict(n7.tocfg(n7.H1()), **GO, **STK))
    build('z_kk.s', dict(n7.tocfg(n7.H1()), **STK))
    bp('x_g0.s', dict(n15.B1(), **GO))
    bp('x_gk.s', dict(n15.B1(), **GO, **STK))
    bp('u_g0.s', fin4(GB(), **GO))
    bp('u_gk.s', fin4(GB(), **GO, **STK))
    bp('u_hk.s', fin4(GB(), **GO, **STK, bpos=0))
```
